```python
import torch

def _softmax(x, axis=-1):
    return torch.softmax(x, dim=axis)
def _gelu(x):
    return torch.nn.functional.gelu(x, approximate="tanh")
def _silu(x):
    return torch.nn.functional.silu(x)
def _sigmoid(x):
    return torch.sigmoid(x)
def _layernorm(x, axis=-1, eps=1e-5):
    m = x.mean(dim=axis, keepdim=True)
    v = x.var(dim=axis, keepdim=True, unbiased=False)
    return (x - m) / torch.sqrt(v + eps)
def _scatter_add(tgt, idx, src, axis=0):
    return tgt.clone().index_add_(axis, idx, src)
def _segment_sum(src, seg, n):
    out = torch.zeros((n,) + src.shape[1:], dtype=src.dtype)
    return out.index_add_(0, seg, src)
def _pad(x, pw):
    flat = tuple(v for pair in reversed(pw) for v in pair)
    return torch.nn.functional.pad(x, flat)

kernel_name = 'gated_mix__sliding_block__sliding_local_dilated__prompt'

def setup_inputs():

    _w = (lambda a: (lambda t: t.to(torch.bfloat16) if t.is_floating_point() else t)(torch.as_tensor(a)))
    def _A_setup():
        B, S, D = 1, 2048, 640
        return {
            "x": _w((lambda *s: torch.randn(*s, dtype=torch.bfloat16) * 0.05)(B, S, D)),
            "wqkv": _w((lambda *s: torch.randn(*s, dtype=torch.bfloat16) * 0.8)(D, 3 * D)),
            "wo": _w((lambda *s: torch.randn(*s, dtype=torch.bfloat16) * 0.05)(D, D)),
        }
    _A_in = _A_setup()

    def _B_setup():
        B, S, D = 1, 2048, 640
        return {
            "x": _w((lambda *s: torch.randn(*s, dtype=torch.bfloat16) * 0.05)(B, S, D)),
            "wqkv": _w((lambda *s: torch.randn(*s, dtype=torch.bfloat16) * 0.8)(D, 3 * D)),
            "wo": _w((lambda *s: torch.randn(*s, dtype=torch.bfloat16) * 0.05)(D, D)),
        }
    _B_in = _B_setup()

    return {
        "A_x": _A_in["x"],
        "A_wqkv": _A_in["wqkv"],
        "A_wo": _A_in["wo"],
        "B_x": _B_in["x"],
        "B_wqkv": _B_in["wqkv"],
        "B_wo": _B_in["wo"],
        "gate_w": _w((lambda *s: torch.randn(*s, dtype=torch.bfloat16) * 0.05)(640) * 16.0),
    }

def reference(A_x, A_wqkv, A_wo, B_x, B_wqkv, B_wo, gate_w):
    def _A_ref(x, wqkv, wo):
        B, S, D = x.shape
        H = 32; Dh = D // H; W = 256
        qkv = (lambda x, *d: x.permute(*d))((x @ wqkv).reshape(B, S, 3, H, Dh), 2, 0, 3, 1, 4)
        q, k, v = qkv[0], qkv[1], qkv[2]
        scores = torch.einsum("bhqd,bhkd->bhqk", q, k) * (Dh ** -0.5)
        idx = torch.arange(S)
        mask = (idx[:, None] - idx[None, :] >= 0) & (idx[:, None] - idx[None, :] < W)
        scores = torch.where(mask[None, None], scores, -1e9)
        p = _softmax(scores, axis=-1)
        o = torch.einsum("bhqk,bhkd->bhqd", p, v)
        return (lambda x, *d: x.permute(*d))(o, 0, 2, 1, 3).reshape(B, S, D) @ wo

    def _B_ref(x, wqkv, wo):
        B, S, D = x.shape
        H = 32; Dh = D // H
        W, dil = 8, 2
        qkv = (lambda x, *d: x.permute(*d))((x @ wqkv).reshape(B, S, 3, H, Dh), 2, 0, 3, 1, 4)
        q, k, v = qkv[0], qkv[1], qkv[2]
        scale = Dh ** -0.5
        pos = torch.arange(S)
        off = torch.arange(W) * dil
        idx = pos[:, None] - off[None, :]
        mask = idx >= 0
        idx_c = torch.where(mask, idx, 0).reshape(-1)
        kg = k[:, :, idx_c, :].reshape(B, H, S, W, Dh)
        vg = v[:, :, idx_c, :].reshape(B, H, S, W, Dh)
        logits = torch.einsum("bhsd,bhswd->bhsw", q, kg) * scale
        logits = torch.where(mask[None, None, :, :], logits, -1e9)
        attn = _softmax(logits, axis=-1)
        o = torch.einsum("bhsw,bhswd->bhsd", attn, vg)
        return (lambda x, *d: x.permute(*d))(o, 0, 2, 1, 3).reshape(B, S, D) @ wo

    x = A_x
    g = _sigmoid((x * gate_w).sum(-1, keepdims=True))
    a = _A_ref(x, A_wqkv, A_wo)
    b = _B_ref(x, B_wqkv, B_wo)
    return g * a + (1 - g) * b
```

```python
import re

REG_RE = re.compile(r'^(-?)(?:abs\(|\|)?([vas])(?:\[(\d+):(\d+)\]|(\d+))(?:\)|\|)?$')
TRANS = ('v_exp_f32', 'v_log_f32', 'v_rcp_f32', 'v_rsq_f32', 'v_sqrt_f32', 'v_sin_f32', 'v_cos_f32', 'v_rcp_iflag_f32')


def regs_of(op):
    op = op.strip()
    if op == 'vcc':
        return {('s', 'vcc_lo'), ('s', 'vcc_hi')}
    if op in ('vcc_lo', 'vcc_hi', 'm0', 'exec_lo', 'exec_hi'):
        return {('s', op)}
    if op == 'exec':
        return {('s', 'exec_lo'), ('s', 'exec_hi')}
    m = REG_RE.match(op)
    if not m:
        return set()
    k = m.group(2)
    if m.group(5) is not None:
        return {(k, int(m.group(5)))}
    return {(k, i) for i in range(int(m.group(3)), int(m.group(4)) + 1)}


def split_ops(s):
    out, depth, cur = [], 0, ''
    for ch in s:
        if ch in '[(':
            depth += 1
        if ch in '])':
            depth -= 1
        if ch == ',' and depth == 0:
            out.append(cur.strip())
            cur = ''
        else:
            cur += ch
    if cur.strip():
        out.append(cur.strip())
    return out


class Ins:
    __slots__ = ('text', 'mn', 'ops', 'mods', 'kind', 'wr', 'rd', 'srcA', 'srcB', 'srcC', 'passes', 'label', 'target',
                 'data', 'states', 'wide_store', 'is_dma', 'comment')

    def __init__(self, text, comment=None):
        self.text = text
        self.comment = comment
        self.label = None
        self.target = None
        self.wr, self.rd = set(), set()
        self.srcA = self.srcB = self.srcC = set()
        self.data = set()
        self.passes = 0
        self.states = 1
        self.wide_store = False
        self.is_dma = False
        self.kind = 'other'
        t = text.strip()
        if t.endswith(':'):
            self.label = t[:-1]
            self.kind = 'label'
            self.mn = ''
            self.states = 0
            return
        if t.startswith('.') or t.startswith(';') or not t:
            self.kind = 'dir'
            self.mn = ''
            self.states = 0
            return
        parts = t.split(None, 1)
        mn = parts[0]
        self.mn = mn
        rest = parts[1] if len(parts) > 1 else ''
        ops = split_ops(rest)
        mods = []
        if ops:
            last = ops[-1].split()
            if mn.startswith('s_waitcnt'):
                mods = rest.replace(',', ' ').split()
                ops = []
            else:
                ops[-1] = last[0]
                mods = last[1:]
        self.ops, self.mods = ops, mods
        R = [regs_of(o) for o in ops]
        base = re.sub(r'_(e32|e64|dpp|sdwa)$', '', mn)
        if mn.startswith('v_mfma'):
            self.kind = 'mfma'
            self.wr = R[0]
            self.srcA, self.srcB, self.srcC = R[1], R[2], R[3]
            self.rd = R[1] | R[2] | R[3]
            self.passes = 8 if '32x32' in mn else 4
        elif mn.startswith('v_'):
            self.kind = 'trans' if base in TRANS else 'valu'
            if base == 'v_nop':
                pass
            elif base.startswith('v_permlane') and 'swap' in base:
                self.wr = R[0] | R[1]
                self.rd = R[0] | R[1]
            elif base in ('v_add_co_u32', 'v_sub_co_u32', 'v_subrev_co_u32', 'v_addc_co_u32', 'v_subb_co_u32', 'v_mad_u64_u32'):
                self.wr = R[0] | R[1]
                self.rd = set().union(*R[2:])
            else:
                self.wr = R[0]
                self.rd = set().union(*R[1:]) if len(R) > 1 else set()
                if base in ('v_fmac_f32', 'v_dot2c_f32_bf16', 'v_pk_fmac_f16', 'v_writelane_b32') or mn.endswith('_dpp') or mn.endswith('_sdwa'):
                    self.rd = self.rd | R[0]
                if base.startswith('v_cmpx'):
                    raise ValueError('v_cmpx not supported by hazard pass')
        elif mn.startswith('ds_'):
            self.kind = 'ds'
            if mn.startswith('ds_read') or mn.startswith('ds_bpermute') or mn.startswith('ds_permute') or mn.startswith('ds_swizzle') or '_rtn' in mn:
                self.wr = R[0]
                self.rd = set().union(*R[1:])
            else:
                self.rd = set().union(*R)
        elif mn.startswith('buffer_') or mn.startswith('global_'):
            self.kind = 'vmem'
            if mn in ('buffer_inv', 'buffer_wbl2'):
                pass
            elif 'lds' in mods or '_lds_' in mn:
                self.is_dma = True
                self.rd = set().union(*R) | {('s', 'm0')}
            elif '_load' in mn:
                self.wr = R[0]
                self.rd = set().union(*R[1:])
            elif '_store' in mn:
                self.rd = set().union(*R)
                self.data = R[0] if mn.startswith('buffer_') else R[1]
                self.wide_store = mn.endswith('x3') or mn.endswith('x4')
            elif '_atomic' in mn:
                self.rd = set().union(*R)
                if 'sc0' in mods:
                    self.wr = R[0]
                if mn.endswith('cmpswap_x2'):
                    self.wide_store = True
                    self.data = R[0]
            else:
                raise ValueError(text)
        elif mn.startswith('s_'):
            self.kind = 'salu'
            if mn.startswith('s_load') or mn.startswith('s_buffer_load') or mn in ('s_memtime', 's_memrealtime'):
                self.kind = 'smem'
                self.wr = R[0]
                self.rd = set().union(*R[1:]) if len(R) > 1 else set()
            elif mn == 's_nop':
                self.states = int(ops[0], 0) + 1
            elif mn in ('s_branch',) or mn.startswith('s_cbranch'):
                self.kind = 'branch'
                self.target = ops[0]
                if 'vcc' in mn:
                    self.rd = regs_of('vcc')
                if 'exec' in mn:
                    self.rd = regs_of('exec')
            elif mn.startswith('s_cmp') or mn.startswith('s_bitcmp') or mn in ('s_waitcnt', 's_barrier', 's_setprio', 's_sleep', 's_endpgm', 's_setreg_b32', 's_setreg_imm32_b32'):
                self.rd = set().union(*R) if R else set()
            elif 'saveexec' in mn:
                self.wr = R[0] | regs_of('exec')
                self.rd = R[1] | regs_of('exec')
            else:
                self.wr = R[0]
                self.rd = set().union(*R[1:]) if len(R) > 1 else set()
                if mn in ('s_addk_i32', 's_mulk_i32', 's_cmov_b32', 's_cmovk_i32', 's_bitset0_b32', 's_bitset1_b32'):
                    self.rd = self.rd | R[0]
        else:
            raise ValueError('unknown instruction: ' + text)


def vec(rs):
    return {r for r in rs if r[0] in 'va'}


def sca(rs):
    return {r for r in rs if r[0] == 's'}


def need_states(p, c):
    n = 0
    pv = p.kind in ('valu', 'trans')
    cv = c.kind in ('valu', 'trans')
    if p.kind == 'mfma':
        tab_rw = 12 if p.passes == 8 else 8
        if c.kind == 'mfma':
            if p.wr & (c.srcA | c.srcB):
                n = max(n, tab_rw)
            if p.wr & c.srcC:
                if not (p.wr == c.srcC and p.passes == c.passes):
                    n = max(n, 10 if p.passes == 8 else 6)
            elif p.wr & c.wr:
                n = max(n, 10 if p.passes == 8 else 6)
        elif cv or c.kind in ('vmem', 'ds'):
            if p.wr & (c.rd | c.wr):
                n = max(n, tab_rw)
        if cv and (p.srcC & c.wr):
            n = max(n, 7 if p.passes == 8 else 3)
    if pv:
        if c.kind == 'mfma' and (vec(p.wr) & c.rd):
            n = max(n, 2)
        if c.kind == 'vmem' and (sca(p.wr) & c.rd):
            n = max(n, 5)
        if cv and (sca(p.wr) & c.rd):
            n = max(n, 4 if c.mn.startswith(('v_readlane', 'v_writelane')) else 2)
        if cv and c.mn.startswith(('v_readlane', 'v_readfirstlane')) and (vec(p.wr) & c.rd):
            n = max(n, 1)
        if cv and c.mn.startswith('v_permlane') and (vec(p.wr) & c.rd):
            n = max(n, 2)
        if cv and c.mn.endswith('_dpp') and (vec(p.wr) & c.rd):
            n = max(n, 2)
        if p.kind == 'trans' and c.kind != 'trans' and c.kind in ('valu', 'mfma') and (p.wr & c.rd):
            n = max(n, 1)
        if p.mn.startswith('v_dot') and (cv or c.kind in ('mfma', 'vmem', 'ds')) and (p.wr & (c.rd | c.wr)):
            if not (c.mn == p.mn and not (p.wr & (set().union(*[regs_of(o) for o in c.ops[1:3]])))):
                n = max(n, 3)
        if ('sdwa' in p.mn or any(m.startswith('op_sel') for m in p.mods)) and cv and (p.wr & (c.rd | c.wr)):
            n = max(n, 1)
        if c.kind in ('salu', 'smem', 'branch') and (sca(p.wr) & c.rd):
            n = max(n, 2)
    if p.kind == 'vmem' and p.wide_store and (p.data & c.wr):
        n = max(n, 2 if cv or c.kind == 'mfma' else 1)
    if p.kind == 'salu' and ('s', 'm0') in p.wr and ((c.kind == 'vmem' and c.is_dma) or 'addtid' in c.mn):
        n = max(n, 1)
    if p.kind == 'salu' and (p.wr & regs_of('exec')) and cv and c.mn.endswith('_dpp'):
        n = max(n, 1)
    return n


MAXD = 13


class Prog:
    def __init__(self):
        self.ins = []
        self.uid = 0

    def __call__(self, text, comment=None):
        for line in text.split('\n'):
            line = line.strip()
            if not line:
                continue
            if ';' in line and not line.startswith(';'):
                line, cm = line.split(';', 1)
                line = line.strip()
                self.ins.append(Ins(line, cm.strip()))
            else:
                self.ins.append(Ins(line, comment))

    def label(self, name):
        self.ins.append(Ins(name + ':'))

    def newlabel(self, base):
        self.uid += 1
        return '.L%s_%d' % (base, self.uid)

    def comment(self, s):
        self.ins.append(Ins('; ' + s))

    def _cfg(self):
        ins = self.ins
        lab = {x.label: i for i, x in enumerate(ins) if x.label}
        succ = [[] for _ in ins]
        for i, x in enumerate(ins):
            if x.mn == 's_endpgm':
                continue
            if x.kind == 'branch':
                succ[i].append(lab[x.target])
                if x.mn == 's_branch':
                    continue
            if i + 1 < len(ins):
                succ[i].append(i + 1)
        pred = [[] for _ in ins]
        for i, s in enumerate(succ):
            for j in s:
                pred[j].append(i)
        return succ, pred

    def fix_hazards(self, verbose=False):
        total = 0
        while True:
            succ, pred = self._cfg()
            ins = self.ins
            extra = {}
            for i, c in enumerate(ins):
                if c.kind in ('label', 'dir'):
                    continue
                need = 0
                stack = [(p, 0) for p in pred[i]]
                seen = {}
                while stack:
                    j, d = stack.pop()
                    if d >= MAXD or seen.get(j, 99) <= d:
                        continue
                    seen[j] = d
                    p = ins[j]
                    if p.kind not in ('label', 'dir'):
                        n = need_states(p, c)
                        if n - d > need:
                            need = n - d
                            why = p
                    nd = d + p.states + extra.get(j, 0)
                    for q in pred[j]:
                        stack.append((q, nd))
                if need > 0:
                    extra[i] = need
                    if verbose:
                        print('nop %d before [%s] due to [%s]' % (need, c.text, why.text))
            if not extra:
                break
            out = []
            for i, c in enumerate(ins):
                if i in extra:
                    out.append(Ins('s_nop %d' % (extra[i] - 1), 'hazard'))
                    total += 1
                out.append(c)
            self.ins = out
        return total

    def check_waits(self, entry_labels):
        succ, pred = self._cfg()
        ins = self.ins
        lab = {x.label: i for i, x in enumerate(ins) if x.label}
        errs = set()
        for e in entry_labels:
            stack = [(lab[e], (), ())]
            seen = set()
            visits = {}
            while stack:
                i, vm, lg = stack.pop()
                while True:
                    x = ins[i]
                    if x.kind == 'label' or len(pred[i]) > 1:
                        key = (i, vm, lg)
                        if key in seen:
                            break
                        seen.add(key)
                        visits[i] = visits.get(i, 0) + 1
                        if visits[i] > 40:
                            break
                    if x.kind not in ('label', 'dir'):
                        touched = x.rd | x.wr
                        for q in vm + lg:
                            pw = ins[q].wr
                            if pw & touched:
                                if not (pw & x.rd) and x.kind == ins[q].kind and x.kind in ('ds', 'vmem'):
                                    continue
                                errs.add((i, q))
                        if x.mn == 's_waitcnt':
                            for m in x.mods:
                                mm = re.match(r'(vmcnt|lgkmcnt|expcnt)\((\d+)\)', m)
                                n = int(mm.group(2))
                                if mm.group(1) == 'vmcnt':
                                    assert n <= 63, x.text
                                    if len(vm) > n:
                                        vm = vm[len(vm) - n:] if n else ()
                                elif mm.group(1) == 'lgkmcnt':
                                    assert n <= 15, x.text
                                    if n == 0:
                                        lg = ()
                                    elif not any(ins[q].kind == 'smem' for q in lg) and len(lg) > n:
                                        lg = lg[len(lg) - n:]
                        elif x.kind == 'vmem':
                            vm = vm + (i,)
                            if len(vm) > 64:
                                vm = vm[-64:]
                        elif x.kind in ('ds', 'smem'):
                            lg = lg + (i,)
                            if len(lg) > 40:
                                lg = lg[-40:]
                    s = succ[i]
                    if not s:
                        break
                    for j in s[1:]:
                        stack.append((j, vm, lg))
                    i = s[0]
        for i, q in sorted(errs):
            print('WAIT ERROR: [%s] (#%d) touches result of outstanding [%s] (#%d)' % (ins[i].text, i, ins[q].text, q))
        return len(errs)

    def max_regs(self):
        mx = {'v': -1, 'a': -1, 's': -1}
        for x in self.ins:
            for k, n in x.rd | x.wr:
                if isinstance(n, int):
                    mx[k] = max(mx[k], n)
        return mx

    def text(self):
        out = []
        for x in self.ins:
            if x.kind == 'label':
                out.append(x.text)
            elif x.kind == 'dir':
                out.append(x.text if x.text.startswith('.') else '    ' + x.text)
            else:
                out.append('    ' + x.text + (('    ; ' + x.comment) if x.comment else ''))
        return '\n'.join(out) + '\n'


def v(i, n=1):
    return 'v%d' % i if n == 1 else 'v[%d:%d]' % (i, i + n - 1)


def a(i, n=1):
    return 'a%d' % i if n == 1 else 'a[%d:%d]' % (i, i + n - 1)


def s(i, n=1):
    return 's%d' % i if n == 1 else 's[%d:%d]' % (i, i + n - 1)


def kernel_desc(name, vgpr, sgpr=102, accum=None):
    if accum is None:
        accum = min(256, (vgpr + 3) // 4 * 4)
    return '''.amdhsa_kernel %s
  .amdhsa_next_free_vgpr %d
  .amdhsa_next_free_sgpr %d
  .amdhsa_accum_offset %d
  .amdhsa_group_segment_fixed_size 0
  .amdhsa_kernarg_size 80
  .amdhsa_user_sgpr_count 2
  .amdhsa_user_sgpr_kernarg_segment_ptr 1
  .amdhsa_system_sgpr_workgroup_id_x 1
.end_amdhsa_kernel
''' % (name, vgpr, sgpr, accum)
```

```python
import sys, struct
sys.path.insert(0, 'gen')
from asm import *

NAME = 'gated_mix__sliding_block__sliding_local_dilated__prompt'

QKV_RB = 240 * 2048
QKV_BR = 16 * QKV_RB
O_OFF = 16 << 20
O_BR = 64 * 32 * 1280
G_OFF = 24 << 20
WS_BYTES = 32 << 20

X_BYTES = 2048 * 1280
WQ_BYTES = 640 * 3840
WO_BYTES = 640 * 1280
OUT_BYTES = 2048 * 1280


def f32(x):
    return '0x%08x' % struct.unpack('<I', struct.pack('<f', x))[0]


QSCALE = (20 ** -0.5) * 1.4426950408889634
NEG_INF = '0xff800000'


def srd(p, d, ptr, nbytes):
    p('s_mov_b32 s%d, s%d' % (d, ptr))
    p('s_and_b32 s%d, s%d, 0xffff' % (d + 1, ptr + 1))
    p('s_mov_b32 s%d, 0x%x' % (d + 2, nbytes))
    p('s_mov_b32 s%d, 0x20000' % (d + 3))


def wave_id(p, sdst, vtmp):
    p('v_lshrrev_b32 v%d, 6, v0' % vtmp)
    p('v_readfirstlane_b32 s%d, v%d' % (sdst, vtmp))
    p('v_and_b32 v0, 63, v0')


NSLOT = 4
SLOT = 32768


def phase1(p, sc):
    S_X, S_WA, S_WB, S_WS, S_GW = 8, 12, 16, 20, 24
    sW, sRB, sCB, sROT = 28, 29, 30, 31
    end = p.newlabel('p1end')
    p('s_cmp_ge_u32 s2, 256')
    p('s_cbranch_scc1 %s' % end)
    p('s_load_dwordx4 s[40:43], s[0:1], 0')
    p('s_load_dwordx2 s[44:45], s[0:1], 32')
    p('s_load_dwordx2 s[46:47], s[0:1], 48')
    p('s_load_dwordx2 s[48:49], s[0:1], 72')
    wave_id(p, sW, 1)
    p('s_and_b32 s3, s2, 7')
    p('s_lshr_b32 s4, s2, 3')
    p('s_waitcnt lgkmcnt(0)')
    srd(p, S_X, 40, X_BYTES)
    srd(p, S_WA, 42, WQ_BYTES)
    srd(p, S_WB, 44, WQ_BYTES)
    srd(p, S_WS, 48, WS_BYTES)
    srd(p, S_GW, 46, 1280)
    gate = p.newlabel('gate')
    p('s_cmp_ge_u32 s4, 30')
    p('s_cbranch_scc1 %s' % gate)
    p('s_lshr_b32 s5, s3, 1')
    p('s_mul_i32 s5, s5, 30')
    p('s_add_u32 s5, s5, s4')
    p('s_lshr_b32 s%d, s5, 3' % sCB)
    p('s_and_b32 s5, s5, 7')
    p('s_and_b32 s6, s3, 1')
    p('s_lshl_b32 s6, s6, 3')
    p('s_add_u32 s%d, s5, s6' % sRB)
    loader = p.newlabel('loader')
    p('s_cmp_ge_u32 s%d, 4' % sW)
    p('s_cbranch_scc1 %s' % loader)

    ACC = 0x40
    FR = 0x20
    AX, AW = 2, 10
    VST = 14
    p('v_and_b32 v16, 31, v0')
    p('v_lshrrev_b32 v17, 5, v0')
    p('s_lshr_b32 s5, s%d, 1' % sW)
    p('s_and_b32 s6, s%d, 1' % sW)
    p('s_lshl_b32 s7, s5, 6')
    p('v_add_u32 v18, s7, v16')
    p('v_bfe_u32 v19, v16, 1, 3')
    p('v_xor_b32 v19, v19, v17')
    p('v_lshlrev_b32 v19, 4, v19')
    p('v_lshl_add_u32 v%d, v18, 7, v19' % AX)
    for ks in range(1, 4):
        p('v_xor_b32 v%d, %d, v%d' % (AX + ks, ks * 32, AX))
    for ks in range(4):
        p('v_add_u32 v%d, 0x10000, v%d' % (AX + 4 + ks, AX + ks))
    p('s_lshl_b32 s7, s6, 3')
    p('v_add_u32 v20, s7, v17')
    p('v_lshlrev_b32 v20, 11, v20')
    p('v_lshl_add_u32 v%d, v18, 4, v20' % VST)
    p('v_bfe_u32 v21, v0, 2, 2')
    p('v_lshl_add_u32 v22, v17, 3, v21')
    p('v_lshlrev_b32 v22, 8, v22')
    p('s_lshl_b32 s7, s6, 1')
    p('v_xor_b32 v23, s7, v21')
    p('v_lshl_add_u32 v22, v23, 6, v22')
    p('v_bfe_u32 v23, v0, 4, 1')
    p('v_lshl_add_u32 v22, v23, 5, v22')
    p('v_and_b32 v23, 1, v0')
    p('v_lshl_add_u32 v22, v23, 4, v22')
    p('v_bfe_u32 v23, v0, 1, 1')
    p('v_lshl_add_u32 v22, v23, 3, v22')
    p('v_add_u32 v%d, 0x4000, v22' % AW)
    p('v_xor_b32 v%d, 64, v%d' % (AW + 1, AW))
    p('v_add_u32 v%d, 0x10000, v%d' % (AW + 2, AW))
    p('v_add_u32 v%d, 0x10000, v%d' % (AW + 3, AW + 1))
    p('s_mul_i32 s32, s%d, %d' % (sRB, QKV_RB))
    p('s_lshl_b32 s33, s%d, 15' % sCB)
    p('s_add_u32 s32, s32, s33')
    p('s_cmp_lt_u32 s%d, 5' % sCB)
    p('s_cselect_b32 s38, %s, 1.0' % f32(QSCALE))
    p('s_mov_b32 s39, s38')

    def reads(g):
        c, ks = g // 4, g % 4
        slot = c % NSLOT
        hi, off = slot // 2, (slot % 2) * SLOT
        f = FR + (g & 1) * 16
        out = []
        for u in range(2):
            for j in range(2):
                out.append('ds_read_b64_tr_b16 %s, v%d offset:%d' % (v(f + u * 4 + j * 2, 2), AW + hi * 2 + u, off + ks * 4096 + j * 1024))
        for t in range(2):
            out.append('ds_read_b128 %s, v%d offset:%d' % (v(f + 8 + t * 4, 4), AX + hi * 4 + ks, off + t * 4096))
        return [out[0], out[1], out[4], out[5], out[2], out[3]]

    def mfmas(g):
        f = FR + (g & 1) * 16
        first = (g % 40 == 0)
        out = []
        for u in range(2):
            for t in range(2):
                acc = v(ACC + (u * 2 + t) * 16, 16)
                out.append('v_mfma_f32_32x32x16_bf16 %s, %s, %s, %s' % (acc, v(f + u * 4, 4), v(f + 8 + t * 4, 4), '0' if first else acc))
        return out

    def epilogue(br):
        p.comment('epilogue pass %d' % br)
        for k in range(4):
            p('s_add_u32 s%d, s32, %d' % (34 + k, br * QKV_BR + k * 4096))
        T = 128
        n = 0
        for u in range(2):
            for t in range(2):
                acc = ACC + (u * 2 + t) * 16
                for half in range(2):
                    d = T + (n % 8) * 4
                    n += 1
                    for i in range(4):
                        r = acc + half * 8 + i * 2
                        p('v_pk_mul_f32 %s, %s, s[38:39]' % (v(r, 2), v(r, 2)))
                    for i in range(4):
                        r = acc + half * 8 + i * 2
                        p('v_cvt_pk_bf16_f32 v%d, v%d, v%d' % (d + i, r, r + 1))
                    p('buffer_store_dwordx4 %s, v%d, s[%d:%d], s%d offen offset:%d %s' % (v(d, 4), VST, S_WS, S_WS + 3, 34 + u * 2 + half, t * 512, sc))

    p('s_barrier')
    for x in reads(0):
        p(x)
    for g in range(80):
        last = (g == 79)
        p('s_waitcnt lgkmcnt(0)')
        if g % 4 == 3 and not last:
            p('s_barrier')
        rd = [] if last else reads(g + 1)
        mf = mfmas(g)
        seq = [mf[0]] + rd[0:2] + [mf[1]] + rd[2:4] + [mf[2]] + rd[4:6] + [mf[3]]
        for x in seq:
            p(x)
        if g % 40 == 39:
            epilogue(g // 40)
    p('s_waitcnt vmcnt(0)')
    p('s_endpgm')

    p.label(loader)
    p('s_sub_u32 s5, s%d, 4' % sW)
    p('s_add_u32 s6, s%d, s%d' % (sRB, sCB))
    p('s_and_b32 s6, s6, 3')
    p('s_mul_i32 s6, s6, 5')
    p('s_lshr_b32 s%d, s6, 1' % sROT)
    p('v_lshrrev_b32 v1, 3, v0')
    p('s_lshl_b32 s6, s5, 3')
    p('v_add_u32 v1, s6, v1')
    p('v_mul_u32_u24 v1, 1280, v1')
    p('v_lshrrev_b32 v2, 4, v0')
    p('s_and_b32 s6, s5, 1')
    p('s_lshl_b32 s6, s6, 2')
    p('v_add_u32 v3, s6, v2')
    p('v_and_b32 v4, 7, v0')
    p('v_xor_b32 v3, v3, v4')
    p('v_lshl_add_u32 v10, v3, 4, v1')
    p('s_lshl_b32 s6, s5, 2')
    p('v_add_u32 v1, s6, v2')
    p('v_mul_u32_u24 v1, 3840, v1')
    p('v_bfe_u32 v3, v0, 2, 2')
    p('v_xor_b32 v3, v3, v2')
    p('v_lshl_add_u32 v1, v3, 6, v1')
    p('v_and_b32 v3, 3, v0')
    p('v_lshl_add_u32 v11, v3, 4, v1')
    p('s_mul_i32 s32, s%d, %d' % (sRB, 128 * 1280))
    p('s_lshl_b32 s33, s%d, 8' % sCB)
    p('s_lshl_b32 s34, s5, 10')

    def issue(c):
        slot = c % NSLOT
        W = S_WA if c < 10 else S_WB
        p.comment('issue chunk %d' % c)
        p('s_add_u32 s35, s%d, %d' % (sROT, c % 10))
        p('s_cmp_ge_u32 s35, 10')
        p('s_cselect_b32 s36, 10, 0')
        p('s_sub_u32 s35, s35, s36')
        p('s_lshl_b32 s36, s35, 7')
        p('s_add_u32 s36, s36, s32')
        p('s_mul_i32 s37, s35, %d' % (64 * 3840))
        p('s_add_u32 s37, s37, s33')
        for t in range(4):
            p('s_add_u32 m0, s34, %d' % (slot * SLOT + 16384 + t * 4096))
            p('s_add_u32 s38, s37, %d' % (t * 16 * 3840))
            p('buffer_load_dwordx4 v11, s[%d:%d], s38 offen lds' % (W, W + 3))
            p('s_add_u32 m0, s34, %d' % (slot * SLOT + t * 4096))
            p('s_add_u32 s38, s36, %d' % (t * 32 * 1280))
            p('buffer_load_dwordx4 v10, s[%d:%d], s38 offen lds' % (S_X, S_X + 3))

    for c in range(NSLOT - 1):
        issue(c)
    for c in range(20):
        infl = min(NSLOT - 2, 19 - c)
        p('s_waitcnt vmcnt(%d)' % (8 * infl))
        p('s_barrier')
        if c + NSLOT - 1 < 20:
            issue(c + NSLOT - 1)
    p('s_endpgm')

    p.label(gate)
    p('s_lshl_b32 s5, s3, 1')
    p('s_add_u32 s5, s5, s4')
    p('s_sub_u32 s5, s5, 30')
    p('s_lshl_b32 s5, s5, 3')
    p('s_add_u32 s5, s5, s%d' % sW)
    p('s_mul_i32 s6, s5, %d' % (16 * 1280))
    p('v_and_b32 v1, 15, v0')
    p('v_lshrrev_b32 v2, 4, v0')
    p('v_lshlrev_b32 v2, 4, v2')
    p('v_mul_u32_u24 v3, 1280, v1')
    p('v_add_u32 v3, v3, v2')
    for st in range(20):
        p('buffer_load_dwordx4 %s, v3, s[%d:%d], s6 offen offset:%d' % (v(8 + st * 4, 4), S_X, S_X + 3, st * 64))
        p('buffer_load_dwordx4 %s, v2, s[%d:%d], 0 offen offset:%d' % (v(88 + st * 4, 4), S_GW, S_GW + 3, st * 64))
    for st in range(20):
        p('s_waitcnt vmcnt(%d)' % (38 - 2 * st))
        p('v_mfma_f32_16x16x32_bf16 v[4:7], %s, %s, %s' % (v(88 + st * 4, 4), v(8 + st * 4, 4), '0' if st == 0 else 'v[4:7]'))
    p('s_mov_b32 s7, %s' % f32(-1.4426950408889634))
    p('v_mul_f32 v4, s7, v4')
    p('v_exp_f32 v4, v4')
    p('v_add_f32 v4, 1.0, v4')
    p('v_rcp_f32 v4, v4')
    p('s_lshl_b32 s6, s5, 6')
    p('s_add_u32 s6, s6, %d' % G_OFF)
    p('v_lshlrev_b32 v1, 2, v1')
    p('s_nop 0')
    p('buffer_store_dword v4, v1, s[%d:%d], s6 offen %s' % (S_WS, S_WS + 3, sc))
    p('s_waitcnt vmcnt(0)')
    p.label(end)
    p('s_endpgm')


KA_OFF = 0
KA_STR = 8192
VA_OFF = 3 * KA_STR
VA_STR = 8192 + 64
ONES_OFF = VA_OFF + 3 * VA_STR
ONES_LEN = 9 * 512
KB_OFF = 54272
KB_STR = 5120
VB_OFF = KB_OFF + 3 * KB_STR
VB_STR = 5120 + 64
P2_LDS = VB_OFF + 3 * VB_STR
assert ONES_OFF + ONES_LEN <= KB_OFF and KB_OFF % 256 == 0 and VB_OFF % 256 == 0 and VA_OFF % 256 == 0


def phase2(p, sc_ld, sc_st):
    S_WS = 8
    sW, sH, sR, sC0, sODD = 12, 13, 14, 15, 16
    end = p.newlabel('p2end')
    p('s_cmp_ge_u32 s2, 256')
    p('s_cbranch_scc1 %s' % end)
    p('s_load_dwordx2 s[4:5], s[0:1], 72')
    wave_id(p, sW, 1)
    p('s_and_b32 s3, s2, 7')
    p('s_lshr_b32 s6, s2, 3')
    p('s_and_b32 s7, s6, 3')
    p('s_lshl_b32 s3, s3, 2')
    p('s_add_u32 s%d, s3, s7' % sH)
    p('s_lshr_b32 s%d, s6, 2' % sR)
    p('s_and_b32 s%d, s%d, 1' % (sODD, sH))
    p('s_lshr_b32 s3, s%d, 1' % sH)
    p('s_mul_i32 s3, s3, 5')
    p('s_lshl_b32 s6, s%d, 1' % sODD)
    p('s_add_u32 s%d, s3, s6' % sC0)
    p('s_waitcnt lgkmcnt(0)')
    srd(p, S_WS, 4, WS_BYTES)
    ws = 's[%d:%d]' % (S_WS, S_WS + 3)
    VL16 = 1
    p('v_lshlrev_b32 v%d, 4, v0' % VL16)
    p('s_lshl_b32 s3, s%d, 1' % sR)
    p('s_lshr_b32 s6, s%d, 1' % sW)
    p('s_add_u32 s3, s3, s6')
    p('s_sub_u32 s3, s3, 2')
    p('s_max_i32 s3, s3, 0')
    p('s_mul_i32 s3, s3, %d' % QKV_RB)
    p('s_and_b32 s6, s%d, 1' % sW)
    p('s_lshl_b32 s6, s6, 10')
    p('s_add_u32 s3, s3, s6')
    p('s_lshl_b32 s17, s%d, 11' % sC0)
    p('s_add_u32 s3, s3, s17')
    p('s_lshl_b32 s6, s%d, 10' % sW)
    for T, off, stride in ((80, KA_OFF, KA_STR), (160, VA_OFF, VA_STR)):
        for j in range(3):
            p('s_add_u32 m0, s6, %d' % (off + j * stride))
            p('s_add_u32 s7, s3, %d' % ((T + j) * 2048))
            p('buffer_load_dwordx4 v%d, %s, s7 offen %s lds' % (VL16, ws, sc_ld))
    VM, VHH = 2, 3
    QA1, QA2, QB1, QB2, VG = 4, 8, 12, 10, 16
    p('v_and_b32 v%d, 31, v0' % VM)
    p('v_lshrrev_b32 v%d, 5, v0' % VHH)
    p('s_lshl_b32 s3, s%d, 1' % sR)
    p('s_lshr_b32 s6, s%d, 2' % sW)
    p('s_add_u32 s3, s3, s6')
    p('s_mul_i32 s3, s3, %d' % QKV_RB)
    p('s_and_b32 s6, s%d, 3' % sW)
    p('s_lshl_b32 s6, s6, 9')
    p('s_add_u32 s3, s3, s6')
    p('s_add_u32 s18, s3, s17')
    p('s_add_u32 s19, s18, %d' % QKV_BR)
    p('v_add_u32 v17, s%d, v%d' % (sODD, VHH))
    p('v_lshlrev_b32 v18, 11, v17')
    p('v_lshl_add_u32 v18, v%d, 4, v18' % VM)
    p('s_cmp_eq_u32 s%d, 0' % sODD)
    p('s_cselect_b32 s20, 4096, 8')
    p('s_cselect_b32 s21, %d, 8' % (2 * KA_STR))
    p('s_cselect_b32 s22, %d, 8' % (2 * KB_STR))
    p('v_lshlrev_b32 v19, 4, v%d' % VM)
    p('v_add_u32 v19, s20, v19')
    p('v_lshlrev_b32 v20, 30, v%d' % VHH)
    p('v_add_u32 v20, v19, v20')
    p('buffer_load_dwordx4 %s, v18, %s, s18 offen %s' % (v(QA1, 4), ws, sc_ld))
    p('buffer_load_dwordx2 %s, v20, %s, s18 offen %s' % (v(QA2, 2), ws, sc_ld))
    p('s_lshl_b32 s3, s%d, 3' % sR)
    p('s_add_u32 s23, s3, s%d' % sW)
    p('s_lshl_b32 s3, s23, 7')
    p('s_add_u32 s3, s3, %d' % G_OFF)
    p('v_lshlrev_b32 v21, 2, v%d' % VM)
    p('buffer_load_dword v%d, v21, %s, s3 offen %s' % (VG, ws, sc_ld))
    skipb = p.newlabel('skipb')
    p('s_cmp_ge_u32 s%d, 5' % sW)
    p('s_cbranch_scc1 %s' % skipb)
    p('s_lshl_b32 s3, s%d, 2' % sR)
    p('s_add_u32 s3, s3, s%d' % sW)
    p('s_sub_u32 s3, s3, 1')
    p('s_max_i32 s3, s3, 0')
    p('s_and_b32 s6, s3, 1')
    p('s_lshr_b32 s3, s3, 1')
    p('s_mul_i32 s3, s3, %d' % QKV_RB)
    p('s_lshl_b32 s6, s6, 10')
    p('s_add_u32 s3, s3, s6')
    p('s_add_u32 s3, s3, s17')
    p('s_lshl_b32 s6, s%d, 10' % sW)
    for T, off, stride in ((80, KB_OFF, KB_STR), (160, VB_OFF, VB_STR)):
        for j in range(3):
            p('s_add_u32 m0, s6, %d' % (off + j * stride))
            p('s_add_u32 s7, s3, %d' % (QKV_BR + (T + j) * 2048))
            p('buffer_load_dwordx4 v%d, %s, s7 offen %s lds' % (VL16, ws, sc_ld))
    p.label(skipb)
    p('buffer_load_dwordx4 %s, v18, %s, s19 offen %s' % (v(QB1, 4), ws, sc_ld))
    p('buffer_load_dwordx2 %s, v20, %s, s19 offen %s' % (v(QB2, 2), ws, sc_ld))
    p('v_mov_b32 v24, 0x3f803f80')
    p('v_mov_b32 v25, 0x3f803f80')
    p('v_mov_b32 v26, 0x3f803f80')
    p('v_mov_b32 v27, 0x3f803f80')
    p('s_lshl_b32 s3, s%d, 10' % sW)
    p('v_add_u32 v22, s3, v%d' % VL16)
    p('v_min_u32 v22, %d, v22' % (ONES_LEN - 16))
    p('ds_write_b128 v22, v[24:27] offset:%d' % ONES_OFF)

    AK1, AK2, AV, BK1, BK2, BV = 22, 23, 24, 25, 26, 27
    p('s_lshl_b32 s3, s%d, 9' % sW)
    p('v_lshlrev_b32 v19, 4, v%d' % VM)
    p('v_add_u32 v19, s3, v19')
    p('v_mul_u32_u24 v28, %d, v17' % KA_STR)
    p('v_add_u32 v%d, v28, v19' % AK1)
    p('v_add_u32 v%d, s21, v19' % AK2)
    p('v_mul_u32_u24 v28, %d, v17' % KB_STR)
    p('v_add_u32 v%d, v28, v19' % BK1)
    p('v_add_u32 v%d, s22, v19' % BK2)
    p('v_bfe_u32 v28, v0, 4, 1')
    p('v_and_b32 v29, 3, v0')
    p('v_lshl_add_u32 v28, v28, 2, v29')
    p('v_add_u32 v29, s%d, v28' % sODD)
    p('v_bfe_u32 v30, v0, 2, 2')
    p('v_lshl_add_u32 v30, v%d, 2, v30' % VHH)
    p('v_lshlrev_b32 v30, 4, v30')
    p('v_and_b32 v31, 1, v29')
    p('v_lshl_add_u32 v31, v31, 3, v30')
    p('v_add_u32 v31, s3, v31')
    p('v_lshrrev_b32 v29, 1, v29')
    p('v_cmp_lt_u32 vcc, 4, v28')
    p('v_mul_u32_u24 v32, %d, v29' % VA_STR)
    p('v_add_u32 v32, v32, v31')
    p('v_add_u32 v32, %d, v32' % VA_OFF)
    p('v_add_u32 v33, %d, v30' % ONES_OFF)
    p('v_cndmask_b32 v%d, v32, v33, vcc' % AV)
    p('v_mul_u32_u24 v32, %d, v29' % VB_STR)
    p('v_add_u32 v32, v32, v31')
    p('v_add_u32 v32, %d, v32' % VB_OFF)
    p('v_cndmask_b32 v%d, v32, v33, vcc' % BV)

    MSK = 28
    S = 64
    SB = 208
    VD = 36
    VNI, VZ = 37, 38
    p('v_lshlrev_b32 v%d, 2, v%d' % (VD, VHH))
    p('v_sub_u32 v%d, v%d, v%d' % (VD, VM, VD))
    p('v_mov_b32 v%d, %s' % (VNI, NEG_INF))
    p('s_cmp_eq_u32 s%d, 0' % sR)
    p('s_cselect_b32 s24, %s, 0' % NEG_INF)
    p('s_cmp_eq_u32 s23, 0')
    p('s_cselect_b32 s25, %s, 0' % NEG_INF)
    p('v_mov_b32 v39, s24')
    p('v_mov_b32 v40, s25')
    p('v_mov_b32 v41, 0xffff')
    p('v_mov_b32 v42, 0xffff0000')
    SOLD, SDIAG = S, S + 8 * 16
    for r in range(16):
        kl = 8 * (r // 4) + r % 4
        p('v_cmp_le_i32 vcc, %d, v%d' % (kl, VD))
        p('v_subrev_u32 v43, %d, v%d' % (kl, VD))
        p('v_and_b32 v43, 17, v43')
        p('v_cndmask_b32_e64 v%d, v%d, 0, vcc' % (SDIAG + r, VNI))
        p('v_cndmask_b32 v%d, v39, v%d, vcc' % (SOLD + r, VNI))
        p('v_cndmask_b32 v%d, v40, v%d, vcc' % (SB + r, VNI))
        if r % 2 == 0:
            p('v_cndmask_b32 v%d, 0, v41, vcc' % (MSK + r // 2))
        else:
            p('v_cndmask_b32 v44, 0, v42, vcc')
            p('v_or_b32 v%d, v44, v%d' % (MSK + r // 2, MSK + r // 2))
        p('v_cmp_eq_u32 vcc, 0, v43')
        p('v_cndmask_b32 v%d, v%d, v%d, vcc' % (SB + r, VNI, SB + r))
        p('v_cndmask_b32 v%d, v%d, v%d, vcc' % (SB + 16 + r, VNI, SDIAG + r))

    p('s_waitcnt vmcnt(0) lgkmcnt(0)')
    p('s_barrier')

    KF = 40
    O = 240
    VF = 40
    PP = 56

    def kread(a1, a2, off, st):
        p('ds_read_b128 %s, v%d offset:%d' % (v(KF + st * 8, 4), a1, off))
        p('ds_read_b64 %s, v%d offset:%d' % (v(KF + st * 8 + 4, 2), a2, off))

    def smfma(dst, st, q1, q2, bias):
        d = v(dst, 16)
        p('v_mfma_f32_32x32x16_bf16 %s, %s, %s, %s' % (d, v(KF + st * 8, 4), v(q1, 4), d if bias else '0'))
        p('v_mfma_f32_32x32x8_bf16 %s, %s, %s, %s' % (d, v(KF + st * 8 + 4, 2), v(q2, 2), d))

    def vread(av, off, st):
        for m2 in range(2):
            for j in range(2):
                p('ds_read_b64_tr_b16 %s, v%d offset:%d' % (v(VF + st * 8 + m2 * 4 + j * 2, 2), av, off + m2 * 256 + j * 128))

    def pv(st, pp, first):
        for m2 in range(2):
            p('v_mfma_f32_32x32x16_bf16 %s, %s, %s, %s' % (v(O, 16), v(VF + st * 8 + m2 * 4, 4), v(pp + m2 * 4, 4), '0' if (first and m2 == 0) else v(O, 16)))

    def rowmax(tiles, M):
        regs = [t + r for t in tiles for r in range(16)]
        p('v_max_f32 v%d, v%d, v%d' % (M, regs[0], regs[1]))
        p('v_max_f32 v%d, v%d, v%d' % (M + 1, regs[2], regs[3]))
        k = 0
        for i in range(4, len(regs), 2):
            p('v_max3_f32 v%d, v%d, v%d, v%d' % (M + k, M + k, regs[i], regs[i + 1]))
            k ^= 1
        p('v_max_f32 v%d, v%d, v%d' % (M, M, M + 1))
        p('v_mov_b32 v%d, v%d' % (M + 1, M))
        p('v_permlane32_swap_b32 v%d, v%d' % (M, M + 1))
        p('v_max_f32 v%d, v%d, v%d' % (M, M, M + 1))
        p('v_mov_b32 v%d, v%d' % (M + 1, M))

    def softmax_tile(t, M, dst):
        for i in range(8):
            p('v_pk_add_f32 %s, %s, %s neg_lo:[0,1] neg_hi:[0,1]' % (v(t + 2 * i, 2), v(t + 2 * i, 2), v(M, 2)))
        for r in range(16):
            p('v_exp_f32 v%d, v%d' % (t + r, t + r))
        for i in range(8):
            p('v_cvt_pk_bf16_f32 v%d, v%d, v%d' % (dst + i, t + 2 * i, t + 2 * i + 1))

    def merged_pv(tile, tmp, M, av, off_old, off_diag, first):
        vread(av, off_diag, 0)
        vread(av, off_old, 1)
        softmax_tile(tile, M, tmp)
        for i in range(8):
            p('v_and_b32 v%d, v%d, v%d' % (PP + i, tmp + i, MSK + i))
        for i in range(8):
            p('v_xor_b32 v%d, v%d, v%d' % (tmp + i, tmp + i, PP + i))
        p('s_waitcnt lgkmcnt(0)')
        pv(0, PP, first)
        pv(1, tmp, False)

    def finish(br):
        p('v_rcp_f32 v36, v%d' % (O + 12))
        if br == 1:
            p('v_sub_f32 v%d, 1.0, v%d' % (VG, VG))
        p('v_mul_f32 v36, v36, v%d' % VG)
        for r in range(12):
            p('v_mul_f32 v%d, v36, v%d' % (O + r, O + r))
        for i in range(6):
            p('v_cvt_pk_bf16_f32 v%d, v%d, v%d' % (PP + i, O + 2 * i, O + 2 * i + 1))
        p('s_lshl_b32 s3, s23, 5')
        p('s_add_u32 s3, s3, s%d' % sH)
        p('s_mul_i32 s3, s3, 1280')
        p('s_add_u32 s3, s3, %d' % (O_OFF + br * O_BR))
        p('buffer_store_dwordx4 %s, v%d, %s, s3 offen %s' % (v(PP, 4), VL16, ws, sc_st))
        p('v_lshlrev_b32 v36, 30, v%d' % VHH)
        p('v_lshl_add_u32 v36, v%d, 3, v36' % VM)
        p('buffer_store_dwordx2 %s, v36, %s, s3 offen offset:1024 %s' % (v(PP + 4, 2), ws, sc_st))

    M = 38
    p('s_sub_u32 s26, 8, s%d' % sW)
    p('s_cmp_eq_u32 s%d, 0' % sR)
    p('s_cselect_b32 s26, s26, 0')
    kread(AK1, AK2, KA_OFF, 0)
    for t in range(9):
        if t < 8:
            kread(AK1, AK2, KA_OFF + (t + 1) * 512, (t + 1) & 1)
            p('s_waitcnt lgkmcnt(2)')
        else:
            p('s_waitcnt lgkmcnt(0)')
        smfma(S + t * 16, t & 1, QA1, QA2, t in (0, 8))
    for t in range(1, 8):
        ok = p.newlabel('ok')
        p('s_cmp_le_u32 s26, %d' % t)
        p('s_cbranch_scc1 %s' % ok)
        for r in range(16):
            p('v_mov_b32 v%d, v%d' % (S + t * 16 + r, VNI))
        p.label(ok)
    for r in range(16):
        p('v_max_f32 v%d, v%d, v%d' % (SDIAG + r, SDIAG + r, SOLD + r))
    rowmax([S + t * 16 for t in range(1, 9)], M)
    merged_pv(SDIAG, SOLD, M, AV, 0, 8 * 512, True)
    vread(AV, 512, 1)
    for t in range(1, 8):
        pp = PP if t & 1 else SOLD
        softmax_tile(S + t * 16, M, pp)
        if t < 7:
            vread(AV, (t + 1) * 512, (t + 1) & 1)
            p('s_waitcnt lgkmcnt(4)')
        else:
            p('s_waitcnt lgkmcnt(0)')
        pv(t & 1, pp, False)
    finish(0)
    kread(BK1, BK2, KB_OFF + 512, 0)
    kread(BK1, BK2, KB_OFF + 1024, 1)
    p('s_waitcnt lgkmcnt(2)')
    smfma(SB, 0, QB1, QB2, True)
    p('s_waitcnt lgkmcnt(0)')
    smfma(SB + 16, 1, QB1, QB2, True)
    for r in range(16):
        p('v_max_f32 v%d, v%d, v%d' % (SB + 16 + r, SB + 16 + r, SB + r))
    rowmax([SB + 16], M)
    merged_pv(SB + 16, SB, M, BV, 512, 1024, True)
    finish(1)
    p('s_waitcnt vmcnt(0)')
    p.label(end)
    p('s_endpgm')


P3_LDS = 102400 + 1024


def phase3(p, sc_ld):
    S_WS, S_WOA, S_WOB, S_OUT = 8, 12, 16, 20
    sW, sM, sN = 24, 25, 26
    end = p.newlabel('p3end')
    p('s_cmp_ge_u32 s2, 256')
    p('s_cbranch_scc1 %s' % end)
    p('s_load_dwordx2 s[40:41], s[0:1], 16')
    p('s_load_dwordx2 s[42:43], s[0:1], 40')
    p('s_load_dwordx2 s[44:45], s[0:1], 56')
    p('s_load_dwordx2 s[46:47], s[0:1], 72')
    wave_id(p, sW, 1)
    p('s_and_b32 s3, s2, 7')
    p('s_lshr_b32 s6, s2, 3')
    p('s_and_b32 s7, s6, 3')
    p('s_lshl_b32 s3, s3, 2')
    p('s_add_u32 s%d, s3, s7' % sM)
    p('s_lshr_b32 s%d, s6, 2' % sN)
    p('s_waitcnt lgkmcnt(0)')
    srd(p, S_WOA, 40, WO_BYTES)
    srd(p, S_WOB, 42, WO_BYTES)
    srd(p, S_OUT, 44, OUT_BYTES)
    srd(p, S_WS, 46, WS_BYTES)
    ws = 's[%d:%d]' % (S_WS, S_WS + 3)
    WV = 2
    for i in range(5):
        p('v_add_u32 v8, %d, v0' % (64 * i))
        p('v_mul_u32_u24 v9, 6554, v8')
        p('v_lshrrev_b32 v9, 16, v9')
        p('v_mul_u32_u24 v10, 10, v9')
        p('v_sub_u32 v10, v8, v10')
        p('v_mul_u32_u24 v9, 1280, v9')
        p('v_lshl_add_u32 v%d, v10, 4, v9' % (WV + i))
    p('s_mul_i32 s27, s%d, %d' % (sW, 80 * 1280))
    p('s_mul_i32 s3, s%d, 160' % sN)
    p('s_add_u32 s27, s27, s3')
    p('s_mul_i32 s28, s%d, 12800' % sW)

    def wo_dma(S):
        for i in range(13):
            p('s_add_u32 m0, s28, %d' % (i * 1024))
            p('s_add_u32 s3, s27, %d' % ((i // 5) * 32 * 1280))
            if i == 12:
                p('s_mov_b32 exec_hi, 0')
            p('buffer_load_dwordx4 v%d, s[%d:%d], s3 offen lds' % (WV + i % 5, S, S + 3))
            if i == 12:
                p('s_mov_b32 exec_hi, -1')

    wo_dma(S_WOA)
    VM, VKG, VO1, VO2 = 8, 9, 10, 11
    p('v_and_b32 v%d, 15, v0' % VM)
    p('v_lshrrev_b32 v%d, 4, v0' % VKG)
    p('v_lshrrev_b32 v12, 5, v0')
    p('v_mul_u32_u24 v12, 1280, v12')
    p('v_bfe_u32 v13, v0, 4, 1')
    p('v_lshl_add_u32 v12, v13, 9, v12')
    p('v_lshl_add_u32 v%d, v%d, 4, v12' % (VO1, VM))
    p('v_mul_u32_u24 v12, 1280, v%d' % VKG)
    p('v_lshl_add_u32 v%d, v%d, 3, v12' % (VO2, VM))
    p('s_and_b32 s29, s%d, 1' % sW)
    p('s_lshr_b32 s30, s%d, 1' % sW)
    p('s_lshl_b32 s3, s%d, 1' % sM)
    p('s_add_u32 s3, s3, s29')
    p('s_lshl_b32 s3, s3, 2')
    p('s_add_u32 s3, s3, s30')
    p('s_mul_i32 s31, s3, %d' % (8 * 1280))
    OF = [16, 56]
    ACC = 96
    WF = 136

    def o_loads(br):
        p('s_add_u32 s32, s31, %d' % (O_OFF + br * O_BR))
        p('s_add_u32 s33, s32, 5120')
        for st in range(4):
            for t in range(2):
                p('buffer_load_dwordx4 %s, v%d, %s, s%d offen offset:%d %s' % (v(OF[br] + (st * 2 + t) * 4, 4), VO1, ws, 32 + st // 2, (st % 2) * 2560 + t * 256, sc_ld))
        for t in range(2):
            for j in range(2):
                p('buffer_load_dwordx2 %s, v%d, %s, s%d offen offset:%d %s' % (v(OF[br] + (8 + t) * 4 + j * 2, 2), VO2, ws, 32 + j, 1024 + t * 128, sc_ld))

    o_loads(0)
    AW1, AW2 = 12, 13
    p('v_bfe_u32 v14, v0, 2, 2')
    p('v_lshrrev_b32 v15, 5, v0')
    p('v_mul_u32_u24 v15, 20, v15')
    p('v_bfe_u32 v7, v0, 4, 1')
    p('v_lshl_add_u32 v15, v7, 2, v15')
    p('v_add_u32 v15, v15, v14')
    p('s_mul_i32 s3, s30, 160')
    p('v_add_u32 v15, s3, v15')
    p('v_mul_u32_u24 v15, 160, v15')
    p('v_and_b32 v7, 3, v0')
    p('v_lshl_add_u32 v%d, v7, 3, v15' % AW1)
    p('v_mul_u32_u24 v15, 20, v%d' % VKG)
    p('v_add_u32 v15, v15, v14')
    p('s_add_u32 s3, s3, 16')
    p('v_add_u32 v15, s3, v15')
    p('v_mul_u32_u24 v15, 160, v15')
    p('v_lshl_add_u32 v%d, v7, 3, v15' % AW2)

    def w_reads():
        n = 0
        for st in range(5):
            for u in range(5):
                for j in range(2):
                    d = v(WF + (st * 5 + u) * 4 + j * 2, 2)
                    if st < 4:
                        p('ds_read_b64_tr_b16 %s, v%d offset:%d' % (d, AW1, st * 6400 + j * 1280 + u * 32))
                    else:
                        p('ds_read_b64_tr_b16 %s, v%d offset:%d' % (d, AW2, j * 12800 + u * 32))
                    n += 1
                    if n % 10 == 0:
                        p('s_waitcnt lgkmcnt(5)')
        p('s_waitcnt lgkmcnt(0)')

    def mm(br, later):
        for st in range(5):
            for t in range(2):
                done = (st * 2 + t + 1) if st < 4 else (8 + 2 * (t + 1))
                p('s_waitcnt vmcnt(%d)' % (12 - done + later))
                for u in range(5):
                    acc = v(ACC + (t * 5 + u) * 4, 4)
                    p('v_mfma_f32_16x16x32_bf16 %s, %s, %s, %s' % (acc, v(WF + (st * 5 + u) * 4, 4), v(OF[br] + (st * 2 + t) * 4, 4), '0' if (br == 0 and st == 0) else acc))

    p('s_waitcnt vmcnt(12)')
    p('s_barrier')
    w_reads()
    p('s_barrier')
    wo_dma(S_WOB)
    o_loads(1)
    mm(0, 25)
    p('s_waitcnt vmcnt(12)')
    p('s_barrier')
    w_reads()
    p('s_barrier')
    mm(1, 0)
    RS = 336
    p('s_mul_i32 s3, s30, %d' % (64 * RS))
    p('s_mul_i32 s6, s29, %d' % (32 * RS))
    p('s_add_u32 s3, s3, s6')
    p('v_mul_u32_u24 v14, %d, v%d' % (RS, VM))
    p('v_lshl_add_u32 v14, v%d, 4, v14' % VKG)
    p('v_add_u32 v14, s3, v14')
    for t in range(2):
        for u in range(5):
            p('ds_write_b128 v14, %s offset:%d' % (v(ACC + (t * 5 + u) * 4, 4), t * 16 * RS + u * 64))
    p('s_waitcnt lgkmcnt(0)')
    p('s_barrier')
    p('s_mul_i32 s6, s%d, %d' % (sM, 64 * 1280))
    p('s_mul_i32 s7, s%d, 160' % sN)
    p('s_add_u32 s6, s6, s7')
    fin = p.newlabel('fin')
    for rnd in range(2):
        if rnd == 1:
            p('s_cmp_ge_u32 s%d, 2' % sW)
            p('s_cbranch_scc1 %s' % fin)
        p('s_lshl_b32 s3, s%d, 6' % sW)
        p('s_add_u32 s3, s3, %d' % (rnd * 512))
        p('v_add_u32 v14, s3, v0')
        p('v_mul_u32_u24 v15, 6554, v14')
        p('v_lshrrev_b32 v15, 16, v15')
        p('v_mul_u32_u24 v7, 10, v15')
        p('v_sub_u32 v7, v14, v7')
        p('v_mul_u32_u24 v14, %d, v15' % RS)
        p('v_lshl_add_u32 v14, v7, 5, v14')
        for kq in range(4):
            for hf in range(2):
                p('ds_read_b128 %s, v14 offset:%d' % (v(16 + kq * 8 + hf * 4, 4), kq * 64 * RS + hf * 16))
        p('v_mul_u32_u24 v15, 1280, v15')
        p('v_lshl_add_u32 v15, v7, 4, v15')
        p('s_waitcnt lgkmcnt(0)')
        for i in range(4):
            p('v_pk_add_f32 %s, %s, %s' % (v(16 + 2 * i, 2), v(16 + 2 * i, 2), v(24 + 2 * i, 2)))
            p('v_pk_add_f32 %s, %s, %s' % (v(32 + 2 * i, 2), v(32 + 2 * i, 2), v(40 + 2 * i, 2)))
        for i in range(4):
            p('v_pk_add_f32 %s, %s, %s' % (v(16 + 2 * i, 2), v(16 + 2 * i, 2), v(32 + 2 * i, 2)))
        for i in range(4):
            p('v_cvt_pk_bf16_f32 v%d, v%d, v%d' % (48 + rnd * 4 + i, 16 + 2 * i, 17 + 2 * i))
        p('buffer_store_dwordx4 %s, v15, s[%d:%d], s6 offen' % (v(48 + rnd * 4, 4), S_OUT, S_OUT + 3))
    p.label(fin)
    p('s_waitcnt vmcnt(0)')
    p.label(end)
    p('s_endpgm')


HEADER = open('cdna_kernels/%s.s.ref' % NAME).read().split('; Override launch')[0]


def build(extra_empty=0):
    kernels = [('p1_kernel', lambda p: phase1(p, ''), NSLOT * SLOT),
               ('p2_kernel', lambda p: phase2(p, '', ''), P2_LDS),
               ('p3_kernel', lambda p: phase3(p, ''), P3_LDS)]
    out = HEADER
    for n, _, lds in kernels:
        out += '; @launch kernel=%s grid=(256,1,1) block=(512,1,1) lds=%d\n' % (n, lds)
    for _ in range(extra_empty):
        out += '; @launch kernel=nop_kernel grid=(256,1,1) block=(512,1,1) lds=0\n'
    if extra_empty:
        kernels.append(('nop_kernel', lambda p: p('s_endpgm'), 0))
    out += '.amdgcn_target "amdgcn-amd-amdhsa--gfx950"\n.text\n'
    desc = ''
    uid = 0
    for n, f, lds in kernels:
        p = Prog()
        p.uid = uid
        p.label(n)
        f(p)
        uid = p.uid
        nn = p.fix_hazards()
        ne = p.check_waits([n])
        mx = p.max_regs()
        print(n, 'instrs', len(p.ins), 'nops', nn, 'wait errors', ne, 'max regs', mx, file=sys.stderr)
        assert ne == 0
        out += '.globl %s\n.p2align 8\n.type %s,@function\n' % (n, n) + p.text()
        desc += '.p2align 6\n' + kernel_desc(n, max(mx['v'] + 1, 8), 102)
    out += '.section .rodata,"a"\n' + desc
    return out


if __name__ == '__main__':
    path = sys.argv[1] if len(sys.argv) > 1 else 'cdna_kernels/%s.s' % NAME
    open(path, 'w').write(build(int(sys.argv[2]) if len(sys.argv) > 2 else 0))
```

```python
import sys, struct
sys.path.insert(0, 'gen')
from asm import *

NAME = 'gated_mix__sliding_block__sliding_local_dilated__prompt'

QKV_RB = 240 * 2048
QKV_BR = 16 * QKV_RB
O_OFF = 2 * QKV_BR
O_BR = 64 * 32 * 1280
G_OFF = O_OFF + 2 * O_BR
F1A_OFF = G_OFF + 32768
F1B_OFF = F1A_OFF + 64 * 16 * 128
F2_OFF = F1B_OFF + 64 * 32 * 128
F2_BR = 64 * 32 * 128
DUMMY_OFF = F2_OFF + 2 * F2_BR
ST_OFF = 28 << 20
WS_BYTES = 32 << 20

X_BYTES = 2048 * 1280
WQ_BYTES = 640 * 3840
WO_BYTES = 640 * 1280
OUT_BYTES = 2048 * 1280

WSLOT = 8 * 2080
NWS = 6
XR_OFF = 102400
KA_OFF = 102400
VA_OFF = KA_OFF + 20480
VA_STR = 8192 + 64
ONES_OFF = VA_OFF + 3 * VA_STR
VB_OFF = 148224
VB_STR = 5120 + 64
QA_OFF = VB_OFF
LDS_BYTES = 163840
assert VB_OFF + 3 * VB_STR <= LDS_BYTES and ONES_OFF + 512 <= VB_OFF and VA_OFF % 256 == 0 and VB_OFF % 256 == 0

S_X, S_WA, S_WB, S_WS, S_WOA, S_WOB, S_OUT, S_GW, S_DBG = 8, 12, 16, 20, 24, 28, 32, 36, 40
sW, sFL = 44, 45
sNON = 46
sRB, sCB, sROT = 48, 49, 50
sH, sR, sC0, sODD, sRB32 = 51, 52, 53, 54, 55
sM, sN = 56, 57
sT = 58
sMASK = 64
WS = 's[%d:%d]' % (S_WS, S_WS + 3)

VNON = 2
VSTAMP = 6

CFG = dict(stamp=False, D=5, CF=17, nA=4, nB=3, rot=(0, 2, 4, 8), quotaB=6, flagblk=4, force_safe=False, gwarm=True)
SPIN = 1 << 15


def f32(x):
    return '0x%08x' % struct.unpack('<I', struct.pack('<f', x))[0]


QSCALE = (20 ** -0.5) * 1.4426950408889634
NEG_INF = '0xff800000'


def srd(p, d, ptr, nbytes):
    p('s_mov_b32 s%d, s%d' % (d, ptr))
    p('s_and_b32 s%d, s%d, 0xffff' % (d + 1, ptr + 1))
    p('s_mov_b32 s%d, 0x%x' % (d + 2, nbytes))
    p('s_mov_b32 s%d, 0x20000' % (d + 3))


def sr(d):
    return 's[%d:%d]' % (d, d + 3)


def stamp(p, i):
    if CFG['stamp']:
        p('s_memrealtime s[100:101]')
        p('s_waitcnt lgkmcnt(0)')
        p('v_writelane_b32 v%d, s100, %d' % (VSTAMP, i))


def stamp_clk(p, i):
    if CFG['stamp']:
        p('s_memtime s[100:101]')
        p('s_waitcnt lgkmcnt(0)')
        p('v_writelane_b32 v%d, s100, %d' % (VSTAMP, i))


def stamp_out(p):
    if CFG['stamp']:
        stamp(p, 61)
        stamp_clk(p, 63)
        p('s_lshl_b32 s3, s2, 3')
        p('s_add_u32 s3, s3, s%d' % sW)
        p('s_lshl_b32 s3, s3, 8')
        p('s_add_u32 s3, s3, %d' % ST_OFF)
        p('v_lshlrev_b32 v7, 2, v0')
        p('buffer_store_dword v%d, v7, %s, s3 offen' % (VSTAMP, WS))
        p('s_waitcnt vmcnt(0)')


def nonce_issue(p):
    p('buffer_load_dwordx2 %s, off, %s, 0 sc1' % (v(VNON, 2), sr(S_DBG)))


def nonce_check(p):
    ok, L = p.newlabel('nok'), p.newlabel('nsp')
    p('s_mov_b32 s3, %d' % SPIN)
    p.label(L)
    p('v_readfirstlane_b32 s%d, v%d' % (sNON, VNON))
    p('v_readfirstlane_b32 s%d, v%d' % (sNON + 1, VNON + 1))
    p('s_cmp_lg_u32 s%d, 0' % sNON)
    p('s_cbranch_scc1 %s' % ok)
    p('s_sub_u32 s3, s3, 1')
    p('s_cbranch_scc1 %s' % ok)
    p('s_sleep 2')
    nonce_issue(p)
    p('s_waitcnt vmcnt(0)')
    p('s_branch %s' % L)
    p.label(ok)


def flag_store(p, soff):
    p('s_mov_b64 exec, 1')
    p('buffer_store_dwordx2 %s, off, %s, s%d sc1' % (v(VNON, 2), WS, soff))
    p('s_mov_b64 exec, -1')


def poll_issue(p, vdat, voff, soff='0'):
    p('buffer_load_dwordx2 %s, v%d, %s, %s offen sc1' % (v(vdat, 2), voff, WS, soff))


def poll_check(p, vcmp, reissue):
    ok, L = p.newlabel('pok'), p.newlabel('psp')
    p('s_mov_b32 s3, %d' % SPIN)
    p.label(L)
    p('v_cmp_ne_u64 vcc, %s, %s' % (v(vcmp, 2), v(VNON, 2)))
    p('s_cbranch_vccz %s' % ok)
    p('s_sub_u32 s3, s3, 1')
    p('s_cbranch_scc1 %s' % ok)
    p('s_sleep 1')
    reissue()
    p('s_waitcnt vmcnt(0)')
    p('s_branch %s' % L)
    p.label(ok)


def prologue(p, end):
    p('s_cmp_ge_u32 s2, 256')
    p('s_cbranch_scc1 %s' % end)
    p('s_load_dwordx16 s[64:79], s[0:1], 0')
    p('s_load_dwordx4 s[80:83], s[0:1], 64')
    p('v_lshrrev_b32 v1, 6, v0')
    p('v_readfirstlane_b32 s%d, v1' % sW)
    p('v_and_b32 v0, 63, v0')
    if CFG['stamp']:
        p('v_mov_b32 v%d, 0' % VSTAMP)
        stamp(p, 0)
        stamp_clk(p, 62)
    p('s_and_b32 s3, s2, 7')
    p('s_lshr_b32 s4, s2, 3')
    p('s_lshr_b32 s5, s3, 1')
    p('s_mul_i32 s5, s5, 30')
    p('s_add_u32 s5, s5, s4')
    p('s_lshr_b32 s%d, s5, 3' % sCB)
    p('s_and_b32 s5, s5, 7')
    p('s_and_b32 s6, s3, 1')
    p('s_lshl_b32 s6, s6, 3')
    p('s_add_u32 s%d, s5, s6' % sRB)


def late_scalars(p):
    srd(p, S_WB, 72, WQ_BYTES)
    srd(p, S_WS, 82, WS_BYTES)
    srd(p, S_WOA, 68, WO_BYTES)
    srd(p, S_WOB, 74, WO_BYTES)
    srd(p, S_OUT, 78, OUT_BYTES)
    srd(p, S_GW, 76, 1280)
    srd(p, S_DBG, 80, 256)
    p('s_and_b32 s3, s2, 7')
    p('s_lshr_b32 s4, s2, 3')
    p('s_and_b32 s7, s4, 3')
    p('s_lshl_b32 s3, s3, 2')
    p('s_add_u32 s%d, s3, s7' % sH)
    p('s_mov_b32 s%d, s%d' % (sM, sH))
    p('s_lshr_b32 s%d, s4, 2' % sR)
    p('s_mov_b32 s%d, s%d' % (sN, sR))
    p('s_and_b32 s%d, s%d, 1' % (sODD, sH))
    p('s_lshr_b32 s3, s%d, 1' % sH)
    p('s_mul_i32 s3, s3, 5')
    p('s_lshl_b32 s6, s%d, 1' % sODD)
    p('s_add_u32 s%d, s3, s6' % sC0)
    p('s_lshl_b32 s3, s%d, 3' % sR)
    p('s_add_u32 s%d, s3, s%d' % (sRB32, sW))
    p('s_lshl_b32 s3, s2, 3')
    p('s_add_u32 s3, s3, s%d' % sW)
    p('s_lshl_b32 s3, s3, 7')
    p('s_add_u32 s%d, s3, %d' % (sFL, DUMMY_OFF))
    for r in range(16):
        kl = 8 * (r // 4) + r % 4
        p('s_mov_b32 s%d, 0x%x' % (sMASK + 2 * r, (0xffffffff << kl) & 0xffffffff))
        p('s_mov_b32 s%d, 0x%x' % (sMASK + 2 * r + 1, (0xffffffff << (kl + 4)) & 0xffffffff))


def mask(r):
    return 's[%d:%d]' % (sMASK + 2 * r, sMASK + 2 * r + 1)


def p1_compute(p):
    D, CF = CFG['D'], CFG['CF']
    NB = D + 1
    VST, AX, AW = 1, 2, 4
    WF, ACC, X = 8, 32, 96
    p('s_waitcnt lgkmcnt(0)')
    late_scalars(p)
    nn = p.newlabel('nononce')
    p('s_or_b32 s3, s2, s%d' % sW)
    p('s_cbranch_scc1 %s' % nn)
    p('s_memrealtime s[4:5]')
    p('s_waitcnt lgkmcnt(0)')
    p('s_or_b32 s4, s4, 1')
    p('v_mov_b32 v8, s4')
    p('v_mov_b32 v9, s5')
    p('s_mov_b64 exec, 1')
    p('buffer_store_dwordx2 v[8:9], off, %s, 0 sc1' % sr(S_DBG))
    p('s_mov_b64 exec, -1')
    p.label(nn)
    p('v_and_b32 v16, 15, v0')
    p('v_lshrrev_b32 v17, 4, v0')
    p('v_lshrrev_b32 v18, 1, v16')
    p('v_xor_b32 v18, v18, v17')
    p('v_lshlrev_b32 v18, 4, v18')
    p('v_lshl_add_u32 v18, v16, 7, v18')
    p('s_lshl_b32 s3, s%d, 12' % sW)
    p('s_add_u32 s3, s3, %d' % XR_OFF)
    p('v_add_u32 v%d, s3, v18' % AX)
    p('v_xor_b32 v%d, 64, v%d' % (AX + 1, AX))
    p('v_bfe_u32 v18, v0, 2, 3')
    p('v_mul_u32_u24 v18, 2080, v18')
    p('v_lshrrev_b32 v19, 5, v0')
    p('v_lshl_add_u32 v18, v19, 10, v18')
    p('v_and_b32 v20, 3, v0')
    p('v_lshl_add_u32 v%d, v20, 3, v18' % AW)
    p('v_add_u32 v%d, %d, v%d' % (AW + 1, 3 * WSLOT, AW))
    p('v_and_b32 v18, 31, v0')
    p('v_lshlrev_b32 v18, 4, v18')
    p('v_lshl_add_u32 v18, v19, 11, v18')
    p('s_lshl_b32 s3, s%d, 9' % sW)
    p('v_add_u32 v%d, s3, v18' % VST)
    sQ, sSC, sF = sT, sT + 2, sT + 1
    p('s_mul_i32 s%d, s%d, %d' % (sQ, sRB, QKV_RB))
    p('s_lshl_b32 s3, s%d, 15' % sCB)
    p('s_add_u32 s%d, s%d, s3' % (sQ, sQ))
    p('s_cmp_lt_u32 s%d, 5' % sCB)
    p('s_cselect_b32 s%d, %s, 1.0' % (sSC, f32(QSCALE)))
    p('s_mov_b32 s%d, s%d' % (sSC + 1, sSC))
    p('s_lshl_b32 s3, s%d, 2' % sRB)
    p('s_add_u32 s3, s3, s%d' % sW)
    p('s_lshl_b32 s4, s3, 4')
    p('s_add_u32 s4, s4, s%d' % sCB)
    p('s_lshl_b32 s5, s4, 7')
    p('s_add_u32 s62, s5, %d' % F1A_OFF)
    p('s_lshl_b32 s5, s4, 8')
    p('s_add_u32 s63, s5, %d' % F1B_OFF)
    p('s_add_u32 s%d, s63, 128' % sFL)

    frs = []
    for c in range(20):
        for i in range(16):
            if c < 10:
                st, u = i // 8, i % 8
                off = [(st * 2 + j) * 256 + u * 32 for j in range(2)]
                frs.append(dict(c=c, off=off, acc=u, xs=2 * c + st, first=(c == 0 and st == 0)))
            else:
                slab, cc = (c - 10) // 5, (c - 10) % 5
                st, u = i // 4, i % 4
                off = [(st * 2 + j) * 128 + u * 32 for j in range(2)]
                frs.append(dict(c=c, off=off, acc=slab * 4 + u, xs=4 * cc + st, first=(cc == 0 and st == 0)))
    pend = []

    def lds(text, tag):
        p(text)
        pend.append(tag)

    def need(tags):
        idx = [i for i, t in enumerate(pend) if t in tags]
        if idx:
            n = len(pend) - 1 - max(idx)
            assert n <= 15
            p('s_waitcnt lgkmcnt(%d)' % n)
            del pend[:max(idx) + 1]

    def pre_read(f):
        fr = frs[f]
        if f % 16 == 0:
            c = fr['c']
            if c <= CF:
                p('s_barrier')
                if CFG['stamp'] and c % 2 == 0:
                    stamp(p, 2 + c // 2)
                    del pend[:]
            if c < 10:
                for st in range(2):
                    for t in range(2):
                        lds('ds_read_b128 %s, v%d offset:%d' % (v(X + ((2 * c + st) * 2 + t) * 4, 4), AX + st, (c % 3) * 16384 + t * 2048), ('x', 2 * c + st))

    def w_read(f, j):
        fr = frs[f]
        slot = fr['c'] % NWS
        lds('ds_read_b64_tr_b16 %s, v%d offset:%d' % (v(WF + (f % NB) * 4 + j * 2, 2), AW + slot // 3, (slot % 3) * WSLOT + fr['off'][j]), ('w', f))

    def mf(f, t):
        fr = frs[f]
        acc = v(ACC + (fr['acc'] * 2 + t) * 4, 4)
        p('v_mfma_f32_16x16x32_bf16 %s, %s, %s, %s' % (acc, v(WF + (f % NB) * 4, 4), v(X + (fr['xs'] * 2 + t) * 4, 4), '0' if fr['first'] else acc))

    def epilogue(br, us):
        for u in us:
            a0 = ACC + u * 8
            for i in range(4):
                p('v_pk_mul_f32 %s, %s, s[%d:%d]' % (v(a0 + 2 * i, 2), v(a0 + 2 * i, 2), sSC, sSC + 1))
            for i in range(4):
                p('v_cvt_pk_bf16_f32 v%d, v%d, v%d' % (a0 + i, a0 + 2 * i, a0 + 2 * i + 1))
            p('s_add_u32 s3, s%d, %d' % (sQ, br * QKV_BR + u * 4096))
            p('v_permlane16_swap_b32 v%d, v%d' % (a0, a0 + 2))
            p('v_permlane16_swap_b32 v%d, v%d' % (a0 + 1, a0 + 3))
            p('buffer_store_dwordx4 %s, v%d, %s, s3 offen sc1' % (v(a0, 4), VST, WS))

    stamp(p, 1)
    for f in range(D):
        pre_read(f)
        w_read(f, 0)
        w_read(f, 1)
    for f in range(320):
        g = f + D
        if f == 160 + 16 * CFG['nA']:
            p('s_waitcnt vmcnt(0)')
            nonce_check(p)
            flag_store(p, 62)
            if CFG['stamp']:
                stamp(p, 16)
                del pend[:]
        if f == 240 + 16 * CFG['nB']:
            p('s_waitcnt vmcnt(0)')
            flag_store(p, 63)
            if CFG['stamp']:
                stamp(p, 17)
                del pend[:]
        need({('w', f), ('x', frs[f]['xs'])})
        mf(f, 0)
        if g < 320:
            pre_read(g)
            w_read(g, 0)
        mf(f, 1)
        if g < 320:
            w_read(g, 1)
        if f == 159:
            nonce_issue(p)
        if f in (159, 239, 319):
            if CFG['stamp']:
                stamp(p, {159: 12, 239: 14, 319: 18}[f])
                del pend[:]
            epilogue(0 if f == 159 else 1, {159: range(8), 239: range(4), 319: range(4, 8)}[f])
            if CFG['stamp']:
                stamp(p, {159: 13, 239: 15, 319: 19}[f])


VPOLL, VPD = 18, 30


def pollA_offsets(p):
    p('s_sub_u32 s58, s%d, 4' % sW)
    p('s_lshl_b32 s3, s%d, 1' % sR)
    p('s_add_u32 s3, s3, s58')
    p('s_sub_u32 s3, s3, 2')
    p('s_max_i32 s59, s3, 0')
    p('v_and_b32 v20, 3, v0')
    p('s_lshl_b32 s3, s59, 2')
    p('v_add_u32 v21, s3, v20')
    p('v_and_b32 v20, 1, v0')
    p('s_lshl_b32 s3, s%d, 3' % sR)
    p('s_lshl_b32 s4, s58, 1')
    p('s_add_u32 s3, s3, s4')
    p('v_add_u32 v20, s3, v20')
    p('v_cmp_gt_u32 vcc, 16, v0')
    p('v_cndmask_b32 v21, v20, v21, vcc')
    p('v_bfe_u32 v20, v0, 3, 1')
    p('v_mul_u32_u24 v20, 5, v20')
    p('v_add_u32 v20, 5, v20')
    p('v_cndmask_b32 v20, 0, v20, vcc')
    p('v_lshrrev_b32 v22, 1, v0')
    p('v_and_b32 v22, 2, v22')
    p('v_add_u32 v22, s%d, v22' % sC0)
    p('v_lshrrev_b32 v22, 4, v22')
    p('v_add_u32 v20, v20, v22')
    p('v_lshl_add_u32 v20, v21, 4, v20')
    p('v_lshlrev_b32 v20, 7, v20')
    p('v_add_u32 v%d, %d, v20' % (VPOLL, F1A_OFF))


def p1_loader(p):
    CF = CFG['CF']
    VX, VWA, VWB = 8, 9, 10
    p('s_sub_u32 s5, s%d, 4' % sW)
    rot = CFG['rot']
    p('s_add_u32 s6, s%d, s%d' % (sRB, sCB))
    if len(rot) == 3:
        p('s_mul_i32 s7, s6, 86')
        p('s_lshr_b32 s7, s7, 8')
        p('s_mul_i32 s7, s7, 3')
        p('s_sub_u32 s6, s6, s7')
    else:
        p('s_and_b32 s6, s6, %d' % (len(rot) - 1))
    p('s_lshl_b32 s6, s6, 2')
    p('s_lshr_b32 s6, 0x%x, s6' % sum(r << (4 * i) for i, r in enumerate(rot)))
    p('s_and_b32 s%d, s6, 15' % sROT)
    p('v_lshrrev_b32 v1, 3, v0')
    p('s_lshl_b32 s6, s5, 3')
    p('v_add_u32 v4, s6, v1')
    p('v_mul_u32_u24 v4, 1280, v4')
    p('v_lshrrev_b32 v5, 4, v0')
    p('s_and_b32 s6, s5, 1')
    p('s_lshl_b32 s6, s6, 2')
    p('v_add_u32 v7, s6, v5')
    p('v_and_b32 v11, 7, v0')
    p('v_xor_b32 v7, v7, v11')
    p('v_lshl_add_u32 v%d, v7, 4, v4' % VX)
    p('v_lshrrev_b32 v4, 5, v0')
    p('v_lshlrev_b32 v4, 5, v4')
    p('v_bfe_u32 v7, v0, 4, 1')
    p('v_lshl_add_u32 v4, v7, 2, v4')
    p('v_add_u32 v4, s5, v4')
    p('v_mul_u32_u24 v4, 3840, v4')
    p('v_and_b32 v7, 15, v0')
    p('v_lshl_add_u32 v%d, v7, 4, v4' % VWA)
    sXB, sWBs, sLX, sLW, sKX, sKW = 60, 61, 62, 63, 96, 97
    p('s_mul_i32 s%d, s%d, %d' % (sXB, sRB, 128 * 1280))
    p('s_lshl_b32 s%d, s%d, 8' % (sWBs, sCB))
    p('s_lshl_b32 s%d, s5, 10' % sLX)
    p('s_mul_i32 s%d, s5, 2080' % sLW)
    p('s_waitcnt lgkmcnt(0)')
    srd(p, S_X, 64, X_BYTES)
    srd(p, S_WA, 66, WQ_BYTES)

    q = []
    for c in range(20):
        for t in range(4):
            q.append(('w', c, t, c - 4 if c >= NWS else -1))
            if c < 10:
                q.append(('x', c, t, c - 2 if c >= 3 else -1))
    cur = {'c': None}
    issued = []

    def kbase(c):
        if cur['c'] == c:
            return
        cur['c'] = c
        kk = c if c < 10 else 2 * ((c - 10) % 5)
        p('s_add_u32 s3, s%d, %d' % (sROT, kk))
        p('s_cmp_ge_u32 s3, 10')
        p('s_cselect_b32 s4, 10, 0')
        p('s_sub_u32 s3, s3, s4')
        if c < 10:
            p('s_lshl_b32 s4, s3, 7')
            p('s_add_u32 s%d, s4, s%d' % (sKX, sXB))
        p('s_mul_i32 s4, s3, %d' % (64 * 3840))
        p('s_add_u32 s%d, s4, s%d' % (sKW, sWBs))

    def emit(it):
        kind, c, t, _ = it
        kbase(c)
        if kind == 'x':
            p('s_add_u32 m0, s%d, %d' % (sLX, XR_OFF + (c % 3) * 16384 + t * 4096))
            p('s_add_u32 s3, s%d, %d' % (sKX, t * 32 * 1280))
            p('buffer_load_dwordx4 v%d, %s, s3 offen lds' % (VX, sr(S_X)))
        else:
            kb, kh = t & 1, t >> 1
            p('s_add_u32 m0, s%d, %d' % (sLW, (c % NWS) * WSLOT + kb * 4 * 2080 + kh * 1024))
            p('s_add_u32 s3, s%d, %d' % (sKW, (16 * kh + 8 * kb) * 3840 + (128 * ((c - 10) // 5) if c >= 10 else 0)))
            p('buffer_load_dwordx4 v%d, %s, s3 offen lds' % (VWA if c < 10 else VWB, sr(S_WA if c < 10 else S_WB)))
        issued.append(c)

    stamp(p, 1)
    for _ in range(8):
        emit(q.pop(0))
    late_scalars(p)
    cur['c'] = None
    p('s_sub_u32 s5, s%d, 4' % sW)
    p('v_lshlrev_b32 v4, 5, v5')
    p('v_and_b32 v7, 1, v1')
    p('v_lshl_add_u32 v4, v7, 2, v4')
    p('v_add_u32 v4, s5, v4')
    p('v_mul_u32_u24 v4, 3840, v4')
    p('v_lshl_add_u32 v%d, v11, 4, v4' % VWB)
    for _ in range(8):
        emit(q.pop(0))
    pollA_offsets(p)
    for c in range(CF + 1):
        lim = c if c < CF else 19
        if c == CF:
            assert not q
        last = max(i for i, x in enumerate(issued) if x is not None and x <= lim)
        assert all(x[1] > lim for x in q)
        p('s_waitcnt vmcnt(%d)' % (len(issued) - 1 - last))
        if c % 2 == 0:
            stamp(p, 2 + c // 2)
        p('s_barrier')
        quota = 8 if c < 8 else CFG['quotaB']
        while q and quota > 0 and q[0][3] <= c:
            emit(q.pop(0))
            quota -= 1
        if c == 9:
            nonce_issue(p)
            issued.append(None)
        if c == CF - 1:
            poll_issue(p, VPD, VPOLL)
            issued.append(None)


def loader_tail(p):
    p('v_lshlrev_b32 v1, 4, v0')
    p('v_mov_b32 v24, 0x3f803f80')
    p('v_mov_b32 v25, 0x3f803f80')
    p('v_lshlrev_b32 v7, 3, v0')
    p('v_add_u32 v7, %d, v7' % ONES_OFF)
    p('ds_write_b64 v7, v[24:25]')
    p('v_lshrrev_b32 v7, 1, v0')
    p('v_lshlrev_b32 v7, 4, v7')
    p('v_and_b32 v19, 1, v0')
    p('v_lshl_add_u32 v19, v19, 2, v7')
    p('s_mul_i32 s60, s59, %d' % QKV_RB)
    p('s_lshl_b32 s4, s%d, 11' % sC0)
    p('s_add_u32 s60, s60, s4')
    p('s_lshl_b32 s5, s%d, 11' % sODD)
    p('s_add_u32 s61, s60, s5')
    p('s_cmp_eq_u32 s%d, 0' % sODD)
    p('s_cselect_b32 s6, 4096, 8')
    p('s_cselect_b32 s7, 4096, 0')
    p('s_add_u32 s62, s60, s6')
    p('s_lshl_b32 s3, s%d, 1' % sR)
    p('s_lshr_b32 s6, s58, 1')
    p('s_add_u32 s3, s3, s6')
    p('s_mul_i32 s3, s3, %d' % QKV_RB)
    p('s_and_b32 s6, s58, 1')
    p('s_lshl_b32 s6, s6, 10')
    p('s_add_u32 s3, s3, s6')
    p('s_add_u32 s3, s3, s4')
    p('s_add_u32 s63, s3, s5')
    p('s_add_u32 s96, s3, s7')
    p('s_lshl_b32 s97, s58, 11')
    p('s_lshl_b32 s98, s58, 10')
    p('s_waitcnt vmcnt(0)')
    nonce_check(p)
    stamp(p, 12)
    poll_check(p, VPD, lambda: poll_issue(p, VPD, VPOLL))
    stamp(p, 13)

    def dma(ldsb, ldsoff, gb, goff, vo=1, w='x4'):
        p('s_add_u32 m0, s%d, %d' % (ldsb, ldsoff))
        p('s_add_u32 s3, s%d, %d' % (gb, goff))
        p('buffer_load_dword%s v%d, %s, s3 offen sc1 lds' % (w, vo, WS))
    for j in range(2):
        dma(98, QA_OFF + j * 4096, 63, j * 2048)
    dma(98, QA_OFF + 8192, 96, 0)
    for j in range(2):
        for hf in range(2):
            dma(97, KA_OFF + j * 8192 + hf * 1024, 61, (80 + j) * 2048 + hf * 1024)
    for i in range(4):
        dma(98, KA_OFF + 16384 + i * 256, 62, 80 * 2048 + i * 512, vo=19, w='')
    for j in range(3):
        for hf in range(2):
            dma(97, VA_OFF + j * VA_STR + hf * 1024, 60, (160 + j) * 2048 + hf * 1024)
    stamp(p, 14)


def p1_gate(p):
    p('s_waitcnt lgkmcnt(0)')
    srd(p, S_X, 64, X_BYTES)
    late_scalars(p)
    p('s_and_b32 s3, s2, 7')
    p('s_lshr_b32 s4, s2, 3')
    p('s_lshl_b32 s5, s3, 1')
    p('s_add_u32 s5, s5, s4')
    p('s_sub_u32 s5, s5, 30')
    p('s_lshl_b32 s5, s5, 3')
    p('s_add_u32 s60, s5, s%d' % sW)
    p('s_mul_i32 s6, s60, %d' % (16 * 1280))
    p('v_and_b32 v1, 15, v0')
    p('v_lshrrev_b32 v4, 4, v0')
    p('v_lshlrev_b32 v4, 4, v4')
    p('v_mul_u32_u24 v5, 1280, v1')
    p('v_add_u32 v5, v5, v4')
    for st in range(20):
        p('buffer_load_dwordx4 %s, v5, %s, s6 offen offset:%d' % (v(32 + st * 4, 4), sr(S_X), st * 64))
        p('buffer_load_dwordx4 %s, v4, %s, 0 offen offset:%d' % (v(112 + st * 4, 4), sr(S_GW), st * 64))
    nonce_issue(p)
    stamp(p, 2)
    for st in range(20):
        p('s_waitcnt vmcnt(%d)' % (39 - 2 * st))
        p('v_mfma_f32_16x16x32_bf16 v[8:11], %s, %s, %s' % (v(112 + st * 4, 4), v(32 + st * 4, 4), '0' if st == 0 else 'v[8:11]'))
    p('s_waitcnt vmcnt(0)')
    nonce_check(p)
    p('s_mov_b32 s7, %s' % f32(-1.4426950408889634))
    p('v_mul_f32 v8, s7, v8')
    p('v_exp_f32 v8, v8')
    p('v_mov_b32 v9, 0')
    p('v_add_f32 v8, 1.0, v8')
    p('v_rcp_f32 v8, v8')
    p('v_mov_b32 v10, v%d' % VNON)
    p('v_mov_b32 v11, v%d' % (VNON + 1))
    p('s_lshl_b32 s6, s60, 8')
    p('s_add_u32 s6, s6, %d' % G_OFF)
    p('v_lshlrev_b32 v1, 4, v1')
    p('s_mov_b64 exec, 0xffff')
    p('buffer_store_dwordx4 v[8:11], v1, %s, s6 offen sc1' % WS)
    p('s_mov_b64 exec, -1')
    stamp(p, 3)
    if CFG['gwarm']:
        p('v_lshlrev_b32 v4, 7, v0')
        p('s_mul_i32 s6, s60, 6400')
        p('s_mov_b32 exec_hi, 0x3ffff')
        p('buffer_load_dword v15, v4, %s, s6 offen' % sr(S_WOA))
        p('buffer_load_dword v16, v4, %s, s6 offen' % sr(S_WOB))
        p('s_mov_b32 exec_hi, -1')
    p('s_waitcnt vmcnt(0)')
    stamp(p, 4)


VL16, VM, VHH = 1, 4, 5
AK1, AK2, AV, VSTR, AV8, VWO = 8, 9, 10, 11, 12, 13
BV = 14
VG = 20
Q1, Q2 = 24, 28
MSK, KF, VF, PP, O, S = 32, 40, 56, 72, 88, 104
WF3 = 156


def p2_setup(p):
    p('v_lshlrev_b32 v%d, 4, v0' % VL16)
    p('v_and_b32 v%d, 31, v0' % VM)
    p('v_lshrrev_b32 v%d, 5, v0' % VHH)
    p('s_lshl_b32 s3, s%d, 5' % sW)
    p('v_add_u32 v7, s3, v%d' % VM)
    p('v_lshlrev_b32 v15, 13, v%d' % VHH)
    p('v_lshl_add_u32 v15, v7, 4, v15')
    p('v_add_u32 v%d, %d, v15' % (AK1, KA_OFF))
    p('v_lshlrev_b32 v15, 3, v7')
    p('v_add_u32 v%d, %d, v15' % (AK2, KA_OFF + 16384))
    p('v_lshlrev_b32 v15, 12, v%d' % VHH)
    p('v_lshl_add_u32 v15, v7, 4, v15')
    p('v_add_u32 v16, %d, v15' % QA_OFF)
    p('s_lshl_b32 s4, s%d, 3' % sODD)
    p('s_add_u32 s4, s4, %d' % (QA_OFF + 8192))
    p('v_lshl_add_u32 v17, v7, 4, s4')
    p('v_mov_b32 v%d, 0' % Q2)
    p('v_mov_b32 v%d, 0' % (Q2 + 1))
    p('v_bfe_u32 v32, v0, 4, 1')
    p('v_and_b32 v33, 3, v0')
    p('v_lshl_add_u32 v32, v32, 2, v33')
    p('v_add_u32 v33, s%d, v32' % sODD)
    p('v_bfe_u32 v34, v0, 2, 2')
    p('v_lshl_add_u32 v34, v%d, 2, v34' % VHH)
    p('v_lshlrev_b32 v34, 4, v34')
    p('v_and_b32 v35, 1, v33')
    p('v_lshl_add_u32 v35, v35, 3, v34')
    p('s_lshl_b32 s3, s%d, 9' % sW)
    p('v_add_u32 v35, s3, v35')
    p('v_lshrrev_b32 v33, 1, v33')
    p('v_cmp_lt_u32 vcc, 4, v32')
    p('v_mul_u32_u24 v36, %d, v33' % VA_STR)
    p('v_add_u32 v36, v36, v35')
    p('v_add_u32 v36, %d, v36' % VA_OFF)
    p('v_add_u32 v37, %d, v34' % ONES_OFF)
    p('v_cndmask_b32 v%d, v36, v37, vcc' % AV)
    p('v_mov_b32 v36, 0x200')
    p('v_cndmask_b32_e64 v%d, v36, 0, vcc' % VSTR)
    p('v_lshl_add_u32 v%d, v%d, 3, v%d' % (AV8, VSTR, AV))
    p('v_mul_u32_u24 v36, %d, v33' % VB_STR)
    p('v_add_u32 v36, v36, v35')
    p('v_add_u32 v36, %d, v36' % (VB_OFF + 512))
    p('v_cndmask_b32 v%d, v36, v37, vcc' % BV)
    p('v_mul_u32_u24 v36, 205, v0')
    p('v_lshrrev_b32 v36, 11, v36')
    p('v_mul_u32_u24 v37, %d, v36' % (1280 - 160))
    p('v_lshl_add_u32 v%d, v0, 4, v37' % VWO)


def wo_dma(p, S_, i):
    row = 6 * i if i < 13 else 74
    p('s_add_u32 m0, s97, %d' % (row * 160))
    p('s_add_u32 s3, s96, %d' % (row * 1280))
    if i == 13:
        p('s_mov_b32 exec_hi, 0xfffffff')
    p('buffer_load_dwordx4 v%d, %s, s3 offen lds' % (VWO, sr(S_)))
    if i == 13:
        p('s_mov_b32 exec_hi, -1')


def kread(t, st):
    return ['ds_read_b128 %s, v%d offset:%d' % (v(KF + st * 8, 4), AK1, t * 512),
            'ds_read_b64 %s, v%d offset:%d' % (v(KF + st * 8 + 4, 2), AK2, t * 256)]


def smf(dst, st, bias=False):
    d = v(dst, 16)
    return ['v_mfma_f32_32x32x16_bf16 %s, %s, %s, %s' % (d, v(KF + st * 8, 4), v(Q1, 4), d if bias else '0'),
            'v_mfma_f32_32x32x8_bf16 %s, %s, %s, %s' % (d, v(KF + st * 8 + 4, 2), v(Q2, 2), d)]


def vread(av, st):
    return ['ds_read_b64_tr_b16 %s, v%d offset:%d' % (v(VF + st * 8 + m2 * 4 + j * 2, 2), av, m2 * 256 + j * 128) for m2 in range(2) for j in range(2)]


def pvm(st, pp, first=False):
    return ['v_mfma_f32_32x32x16_bf16 %s, %s, %s, %s' % (v(O, 16), v(VF + st * 8 + m2 * 4, 4), v(pp + m2 * 4, 4), '0' if (first and m2 == 0) else v(O, 16)) for m2 in range(2)]


def exps(t):
    return ['v_exp_f32 v%d, v%d' % (t + r, t + r) for r in range(16)]


def cvts(t, dst):
    return ['v_cvt_pk_bf16_f32 v%d, v%d, v%d' % (dst + i, t + 2 * i, t + 2 * i + 1) for i in range(8)]


def emit_all(p, L):
    for x in L:
        if callable(x):
            x()
        else:
            p(x)


def finish(p, br):
    p('v_rcp_f32 v7, v%d' % (O + 12))
    if br == 1:
        p('v_sub_f32 v%d, 1.0, v%d' % (VG, VG))
    p('s_lshl_b32 s3, s%d, 5' % sRB32)
    p('s_add_u32 s3, s3, s%d' % sH)
    p('v_mul_f32 v7, v7, v%d' % VG)
    p('s_lshl_b32 s4, s3, 7')
    p('s_add_u32 s%d, s4, %d' % (sFL, F2_OFF + br * F2_BR))
    p('s_mul_i32 s3, s3, 1280')
    p('s_add_u32 s3, s3, %d' % (O_OFF + br * O_BR))
    for r in range(8):
        p('v_mul_f32 v%d, v7, v%d' % (O + r, O + r))
    for i in range(4):
        p('v_cvt_pk_bf16_f32 v%d, v%d, v%d' % (PP + i, O + 2 * i, O + 2 * i + 1))
    p('buffer_store_dwordx4 %s, v%d, %s, s3 offen sc1' % (v(PP, 4), VL16, WS))
    for r in range(8, 12):
        p('v_mul_f32 v%d, v7, v%d' % (O + r, O + r))
    p('v_lshlrev_b32 v7, 3, v0')
    for i in range(4, 6):
        p('v_cvt_pk_bf16_f32 v%d, v%d, v%d' % (PP + i, O + 2 * i, O + 2 * i + 1))
    p('s_mov_b32 exec_hi, 0')
    p('buffer_store_dwordx2 %s, v7, %s, s3 offen offset:1024 sc1' % (v(PP + 4, 2), WS))
    p('s_mov_b32 exec_hi, -1')


def half_max(p, M):
    p('v_mov_b32 v%d, v%d' % (M + 1, M))
    p('v_permlane32_swap_b32 v%d, v%d' % (M, M + 1))
    p('v_max_f32 v%d, v%d, v%d' % (M, M, M + 1))
    p('v_mov_b32 v%d, v%d' % (M + 1, M))


def subm(t, M):
    return ['v_pk_add_f32 %s, %s, %s neg_lo:[0,1] neg_hi:[0,1]' % (v(t + 2 * i, 2), v(t + 2 * i, 2), v(M, 2)) for i in range(8)]


def safe_path(p, back):
    S0, S1 = S, S + 16
    M = 16
    p('v_mov_b32 v7, %s' % NEG_INF)
    p('v_lshlrev_b32 v15, 3, v%d' % VSTR)
    p('v_sub_u32 v%d, v%d, v15' % (AV, AV8))

    def merged():
        emit_all(p, kread(0, 0) + kread(8, 1) + ['s_waitcnt lgkmcnt(0)'] + smf(S0, 0) + smf(S1, 1))
        k = p.newlabel('hasold')
        p('s_cmp_lg_u32 s%d, 0' % sR)
        p('s_cbranch_scc1 %s' % k)
        for r in range(16):
            p('v_mov_b32 v%d, v7' % (S0 + r))
        p.label(k)
        for r in range(16):
            p('v_cndmask_b32 v%d, v%d, v%d, %s' % (S1 + r, S0 + r, S1 + r, mask(r)))
    merged()
    p('v_max_f32 v%d, v%d, v%d' % (M, S1, S1 + 1))
    for r in range(2, 16, 2):
        p('v_max3_f32 v%d, v%d, v%d, v%d' % (M, M, S1 + r, S1 + r + 1))
    for t in range(1, 8):
        k = p.newlabel('skip')
        p('s_cmp_gt_u32 s98, %d' % t)
        p('s_cbranch_scc1 %s' % k)
        emit_all(p, kread(t, 0) + ['s_waitcnt lgkmcnt(0)'] + smf(S0, 0))
        for r in range(0, 16, 2):
            p('v_max3_f32 v%d, v%d, v%d, v%d' % (M, M, S0 + r, S0 + r + 1))
        p.label(k)
    half_max(p, M)
    emit_all(p, vread(AV8, 0) + vread(AV, 1) + subm(S1, M) + exps(S1) + cvts(S1, PP + 8))
    for i in range(8):
        p('v_and_b32 v%d, v%d, v%d' % (PP + i, PP + 8 + i, MSK + i))
    for i in range(8):
        p('v_xor_b32 v%d, v%d, v%d' % (PP + 8 + i, PP + 8 + i, PP + i))
    emit_all(p, ['s_waitcnt lgkmcnt(0)'] + pvm(0, PP, True) + pvm(1, PP + 8))
    for t in range(1, 8):
        k = p.newlabel('skip')
        p('v_add_u32 v%d, v%d, v%d' % (AV, AV, VSTR))
        p('s_cmp_gt_u32 s98, %d' % t)
        p('s_cbranch_scc1 %s' % k)
        emit_all(p, kread(t, 0) + vread(AV, 0) + ['s_waitcnt lgkmcnt(0)'] + smf(S0, 0) + subm(S0, M) + exps(S0) + cvts(S0, PP) + pvm(0, PP))
        p.label(k)
    p('s_branch %s' % back)


def phase2(p, safe, back):
    S0, S1, S2 = S, S + 16, S + 32
    p('s_barrier')
    stamp(p, 21)
    p('ds_read_b128 %s, v16' % v(Q1, 4))
    p('s_mov_b32 exec_hi, 0')
    p('ds_read_b64 %s, v17' % v(Q2, 2))
    p('s_mov_b32 exec_hi, -1')
    emit_all(p, kread(0, 0) + kread(8, 1))
    p('s_mul_i32 s96, s%d, %d' % (sW, 80 * 1280))
    p('s_mul_i32 s3, s%d, 160' % sN)
    p('s_add_u32 s96, s96, s3')
    p('s_mul_i32 s97, s%d, 12800' % sW)
    p('s_sub_u32 s98, 8, s%d' % sW)
    p('s_cmp_eq_u32 s%d, 0' % sR)
    p('s_cselect_b32 s98, s98, 0')
    p('v_mov_b32 v7, 0xffff')
    for i in range(8):
        p('v_cndmask_b32 v%d, 0, v7, %s' % (MSK + i, mask(2 * i)))
    p('s_waitcnt lgkmcnt(2)')
    a = smf(S0, 0)
    p(a[0])
    for i in range(4):
        p('v_cndmask_b32 v%d, v%d, -1, %s' % (MSK + i, MSK + i, mask(2 * i + 1)))
    p(a[1])
    emit_all(p, kread(1, 0))
    for i in range(4, 8):
        p('v_cndmask_b32 v%d, v%d, -1, %s' % (MSK + i, MSK + i, mask(2 * i + 1)))
    p('s_waitcnt lgkmcnt(2)')
    emit_all(p, smf(S1, 1) + kread(2, 1) + vread(AV8, 0) + vread(AV, 1))
    p('s_waitcnt lgkmcnt(10)')
    emit_all(p, smf(S2, 0))
    nvm = [0]
    dq = list(range(14))

    def dma():
        if dq:
            wo_dma(p, S_WOA, dq.pop(0))
            nvm[0] += 1
    p('v_and_b32 v20, 1, v0')
    p('s_sub_u32 s3, s%d, 1' % sRB32)
    p('v_add_u32 v21, s3, v20')
    p('v_max_i32 v21, 0, v21')
    p('s_min_u32 s3, s%d, 4' % sW)
    p('s_lshl_b32 s4, s%d, 2' % sR)
    p('s_add_u32 s3, s3, s4')
    p('s_sub_u32 s3, s3, 1')
    p('s_max_i32 s99, s3, 0')
    p('s_lshl_b32 s3, s99, 1')
    p('v_add_u32 v22, s3, v20')
    p('v_lshrrev_b32 v23, 2, v0')
    p('v_min_u32 v23, 2, v23')
    p('v_cmp_eq_u32 vcc, 2, v23')
    p('v_mul_u32_u24 v19, 10, v23')
    p('v_and_b32 v20, 2, v0')
    p('v_cndmask_b32 v21, v21, v22, vcc')
    p('v_cmp_eq_u32 vcc, 0, v23')
    p('v_mov_b32 v22, s%d' % sRB32)
    p('v_add_u32 v20, s%d, v20' % sC0)
    p('v_cndmask_b32 v21, v21, v22, vcc')
    p('v_lshrrev_b32 v20, 3, v20')
    p('v_add_u32 v20, v20, v19')
    p('v_lshl_add_u32 v20, v21, 5, v20')
    p('v_lshlrev_b32 v20, 7, v20')
    p('v_add_u32 v%d, %d, v20' % (VPOLL, F1B_OFF))
    dma()
    for r in range(16):
        p('v_cndmask_b32 v%d, v%d, v%d, %s' % (S1 + r, S0 + r, S1 + r, mask(r)))
    dma()
    emit_all(p, exps(S1) + cvts(S1, PP + 8))
    for i in range(8):
        p('v_and_b32 v%d, v%d, v%d' % (PP + i, PP + 8 + i, MSK + i))
    for i in range(8):
        p('v_xor_b32 v%d, v%d, v%d' % (PP + 8 + i, PP + 8 + i, PP + i))
    k = p.newlabel('hasold')
    p('s_cmp_lg_u32 s%d, 0' % sR)
    p('s_cbranch_scc1 %s' % k)
    for i in range(8):
        p('v_mov_b32 v%d, 0' % (PP + 8 + i))
    p.label(k)
    stamp(p, 22)
    sb = lambda t: S + 16 * ((t + 1) % 3)
    for t in range(1, 8):
        cur = sb(t)
        e, c = exps(cur), cvts(cur, PP + 8 * (t & 1))
        sn = smf(sb(t + 1), t & 1) if t < 7 else []
        kr = kread(t + 2, (t + 1) & 1) if t < 6 else []
        adv = ['v_add_u32 v%d, v%d, v%d' % (AV, AV, VSTR)]
        vr = vread(AV, t & 1)
        p('s_waitcnt lgkmcnt(0)')
        if t == 1:
            po, pd = pvm(1, PP + 8, True), pvm(0, PP)
            L = ([po[0]] + adv + kr + e[0:3] + [po[1]] + vr + e[3:6] + [sn[0]] + e[6:9] + [sn[1], dma] + e[9:12] + [pd[0]] + e[12:16]
                 + [pd[1], dma] + c)
        else:
            pv = pvm((t - 1) & 1, PP + 8 * ((t - 1) & 1))
            if t < 7:
                L = ([sn[0]] + adv + kr + vr + e[0:4] + [sn[1], dma] + e[4:8] + c[0:2] + [pv[0]] + e[8:12] + c[2:4] + [pv[1], dma] + e[12:16] + c[4:8])
            else:
                L = [pv[0]] + adv + vr + e[0:4] + [pv[1]] + e[4:16] + c
        emit_all(p, L)
        k = p.newlabel('valid')
        p('s_cmp_le_u32 s98, %d' % t)
        p('s_cbranch_scc1 %s' % k)
        for i in range(8):
            p('v_mov_b32 v%d, 0' % (PP + 8 * (t & 1) + i))
        p.label(k)
        if t == CFG['flagblk']:
            p('s_waitcnt vmcnt(%d)' % nvm[0])
            flag_store(p, sFL)
            nvm[0] += 1
            stamp(p, 23)
        if t == 6:
            assert not dq
            p('s_lshl_b32 s3, s%d, 9' % sRB32)
            p('s_add_u32 s58, s3, %d' % G_OFF)
            p('v_lshlrev_b32 v19, 4, v%d' % VM)
            p('buffer_load_dwordx4 %s, v19, %s, s58 offen sc1' % (v(VG, 4), WS))
            poll_issue(p, VPD, VPOLL)
    p('s_waitcnt lgkmcnt(0)')
    emit_all(p, pvm(1, PP + 8))
    p('s_lshr_b32 s3, s%d, 2' % sRB32)
    p('s_mul_i32 s3, s3, %d' % QKV_RB)
    p('s_and_b32 s4, s%d, 3' % sRB32)
    p('s_lshl_b32 s4, s4, 9')
    p('s_add_u32 s3, s3, s4')
    p('s_lshl_b32 s5, s%d, 11' % sC0)
    p('s_add_u32 s5, s5, %d' % QKV_BR)
    p('s_add_u32 s59, s3, s5')
    p('s_add_u32 s60, s59, %d' % (80 * 2048))
    p('s_sub_u32 s3, s%d, 1' % sRB32)
    p('s_max_i32 s4, s3, 0')
    p('s_lshr_b32 s3, s4, 2')
    p('s_mul_i32 s3, s3, %d' % QKV_RB)
    p('s_and_b32 s4, s4, 3')
    p('s_lshl_b32 s4, s4, 9')
    p('s_add_u32 s3, s3, s4')
    p('s_add_u32 s3, s3, s5')
    p('s_add_u32 s61, s3, %d' % (80 * 2048))
    p('s_lshr_b32 s3, s99, 1')
    p('s_mul_i32 s3, s3, %d' % QKV_RB)
    p('s_and_b32 s4, s99, 1')
    p('s_lshl_b32 s4, s4, 10')
    p('s_add_u32 s3, s3, s4')
    p('s_add_u32 s62, s3, s5')
    p('s_min_u32 s63, s%d, 4' % sW)
    p('s_lshl_b32 s63, s63, 10')
    p('v_pk_add_f32 v[16:17], %s, %s' % (v(O, 2), v(O + 2, 2)))
    for r in range(4, 12, 2):
        p('v_pk_add_f32 v[16:17], v[16:17], %s' % v(O + r, 2))
    p('v_add_f32 v7, v16, v17')
    p('s_mov_b32 s3, 0x7f800000')
    p('v_cmp_gt_f32 s[4:5], s3, abs(v7)')
    p('s_mov_b32 s3, %s' % f32(2.0 ** 60))
    p('v_cmp_gt_f32 s[6:7], s3, v%d' % (O + 12))
    p('v_cmp_lt_f32 vcc, %s, v%d' % (f32(2.0 ** -60), O + 12))
    p('s_and_b64 s[4:5], s[4:5], s[6:7]')
    p('s_and_b64 s[4:5], s[4:5], vcc')
    p('s_cmp_eq_u64 s[4:5], -1')
    if CFG['force_safe']:
        p('s_branch %s' % safe)
    else:
        p('s_cbranch_scc0 %s' % safe)
    p.label(back)
    stamp(p, 24)
    p('v_add_u32 v16, s%d, v%d' % (sODD, VHH))
    p('v_lshlrev_b32 v16, 11, v16')
    p('v_add_u32 v16, v16, v19')
    p('s_cmp_eq_u32 s%d, 0' % sODD)
    p('s_cselect_b32 s4, 4096, 8')
    p('v_add_u32 v17, s4, v19')
    p('s_waitcnt vmcnt(0)')
    poll_check(p, VPD, lambda: poll_issue(p, VPD, VPOLL))
    stamp(p, 25)
    p('buffer_load_dwordx4 %s, v16, %s, s59 offen sc1' % (v(Q1, 4), WS))
    p('s_mov_b32 exec_hi, 0')
    p('buffer_load_dwordx2 %s, v17, %s, s59 offen sc1' % (v(Q2, 2), WS))
    p('s_mov_b32 exec_hi, -1')
    for st, so in ((0, 61), (1, 60)):
        p('buffer_load_dwordx4 %s, v16, %s, s%d offen sc1' % (v(KF + st * 8, 4), WS, so))
        p('buffer_load_dwordx2 %s, v17, %s, s%d offen sc1' % (v(KF + st * 8 + 4, 2), WS, so))
    poll_check(p, VG + 2, lambda: p('buffer_load_dwordx4 %s, v19, %s, s58 offen sc1' % (v(VG, 4), WS)))
    finish(p, 0)
    stamp(p, 26)
    p('s_barrier')
    stamp(p, 27)
    for j in range(3):
        p('s_add_u32 m0, s63, %d' % (VB_OFF + j * VB_STR))
        p('s_add_u32 s3, s62, %d' % ((160 + j) * 2048))
        p('buffer_load_dwordx4 v%d, %s, s3 offen sc1 lds' % (VL16, WS))
    p3_waddr(p)
    bias = ['v_lshlrev_b32 v7, 2, v%d' % VHH, 'v_sub_u32 v7, v%d, v7' % VM, 'v_mov_b32 v15, %s' % NEG_INF,
            's_cmp_eq_u32 s%d, 0' % sRB32, 's_cselect_b32 s3, %s, 0' % NEG_INF, 'v_mov_b32 v16, s3']
    for r in range(16):
        kl = 8 * (r // 4) + r % 4
        bias += ['v_subrev_u32 v17, %d, v7' % kl, 'v_and_b32 v17, 17, v17', 'v_cmp_eq_u32 vcc, 0, v17',
                 'v_cndmask_b32 v%d, v16, v15, %s' % (S0 + r, mask(r)), 'v_cndmask_b32 v%d, v15, 0, %s' % (S1 + r, mask(r)),
                 'v_cndmask_b32 v%d, v15, v%d, vcc' % (S0 + r, S0 + r), 'v_cndmask_b32 v%d, v15, v%d, vcc' % (S1 + r, S1 + r)]
    w_reads(p, bias)
    stamp(p, 28)
    p('s_waitcnt vmcnt(3)')
    flag_store(p, sFL)
    p('s_waitcnt vmcnt(1)')
    stamp(p, 29)
    p('s_barrier')
    stamp(p, 30)
    dq[:] = list(range(14))

    def dmb():
        wo_dma(p, S_WOB, dq.pop(0))
    M = 16
    a, b = smf(S0, 0, True), smf(S1, 1, True)
    p('v_add_u32 v%d, v%d, v%d' % (AV8, BV, VSTR))
    emit_all(p, [a[0]] + vread(BV, 1) + [a[1]] + vread(AV8, 0) + [b[0], dmb, b[1], dmb, dmb, dmb])
    for r in range(16):
        p('v_max_f32 v%d, v%d, v%d' % (S1 + r, S1 + r, S0 + r))
    p('v_max_f32 v%d, v%d, v%d' % (M, S1, S1 + 1))
    for r in range(2, 16, 2):
        p('v_max3_f32 v%d, v%d, v%d, v%d' % (M, M, S1 + r, S1 + r + 1))
    half_max(p, M)
    emit_all(p, subm(S1, M) + exps(S1) + cvts(S1, PP + 8))
    for i in range(8):
        p('v_and_b32 v%d, v%d, v%d' % (PP + i, PP + 8 + i, MSK + i))
    p('s_waitcnt lgkmcnt(0)')
    pd = pvm(0, PP, True)
    p(pd[0])
    for i in range(8):
        p('v_xor_b32 v%d, v%d, v%d' % (PP + 8 + i, PP + 8 + i, PP + i))
    emit_all(p, [pd[1]] + pvm(1, PP + 8))
    p3_oaddr(p)
    poll_issue(p, VPD, VPOLL)
    finish(p, 1)
    stamp(p, 31)
    return dq, dmb


AW1, AW2, VO1, VO2 = 8, 9, 10, 11
OF = [32, 72]
ACC3 = 112


def p3_waddr(p):
    p('s_lshr_b32 s4, s%d, 1' % sW)
    p('s_mul_i32 s4, s4, 160')
    p('v_bfe_u32 v7, v0, 2, 3')
    p('v_mul_u32_u24 v15, 20, v%d' % VHH)
    p('v_add3_u32 v15, v15, v7, s4')
    p('v_mul_u32_u24 v15, 160, v15')
    p('v_and_b32 v16, 3, v0')
    p('v_lshl_add_u32 v%d, v16, 3, v15' % AW1)
    p('v_lshrrev_b32 v15, 4, v0')
    p('v_mul_u32_u24 v15, 20, v15')
    p('v_and_b32 v7, 3, v7')
    p('s_add_u32 s4, s4, 16')
    p('v_add3_u32 v15, v15, v7, s4')
    p('v_mul_u32_u24 v15, 160, v15')
    p('v_lshl_add_u32 v%d, v16, 3, v15' % AW2)


def w_reads(p, filler=()):
    filler = list(filler)
    per = (len(filler) + 49) // 50
    n = 0
    for st in range(5):
        for u in range(5):
            for j in range(2):
                d = v(WF3 + (st * 5 + u) * 4 + j * 2, 2)
                if st < 4:
                    p('ds_read_b64_tr_b16 %s, v%d offset:%d' % (d, AW1, st * 6400 + j * 1280 + u * 32))
                else:
                    p('ds_read_b64_tr_b16 %s, v%d offset:%d' % (d, AW2, j * 12800 + u * 32))
                n += 1
                if n % 10 == 0:
                    p('s_waitcnt lgkmcnt(5)')
                for _ in range(per):
                    if filler:
                        p(filler.pop(0))
    p('s_waitcnt lgkmcnt(0)')


def p3_oaddr(p):
    p('v_and_b32 v15, 15, v0')
    p('v_mul_u32_u24 v16, 1280, v%d' % VHH)
    p('v_bfe_u32 v17, v0, 4, 1')
    p('v_lshl_add_u32 v16, v17, 9, v16')
    p('v_lshl_add_u32 v%d, v15, 4, v16' % VO1)
    p('v_lshrrev_b32 v16, 4, v0')
    p('v_mul_u32_u24 v16, 1280, v16')
    p('v_lshl_add_u32 v%d, v15, 3, v16' % VO2)
    p('s_and_b32 s58, s%d, 1' % sW)
    p('s_lshr_b32 s59, s%d, 1' % sW)
    p('s_lshl_b32 s3, s%d, 1' % sM)
    p('s_add_u32 s3, s3, s58')
    p('s_lshl_b32 s3, s3, 2')
    p('s_add_u32 s3, s3, s59')
    p('s_mul_i32 s60, s3, %d' % (8 * 1280))
    p('s_lshl_b32 s3, s3, 10')
    p('s_add_u32 s3, s3, %d' % F2_OFF)
    p('v_and_b32 v16, 7, v0')
    p('v_lshl_add_u32 v%d, v16, 7, s3' % VPOLL)


def phase3(p, dq, dmb):
    def o_loads(br):
        p('s_add_u32 s61, s60, %d' % (O_OFF + br * O_BR))
        p('s_add_u32 s62, s61, 5120')
        for st in range(4):
            for t in range(2):
                p('buffer_load_dwordx4 %s, v%d, %s, s%d offen offset:%d sc1' % (v(OF[br] + (st * 2 + t) * 4, 4), VO1, WS, 61 + st // 2, (st % 2) * 2560 + t * 256))
        for t in range(2):
            for j in range(2):
                p('buffer_load_dwordx2 %s, v%d, %s, s%d offen offset:%d sc1' % (v(OF[br] + (8 + t) * 4 + j * 2, 2), VO2, WS, 61 + j, 1024 + t * 128))

    def mm(br, later, fill=()):
        fill = list(fill)
        for st in range(5):
            for t in range(2):
                done = (st * 2 + t + 1) if st < 4 else (8 + 2 * (t + 1))
                p('s_waitcnt vmcnt(%d)' % (12 - done + later))
                for u in range(5):
                    acc = v(ACC3 + (t * 5 + u) * 4, 4)
                    p('v_mfma_f32_16x16x32_bf16 %s, %s, %s, %s' % (acc, v(WF3 + (st * 5 + u) * 4, 4), v(OF[br] + (st * 2 + t) * 4, 4), '0' if (br == 0 and st == 0) else acc))

    n1 = 5
    for _ in range(n1):
        dmb()
    p('s_waitcnt vmcnt(%d)' % n1)
    flag_store(p, sFL)
    stamp(p, 32)
    poll_check(p, VPD, lambda: poll_issue(p, VPD, VPOLL))
    stamp(p, 33)
    o_loads(0)
    n2 = len(dq)
    while dq:
        dmb()
    p('s_mov_b32 s63, %d' % F2_BR)
    poll_issue(p, VPD, VPOLL, 's63')
    stamp(p, 34)
    mm(0, n2 + 1)
    stamp(p, 35)
    p('s_waitcnt vmcnt(0)')
    p('s_barrier')
    stamp(p, 36)
    poll_check(p, VPD, lambda: poll_issue(p, VPD, VPOLL, 's63'))
    stamp(p, 37)
    o_loads(1)
    w_reads(p)
    p('s_barrier')
    stamp(p, 38)
    RS = 336
    p('s_mul_i32 s3, s59, %d' % (64 * RS))
    p('s_mul_i32 s6, s58, %d' % (32 * RS))
    p('s_add_u32 s3, s3, s6')
    p('v_and_b32 v15, 15, v0')
    p('v_mul_u32_u24 v14, %d, v15' % RS)
    p('v_lshrrev_b32 v15, 4, v0')
    p('v_lshl_add_u32 v14, v15, 4, v14')
    p('v_add_u32 v14, s3, v14')
    mm(1, 0)
    stamp(p, 39)
    for t in range(2):
        for u in range(5):
            p('ds_write_b128 v14, %s offset:%d' % (v(ACC3 + (t * 5 + u) * 4, 4), t * 16 * RS + u * 64))
    p('s_mul_i32 s6, s%d, %d' % (sM, 64 * 1280))
    p('s_mul_i32 s7, s%d, 160' % sN)
    p('s_add_u32 s6, s6, s7')
    for rnd in range(2):
        p('s_lshl_b32 s3, s%d, 6' % sW)
        p('s_add_u32 s3, s3, %d' % (rnd * 512))
        p('v_add_u32 v7, s3, v0')
        p('v_mul_u32_u24 v15, 6554, v7')
        p('v_lshrrev_b32 v15, 16, v15')
        p('v_mul_u32_u24 v16, %d, v15' % (RS - 320))
        p('v_lshl_add_u32 v%d, v7, 5, v16' % (8 + rnd))
        p('v_mul_u32_u24 v16, %d, v15' % (1280 - 160))
        p('v_lshl_add_u32 v%d, v7, 4, v16' % (10 + rnd))
    p('s_waitcnt lgkmcnt(0)')
    p('s_barrier')
    stamp(p, 40)
    fin = p.newlabel('fin')
    for rnd in range(2):
        if rnd == 1:
            p('s_cmp_ge_u32 s%d, 2' % sW)
            p('s_cbranch_scc1 %s' % fin)
        B = 32 + rnd * 32
        for kq in range(4):
            for hf in range(2):
                p('ds_read_b128 %s, v%d offset:%d' % (v(B + kq * 8 + hf * 4, 4), 8 + rnd, kq * 64 * RS + hf * 16))
        p('s_waitcnt lgkmcnt(0)')
        for i in range(4):
            p('v_pk_add_f32 %s, %s, %s' % (v(B + 2 * i, 2), v(B + 2 * i, 2), v(B + 8 + 2 * i, 2)))
            p('v_pk_add_f32 %s, %s, %s' % (v(B + 16 + 2 * i, 2), v(B + 16 + 2 * i, 2), v(B + 24 + 2 * i, 2)))
        for i in range(4):
            p('v_pk_add_f32 %s, %s, %s' % (v(B + 2 * i, 2), v(B + 2 * i, 2), v(B + 16 + 2 * i, 2)))
        for i in range(4):
            p('v_cvt_pk_bf16_f32 v%d, v%d, v%d' % (24 + rnd * 4 + i, B + 2 * i, B + 1 + 2 * i))
        p('buffer_store_dwordx4 %s, v%d, %s, s6 offen' % (v(24 + rnd * 4, 4), 10 + rnd, sr(S_OUT)))
    p.label(fin)
    stamp(p, 41)
    if CFG['stamp']:
        p('s_waitcnt vmcnt(0)')
    stamp_out(p)


def kernel(p):
    end, gate, loader, ltail, p2, safe, back = [p.newlabel(x) for x in ('end', 'gate', 'loader', 'ltail', 'p2', 'safe', 'back')]
    ctail = p.newlabel('ctail')
    prologue(p, end)
    p('s_cmp_ge_u32 s4, 30')
    p('s_cbranch_scc1 %s' % gate)
    p('s_cmp_lt_u32 s%d, 4' % sW)
    comp = p.newlabel('comp')
    p('s_cbranch_scc1 %s' % comp)
    p1_loader(p)
    p.label(ltail)
    loader_tail(p)
    p2_setup(p)
    p('s_waitcnt vmcnt(0) lgkmcnt(0)')
    stamp(p, 20)
    p('s_branch %s' % p2)
    p.label(gate)
    p1_gate(p)
    p('s_cmp_lt_u32 s%d, 4' % sW)
    p('s_cbranch_scc1 %s' % ctail)
    pollA_offsets(p)
    poll_issue(p, VPD, VPOLL)
    p('s_branch %s' % ltail)
    p.label(comp)
    p1_compute(p)
    p.label(ctail)
    p2_setup(p)
    stamp(p, 20)
    p.label(p2)
    dq, dmb = phase2(p, safe, back)
    phase3(p, dq, dmb)
    p.label(end)
    p('s_endpgm')
    p.label(safe)
    safe_path(p, back)


HEADER = open('cdna_kernels/%s.s.ref' % NAME).read().split('; Override launch')[0]


def build(extra=None, **cfg):
    CFG.update(cfg)
    n = NAME + '_kernel'
    out = HEADER
    if extra:
        out += '; @launch kernel=%s grid=(256,1,1) block=(512,1,1) lds=%d\n' % (n, LDS_BYTES)
        out += '; @launch kernel=diag_kernel grid=(1,1,1) block=(64,1,1) lds=0\n'
    else:
        out += '; @launch grid=(256,1,1) block=(512,1,1) lds=%d\n' % LDS_BYTES
    out += '.amdgcn_target "amdgcn-amd-amdhsa--gfx950"\n.text\n'
    ks = [(n, kernel)] + ([('diag_kernel', extra)] if extra else [])
    desc = ''
    uid = 0
    for kn, f in ks:
        p = Prog()
        p.uid = uid
        p.label(kn)
        f(p)
        uid = p.uid
        nn = p.fix_hazards()
        ne = p.check_waits([kn])
        mx = p.max_regs()
        print(kn[-12:], 'instrs', len(p.ins), 'nops', nn, 'wait errors', ne, 'max regs', mx, file=sys.stderr)
        assert ne == 0
        out += '.globl %s\n.p2align 8\n.type %s,@function\n' % (kn, kn) + p.text()
        desc += '.p2align 6\n' + kernel_desc(kn, max(mx['v'] + 1, 8), 102)
    out += '.section .rodata,"a"\n' + desc
    return out


if __name__ == '__main__':
    cfg = {}
    args = []
    for a_ in sys.argv[1:]:
        if '=' in a_:
            k, val = a_.split('=')
            cfg[k] = eval(val)
        else:
            args.append(a_)
    path = args[0] if args else 'cdna_kernels/%s.s' % NAME
    open(path, 'w').write(build(**cfg))
```

```python
import sys, struct
sys.path.insert(0, 'gen')
from asm import *

NAME = 'gated_mix__sliding_block__sliding_local_dilated__prompt'

QKV_RB = 240 * 2048
QKV_BR = 16 * QKV_RB
O_OFF = 2 * QKV_BR
O_BR = 64 * 32 * 1280
G_OFF = O_OFF + 2 * O_BR
F1A_OFF = G_OFF + 32768
F1B_OFF = F1A_OFF + 64 * 16 * 128
F2_OFF = F1B_OFF + 64 * 16 * 128
F2_BR = 64 * 32 * 128
FW_OFF = F2_OFF + 2 * F2_BR
DUMMY_OFF = FW_OFF + 128 * 128
WP_OFF = DUMMY_OFF + 2048 * 128
WS_END = WP_OFF + 64 * 25600
ST_OFF = 28 << 20
WS_BYTES = 32 << 20
assert WS_END <= ST_OFF

X_BYTES = 2048 * 1280
WQ_BYTES = 640 * 3840
WO_BYTES = 640 * 1280
OUT_BYTES = 2048 * 1280

WSLOT = 8 * 2080
NWS = 6
XR_OFF = NWS * WSLOT
KA_OFF = XR_OFF
VA_OFF = KA_OFF + 20480
VA_STR = 8192 + 64
ONES_OFF = VA_OFF + 3 * VA_STR
ONES_LEN = 4608
QA_OFF = 149760
GW_OFF = QA_OFF + 12288
VB_WAVE = 3328
VB_STR = 1024 + 64
LDS_BYTES = 163840
assert ONES_OFF + ONES_LEN <= QA_OFF and GW_OFF + 1280 <= LDS_BYTES and VA_OFF % 256 == 0 and XR_OFF % 256 == 0
assert XR_OFF + 3 * 16384 <= GW_OFF

S_WS, S_OUT = 8, 12
sW, sFL, sH, sR, sC0, sODD, sRB32, sRB, sCB, sROT = 16, 17, 18, 19, 20, 21, 22, 23, 24, 25
sM, sN = sH, sR
T0 = 26
S_DBG = 32
sMASK = 36
sVB = 68
S_X, S_WA, S_WB, S_GW = 68, 72, 76, 80
KA_ = 36
WS = 's[%d:%d]' % (S_WS, S_WS + 3)

VNON = 2
VSTAMP = 6

CFG = dict(stamp=False, D=5, CF=17, rot=(4, 1, 0, 0), cpf=0, orot=True, poll2=True, oup=12, flagblk=3, force_safe=False,
           force_late=False, wbwarm=0, tlb=False, prio=True, y1=3,
           quota={8: 6, 9: 6, 10: 6, 11: 2, 12: 2}, stA={11: 4, 12: 4}, flA=15, b1rate=2, nwb0=0, nwb1=0, nwb2=8, light=False)
SPIN = 1 << 15


def f32(x):
    return '0x%08x' % struct.unpack('<I', struct.pack('<f', x))[0]


QSCALE = (20 ** -0.5) * 1.4426950408889634
NEG_INF = '0xff800000'


def srd(p, d, ptr, nbytes):
    p('s_mov_b32 s%d, s%d' % (d, ptr))
    p('s_and_b32 s%d, s%d, 0xffff' % (d + 1, ptr + 1))
    p('s_mov_b32 s%d, 0x%x' % (d + 2, nbytes))
    p('s_mov_b32 s%d, 0x20000' % (d + 3))


def sr(d):
    return 's[%d:%d]' % (d, d + 3)


def prio(p, n):
    if CFG['prio']:
        p('s_setprio %d' % n)


def stamp(p, i):
    if CFG['stamp'] and not (CFG['light'] and i not in (0, 61)):
        p('%s s[100:101]' % ('s_memtime' if CFG['stamp'] == 'clk' else 's_memrealtime'))
        p('s_waitcnt lgkmcnt(0)')
        p('v_writelane_b32 v%d, s100, %d' % (VSTAMP, i))


def stamp_clk(p, i):
    if CFG['stamp']:
        p('s_memtime s[100:101]')
        p('s_waitcnt lgkmcnt(0)')
        p('v_writelane_b32 v%d, s100, %d' % (VSTAMP, i))


def stamp_out(p):
    if CFG['stamp']:
        p('s_waitcnt vmcnt(0)')
        stamp(p, 61)
        stamp_clk(p, 63)
        p('s_lshl_b32 s3, s2, 3')
        p('s_add_u32 s3, s3, s%d' % sW)
        p('s_lshl_b32 s3, s3, 8')
        p('s_add_u32 s3, s3, %d' % ST_OFF)
        p('v_lshlrev_b32 v7, 2, v0')
        p('buffer_store_dword v%d, v7, %s, s3 offen' % (VSTAMP, WS))
        p('s_waitcnt vmcnt(0)')


def nonce_issue(p):
    p('buffer_load_dwordx2 %s, off, %s, 0 sc1' % (v(VNON, 2), sr(S_DBG)))


cold = []


def nonce_check(p):
    ok, L = p.newlabel('nok'), p.newlabel('nsp')
    p('v_cmp_eq_u32 vcc, 0, v%d' % VNON)
    p('s_cbranch_vccnz %s' % L)
    p.label(ok)

    def rare():
        L2 = p.newlabel('nsp')
        p.label(L)
        p('s_mov_b32 s3, %d' % SPIN)
        p.label(L2)
        p('s_sleep 2')
        nonce_issue(p)
        p('s_sub_u32 s3, s3, 1')
        p('s_waitcnt vmcnt(0)')
        p('s_cbranch_scc1 %s' % ok)
        p('v_cmp_eq_u32 vcc, 0, v%d' % VNON)
        p('s_cbranch_vccnz %s' % L2)
        p('s_branch %s' % ok)
    cold.append(rare)


def flag_store(p, soff):
    p('s_mov_b64 exec, 1')
    p('buffer_store_dwordx2 %s, off, %s, s%d sc1' % (v(VNON, 2), WS, soff))
    p('s_mov_b64 exec, -1')


def poll_issue(p, vdat, voff):
    p('buffer_load_dwordx2 %s, v%d, %s, 0 offen sc1' % (v(vdat, 2), voff, WS))


def poll_check(p, vcmp, reissue):
    ok, L = p.newlabel('pok'), p.newlabel('psp')
    p('v_cmp_ne_u64 vcc, %s, %s' % (v(vcmp, 2), v(VNON, 2)))
    p('s_cbranch_vccz %s' % ok)
    p('s_mov_b32 s3, %d' % SPIN)
    p.label(L)
    reissue()
    p('s_sub_u32 s3, s3, 1')
    p('s_waitcnt vmcnt(0)')
    p('s_cbranch_scc1 %s' % ok)
    p('v_cmp_ne_u64 vcc, %s, %s' % (v(vcmp, 2), v(VNON, 2)))
    p('s_cbranch_vccnz %s' % L)
    p.label(ok)


def emit_all(p, L):
    for x in L:
        if callable(x):
            x()
        else:
            p(x)


def prologue(p, end):
    p('s_load_dwordx16 s[%d:%d], s[0:1], 0' % (KA_, KA_ + 15))
    p('s_load_dwordx4 s[%d:%d], s[0:1], 64' % (KA_ + 16, KA_ + 19))
    p('s_cmp_ge_u32 s2, 256')
    p('s_cbranch_scc1 %s' % end)
    p('v_lshrrev_b32 v1, 6, v0')
    p('v_readfirstlane_b32 s%d, v1' % sW)
    p('v_and_b32 v0, 63, v0')
    if CFG['stamp']:
        p('v_mov_b32 v%d, 0' % VSTAMP)
        stamp(p, 0)
        if not CFG['light']:
            stamp_clk(p, 62)
    p('s_and_b32 s3, s2, 7')
    p('s_lshr_b32 s4, s2, 3')
    p('s_lshr_b32 s5, s3, 1')
    p('s_mul_i32 s5, s5, 30')
    p('s_add_u32 s5, s5, s4')
    p('s_lshr_b32 s%d, s5, 3' % sCB)
    p('s_and_b32 s5, s5, 7')
    p('s_and_b32 s6, s3, 1')
    p('s_lshl_b32 s6, s6, 3')
    p('s_add_u32 s%d, s5, s6' % sRB)


def late_scalars(p):
    srd(p, S_WS, KA_ + 18, WS_BYTES)
    srd(p, S_OUT, KA_ + 14, OUT_BYTES)
    srd(p, S_DBG, KA_ + 16, 256)
    p('s_and_b32 s3, s2, 7')
    p('s_lshr_b32 s4, s2, 3')
    p('s_and_b32 s7, s4, 3')
    p('s_lshl_b32 s3, s3, 2')
    p('s_add_u32 s%d, s3, s7' % sH)
    p('s_lshr_b32 s%d, s4, 2' % sR)
    p('s_and_b32 s%d, s%d, 1' % (sODD, sH))
    p('s_lshr_b32 s3, s%d, 1' % sH)
    p('s_mul_i32 s3, s3, 5')
    p('s_lshl_b32 s6, s%d, 1' % sODD)
    p('s_add_u32 s%d, s3, s6' % sC0)
    p('s_lshl_b32 s3, s%d, 3' % sR)
    p('s_add_u32 s%d, s3, s%d' % (sRB32, sW))
    p('s_lshl_b32 s3, s2, 3')
    p('s_add_u32 s3, s3, s%d' % sW)
    p('s_lshl_b32 s3, s3, 7')
    p('s_add_u32 s%d, s3, %d' % (sFL, DUMMY_OFF))
    for r in range(16):
        kl = 8 * (r // 4) + r % 4
        p('s_mov_b32 s%d, 0x%x' % (sMASK + 2 * r, (0xffffffff << kl) & 0xffffffff))
        p('s_mov_b32 s%d, 0x%x' % (sMASK + 2 * r + 1, (0xffffffff << (kl + 4)) & 0xffffffff))


def vb_masks(p):
    rotl = lambda x, n: ((x << n) | (x >> (32 - n))) & 0xffffffff
    for r in range(16):
        kl = 8 * (r // 4) + r % 4
        p('s_mov_b32 s%d, 0x%x' % (sVB + 2 * r, rotl(0x5555, kl)))
        p('s_mov_b32 s%d, 0x%x' % (sVB + 2 * r + 1, rotl(0x5555, kl + 4)))
    k, L = p.newlabel('vbok'), p.newlabel('vbfirst')
    p('s_cmp_eq_u32 s%d, 0' % sRB32)
    p('s_cbranch_scc1 %s' % L)
    p.label(k)

    def rare():
        p.label(L)
        for r in range(16):
            p('s_and_b64 %s, %s, %s' % (vbm(r), vbm(r), mask(r)))
        p('s_branch %s' % k)
    cold.append(rare)


def mask(r):
    return 's[%d:%d]' % (sMASK + 2 * r, sMASK + 2 * r + 1)


def vbm(r):
    return 's[%d:%d]' % (sVB + 2 * r, sVB + 2 * r + 1)


def p1_compute(p, tail_fill):
    D, CF = CFG['D'], CFG['CF']
    NB = D + 1
    VST, AX, AW = 1, 2, 4
    WF, ACC, X = 8, 32, 96
    p('v_and_b32 v16, 15, v0')
    p('v_lshrrev_b32 v17, 4, v0')
    p('v_lshrrev_b32 v18, 1, v16')
    p('v_xor_b32 v18, v18, v17')
    p('v_lshlrev_b32 v18, 4, v18')
    p('v_lshl_add_u32 v18, v16, 7, v18')
    p('s_lshl_b32 s3, s%d, 12' % sW)
    p('s_add_u32 s3, s3, %d' % XR_OFF)
    p('v_add_u32 v%d, s3, v18' % AX)
    p('v_xor_b32 v%d, 64, v%d' % (AX + 1, AX))
    p('v_bfe_u32 v18, v0, 2, 3')
    p('v_mul_u32_u24 v18, 2080, v18')
    p('v_lshrrev_b32 v19, 5, v0')
    p('v_lshl_add_u32 v18, v19, 10, v18')
    p('v_and_b32 v20, 3, v0')
    p('v_lshl_add_u32 v%d, v20, 3, v18' % AW)
    p('v_add_u32 v%d, %d, v%d' % (AW + 1, 3 * WSLOT, AW))
    p('v_and_b32 v18, 31, v0')
    p('v_lshlrev_b32 v18, 4, v18')
    p('v_lshl_add_u32 v18, v19, 11, v18')
    p('s_lshl_b32 s3, s%d, 9' % sW)
    p('v_add_u32 v%d, s3, v18' % VST)
    p('s_waitcnt lgkmcnt(0)')
    if CFG['wbwarm'] == 2:
        k = p.newlabel('nowarm')
        srd(p, S_WB, KA_ + 8, WQ_BYTES)
        p('s_cmp_gt_u32 s%d, 1' % sW)
        p('s_cbranch_scc1 %s' % k)
        p('s_lshl_b32 s3, s2, 1')
        p('s_add_u32 s3, s3, s%d' % sW)
        p('s_mul_i32 s3, s3, 5120')
        p('v_lshlrev_b32 v8, 7, v0')
        p('s_mov_b32 exec_hi, 0xff')
        p('buffer_load_dword v%d, v8, %s, s3 offen' % (X + 156, sr(S_WB)))
        p('s_mov_b32 exec_hi, -1')
        p.label(k)
    if CFG['wbwarm'] == 3:
        p('s_lshl_b32 s3, s2, 2')
        p('s_add_u32 s3, s3, s%d' % sW)
        p('s_mul_i32 s3, s3, 2560')
        p('s_add_u32 s4, s%d, s3' % (KA_ + 8))
        p('s_addc_u32 s5, s%d, 0' % (KA_ + 9))
        for i in range(20):
            p('s_load_dword s%d, s[4:5], %d' % (68 + i, i * 128))
        p('s_waitcnt lgkmcnt(0)')
    late_scalars(p)
    nn = p.newlabel('nononce')
    p('s_or_b32 s3, s2, s%d' % sW)
    p('s_cbranch_scc1 %s' % nn)
    p('s_memrealtime s[4:5]')
    p('s_waitcnt lgkmcnt(0)')
    p('s_or_b32 s4, s4, 1')
    p('v_mov_b32 v8, s4')
    p('v_mov_b32 v9, s5')
    p('s_mov_b64 exec, 1')
    p('buffer_store_dwordx2 v[8:9], off, %s, 0 sc1' % sr(S_DBG))
    p('s_mov_b64 exec, -1')
    p.label(nn)
    if CFG['tlb']:
        k = p.newlabel('notlb')
        p('s_cmp_lg_u32 s%d, 3' % sW)
        p('s_cbranch_scc1 %s' % k)
        p('v_lshlrev_b32 v8, 20, v0')
        p('s_mov_b64 exec, 0xffffff')
        p('buffer_load_dword v7, v8, %s, 0 offen' % WS)
        p('s_mov_b64 exec, 7')
        p('buffer_load_dword v7, v8, %s, 0 offen' % sr(S_OUT))
        p('s_mov_b64 exec, -1')
        p.label(k)
    vb_masks(p)
    sQ, sSC = T0, T0 + 2
    p('s_mul_i32 s%d, s%d, %d' % (sQ, sRB, QKV_RB))
    p('s_lshl_b32 s3, s%d, 15' % sCB)
    p('s_add_u32 s%d, s%d, s3' % (sQ, sQ))
    p('s_cmp_lt_u32 s%d, 5' % sCB)
    p('s_cselect_b32 s%d, %s, 1.0' % (sSC, f32(QSCALE)))
    p('s_mov_b32 s%d, s%d' % (sSC + 1, sSC))
    p('s_lshl_b32 s3, s%d, 2' % sRB)
    p('s_add_u32 s3, s3, s%d' % sW)
    p('s_lshl_b32 s4, s3, 4')
    p('s_add_u32 s4, s4, s%d' % sCB)
    p('s_lshl_b32 s5, s4, 7')
    p('s_add_u32 s%d, s5, %d' % (sFL, F1B_OFF))

    frs = []
    for c in range(20):
        for i in range(16):
            if c < 10:
                st, u = i // 8, i % 8
                off = [(st * 2 + j) * 256 + u * 32 for j in range(2)]
                frs.append(dict(c=c, off=off, acc=u, xs=2 * c + st, first=(c == 0 and st == 0)))
            else:
                slab, cc = (c - 10) // 5, (c - 10) % 5
                st, u = i // 4, i % 4
                off = [(st * 2 + j) * 128 + u * 32 for j in range(2)]
                frs.append(dict(c=c, off=off, acc=slab * 4 + u, xs=4 * cc + st, first=(cc == 0 and st == 0)))
    pend = []

    def lds(text, tag):
        p(text)
        pend.append(tag)

    def need(tags):
        idx = [i for i, t in enumerate(pend) if t in tags]
        if idx:
            n = len(pend) - 1 - max(idx)
            assert n <= 15
            p('s_waitcnt lgkmcnt(%d)' % n)
            del pend[:max(idx) + 1]

    def st_(i):
        if CFG['stamp'] and not CFG['light']:
            stamp(p, i)
            del pend[:]

    def pre_read(f):
        fr = frs[f]
        if f % 16 == 0:
            c = fr['c']
            if c <= CF:
                p('s_barrier')
                if c in (0, 2, 6):
                    st_(2 + c // 2)
            if c < 10:
                for st in range(2):
                    for t in range(2):
                        lds('ds_read_b128 %s, v%d offset:%d' % (v(X + ((2 * c + st) * 2 + t) * 4, 4), AX + st, (c % 3) * 16384 + t * 2048), ('x', 2 * c + st))

    def w_read(f, j):
        fr = frs[f]
        slot = fr['c'] % NWS
        lds('ds_read_b64_tr_b16 %s, v%d offset:%d' % (v(WF + (f % NB) * 4 + j * 2, 2), AW + slot // 3, (slot % 3) * WSLOT + fr['off'][j]), ('w', f))

    def mf(f, t):
        fr = frs[f]
        acc = v(ACC + (fr['acc'] * 2 + t) * 4, 4)
        p('v_mfma_f32_16x16x32_bf16 %s, %s, %s, %s' % (acc, v(WF + (f % NB) * 4, 4), v(X + (fr['xs'] * 2 + t) * 4, 4), '0' if fr['first'] else acc))

    def conv(u, d):
        a0 = ACC + u * 8
        L = ['v_pk_mul_f32 %s, %s, s[%d:%d]' % (v(a0 + 2 * i, 2), v(a0 + 2 * i, 2), sSC, sSC + 1) for i in range(4)]
        L += ['v_cvt_pk_bf16_f32 v%d, v%d, v%d' % (d + i, a0 + 2 * i, a0 + 2 * i + 1) for i in range(4)]
        return L

    def swaps(d):
        return ['v_permlane16_swap_b32 v%d, v%d' % (d, d + 2), 'v_permlane16_swap_b32 v%d, v%d' % (d + 1, d + 3)]

    def store(br, u, d):
        return ['s_add_u32 s3, s%d, %d' % (sQ, br * QKV_BR + u * 4096) + '\n' +
                'buffer_store_dwordx4 %s, v%d, %s, s3 offen sc1' % (v(d, 4), VST, WS)]

    side = {}

    def add_side(f, L):
        side.setdefault(f, []).extend(L)
    L = []
    for u in range(4):
        L += conv(u, ACC + u * 8) + swaps(ACC + u * 8) + store(1, u, ACC + u * 8)
    f = 242
    while L:
        add_side(f, L[:CFG['b1rate']])
        del L[:CFG['b1rate']]
        f += 1

    stamp(p, 1)
    for f in range(D):
        pre_read(f)
        w_read(f, 0)
        w_read(f, 1)
    for f in range(320):
        g = f + D
        need({('w', f), ('x', frs[f]['xs'])})
        mf(f, 0)
        if g < 320:
            pre_read(g)
            w_read(g, 0)
        mf(f, 1)
        if g < 320:
            w_read(g, 1)
        emit_all(p, side.get(f, []))
        if f == 100 and (CFG['wbwarm'] == 2 or CFG['tlb']):
            p('s_waitcnt vmcnt(0)')
        if f == 159:
            st_(12)
            p('s_lshl_b32 s3, s%d, 13' % sW)
            p('s_add_u32 s3, s3, %d' % XR_OFF)
            p('v_lshl_add_u32 v7, v0, 4, s3')
            for u in range(8):
                emit_all(p, conv(u, ACC + u * 8))
                if u == 0:
                    p('s_waitcnt lgkmcnt(0)')
                    del pend[:]
                else:
                    lds('ds_write_b128 v7, %s offset:%d' % (v(ACC + (u - 1) * 8, 4), (u - 1) * 1024), ('s', u))
                emit_all(p, swaps(ACC + u * 8))
            p('s_waitcnt lgkmcnt(0)')
            del pend[:]
            lds('ds_write_b128 v7, %s offset:%d' % (v(ACC + 7 * 8, 4), 7 * 1024), ('s', 8))
            st_(13)
        if f == 239:
            st_(14)
            nonce_issue(p)
    st_(18)
    fill = list(tail_fill)
    per = (len(fill) + 3) // 4
    for u in range(4, 8):
        emit_all(p, conv(u, ACC + u * 8) + swaps(ACC + u * 8) + store(1, u, ACC + u * 8))
        emit_all(p, fill[:per])
        del fill[:per]
    st_(19)


VPOLL, VPD = 12, 14
sLWV, sRBQ = 84, 85
sTA = 86


def tail_scalars(p):
    p('s_sub_u32 s%d, s%d, 4' % (sLWV, sW))
    p('s_lshl_b32 s3, s%d, 1' % sR)
    p('s_add_u32 s3, s3, s%d' % sLWV)
    p('s_sub_u32 s3, s3, 2')
    p('s_max_i32 s%d, s3, 0' % sRBQ)
    p('v_and_b32 v20, 3, v0')
    p('s_lshl_b32 s3, s%d, 2' % sRBQ)
    p('v_add_u32 v21, s3, v20')
    p('v_and_b32 v23, 1, v0')
    p('s_lshl_b32 s3, s%d, 3' % sR)
    p('s_lshl_b32 s4, s%d, 1' % sLWV)
    p('s_add_u32 s3, s3, s4')
    p('v_add_u32 v20, s3, v23')
    p('v_cmp_gt_u32 vcc, 16, v0')
    p('v_cndmask_b32 v21, v20, v21, vcc')
    p('v_bfe_u32 v20, v0, 3, 1')
    p('v_mul_u32_u24 v20, 5, v20')
    p('v_add_u32 v20, 5, v20')
    p('v_cndmask_b32 v20, 0, v20, vcc')
    p('v_lshrrev_b32 v22, 1, v0')
    p('v_and_b32 v22, 2, v22')
    p('v_add_u32 v22, s%d, v22' % sC0)
    p('v_lshrrev_b32 v22, 4, v22')
    p('v_add_u32 v20, v20, v22')
    p('v_lshl_add_u32 v20, v21, 4, v20')
    p('v_lshlrev_b32 v20, 7, v20')
    p('v_add_u32 v20, %d, v20' % F1A_OFF)
    p('s_lshl_b32 s3, s%d, 3' % sLWV)
    p('s_add_u32 s3, s3, s%d' % sN)
    p('s_lshl_b32 s3, s3, 8')
    p('s_add_u32 s3, s3, %d' % FW_OFF)
    p('v_and_b32 v22, 2, v0')
    p('v_lshlrev_b32 v22, 12, v22')
    p('v_lshl_add_u32 v22, v23, 7, v22')
    p('v_add_u32 v22, s3, v22')
    p('v_cmp_gt_u32 vcc, 24, v0')
    p('v_cndmask_b32 v%d, v22, v20, vcc' % VPOLL)
    p('s_mul_i32 s%d, s%d, %d' % (sTA, sRBQ, QKV_RB))
    p('s_lshl_b32 s4, s%d, 11' % sC0)
    p('s_add_u32 s%d, s%d, s4' % (sTA, sTA))
    p('s_lshl_b32 s5, s%d, 11' % sODD)
    p('s_add_u32 s%d, s%d, s5' % (sTA + 1, sTA))
    p('s_cmp_eq_u32 s%d, 0' % sODD)
    p('s_cselect_b32 s6, 4096, 8')
    p('s_cselect_b32 s7, 4096, 0')
    p('s_add_u32 s%d, s%d, s6' % (sTA + 2, sTA))
    p('s_lshl_b32 s3, s%d, 1' % sR)
    p('s_lshr_b32 s6, s%d, 1' % sLWV)
    p('s_add_u32 s3, s3, s6')
    p('s_mul_i32 s3, s3, %d' % QKV_RB)
    p('s_and_b32 s6, s%d, 1' % sLWV)
    p('s_lshl_b32 s6, s6, 10')
    p('s_add_u32 s3, s3, s6')
    p('s_add_u32 s3, s3, s4')
    p('s_add_u32 s%d, s3, s5' % (sTA + 3))
    p('s_add_u32 s%d, s3, s7' % (sTA + 4))
    p('s_lshl_b32 s%d, s%d, 11' % (sTA + 5, sLWV))
    p('s_lshl_b32 s%d, s%d, 10' % (sTA + 6, sLWV))
    p('v_lshlrev_b32 v26, 4, v0')
    p('v_lshrrev_b32 v7, 1, v0')
    p('v_lshlrev_b32 v7, 4, v7')
    p('v_lshl_add_u32 v27, v23, 2, v7')


def ones_fill(p):
    for r in range(4):
        p('v_mov_b32 v%d, 0x3f803f80' % (28 + r))
    p('v_add_u32 v7, s%d, v26' % (sTA + 6))
    p('v_add_u32 v7, %d, v7' % ONES_OFF)
    p('ds_write_b128 v7, v[28:31]')
    p('v_lshlrev_b32 v7, 3, v0')
    p('v_add_u32 v7, %d, v7' % (ONES_OFF + 4096))
    p('ds_write_b64 v7, v[28:29]')


def p1_loader(p):
    CF = CFG['CF']
    VX, VWA, VWB = 8, 9, 10
    GX, GG, GA = 16, 18, 32
    prio(p, 2)
    p('s_sub_u32 s5, s%d, 4' % sW)
    G, m1, m2, m3 = CFG['rot']
    p('s_add_u32 s6, s%d, s%d' % (sRB, sCB))
    p('s_and_b32 s6, s6, %d' % (G - 1))
    p('s_mul_i32 s6, s6, %d' % m1)
    if m2:
        p('s_bfe_u32 s7, s2, 0x20001')
        p('s_mul_i32 s7, s7, %d' % m2)
        p('s_add_u32 s6, s6, s7')
    if m3:
        p('s_and_b32 s7, s2, 1')
        p('s_mul_i32 s7, s7, %d' % m3)
        p('s_add_u32 s6, s6, s7')
    p('s_mul_i32 s7, s6, 52')
    p('s_lshr_b32 s7, s7, 8')
    p('s_mul_i32 s7, s7, 5')
    p('s_sub_u32 s6, s6, s7')
    p('s_lshl_b32 s%d, s6, 1' % sROT)
    p('v_lshrrev_b32 v1, 3, v0')
    p('s_lshl_b32 s6, s5, 3')
    p('v_add_u32 v4, s6, v1')
    p('v_mul_u32_u24 v4, 1280, v4')
    p('v_lshrrev_b32 v5, 4, v0')
    p('s_and_b32 s6, s5, 1')
    p('s_lshl_b32 s6, s6, 2')
    p('v_add_u32 v7, s6, v5')
    p('v_and_b32 v11, 7, v0')
    p('v_xor_b32 v7, v7, v11')
    p('v_lshl_add_u32 v%d, v7, 4, v4' % VX)
    p('v_lshrrev_b32 v4, 5, v0')
    p('v_lshlrev_b32 v4, 5, v4')
    p('v_bfe_u32 v7, v0, 4, 1')
    p('v_lshl_add_u32 v4, v7, 2, v4')
    p('v_add_u32 v4, s5, v4')
    p('v_mul_u32_u24 v4, 3840, v4')
    p('v_and_b32 v7, 15, v0')
    p('v_lshl_add_u32 v%d, v7, 4, v4' % VWA)
    sXB, sWBs, sLX, sLW, sKX, sKW = T0, T0 + 1, T0 + 2, T0 + 3, T0 + 4, T0 + 5
    sGT = 93
    p('s_mul_i32 s%d, s%d, %d' % (sXB, sRB, 128 * 1280))
    p('s_lshl_b32 s%d, s%d, 8' % (sWBs, sCB))
    p('s_lshl_b32 s%d, s5, 10' % sLX)
    p('s_mul_i32 s%d, s5, 2080' % sLW)

    q = []
    for c in range(20):
        for t in range(4):
            q.append(('w', c, t, c - 4 if c >= NWS else -1))
            if c < 10:
                q.append(('x', c, t, c - 2 if c >= 3 else -1))
    cur = {'c': None}
    issued = []

    def kchunk(kk):
        p('s_add_u32 s3, s%d, %d' % (sROT, kk))
        p('s_cmp_ge_u32 s3, 10')
        p('s_cselect_b32 s4, 10, 0')
        p('s_sub_u32 s3, s3, s4')

    def kbase(c):
        if cur['c'] == c:
            return
        cur['c'] = c
        kchunk(c if c < 10 else 2 * ((c - 10) % 5))
        if c < 10:
            p('s_lshl_b32 s4, s3, 7')
            p('s_add_u32 s%d, s4, s%d' % (sKX, sXB))
        p('s_mul_i32 s4, s3, %d' % (64 * 3840))
        p('s_add_u32 s%d, s4, s%d' % (sKW, sWBs))

    def emit(it):
        kind, c, t, _ = it
        kbase(c)
        if kind == 'x':
            p('s_add_u32 m0, s%d, %d' % (sLX, XR_OFF + (c % 3) * 16384 + t * 4096))
            p('s_add_u32 s3, s%d, %d' % (sKX, t * 32 * 1280))
            p('buffer_load_dwordx4 v%d, %s, s3 offen lds' % (VX, sr(S_X)))
        else:
            kb, kh = t & 1, t >> 1
            p('s_add_u32 m0, s%d, %d' % (sLW, (c % NWS) * WSLOT + kb * 4 * 2080 + kh * 1024))
            p('s_add_u32 s3, s%d, %d' % (sKW, (16 * kh + 8 * kb) * 3840 + (128 * ((c - 10) // 5) if c >= 10 else 0)))
            p('buffer_load_dwordx4 v%d, %s, s3 offen lds' % (VWA if c < 10 else VWB, sr(S_WA if c < 10 else S_WB)))
        issued.append(c)

    kbase(0)
    p('s_waitcnt lgkmcnt(0)')
    srd(p, S_WA, KA_ + 2, WQ_BYTES)
    srd(p, S_X, KA_, X_BYTES)
    stamp(p, 1)
    for _ in range(8):
        emit(q.pop(0))
    srd(p, S_GW, KA_ + 12, 1280)
    srd(p, S_WB, KA_ + 8, WQ_BYTES)
    p('s_mul_i32 s3, s5, 320')
    p('s_add_u32 m0, s3, %d' % GW_OFF)
    p('v_lshlrev_b32 v7, 4, v0')
    p('s_mov_b64 exec, 0xfffff')
    p('buffer_load_dwordx4 v7, %s, s3 offen lds' % sr(S_GW))
    p('s_mov_b64 exec, -1')
    issued.append(0)
    for _ in range(8):
        emit(q.pop(0))
    late_scalars(p)
    p('s_sub_u32 s5, s%d, 4' % sW)
    p('v_lshlrev_b32 v4, 5, v5')
    p('v_and_b32 v7, 1, v1')
    p('v_lshl_add_u32 v4, v7, 2, v4')
    p('v_add_u32 v4, s5, v4')
    p('v_mul_u32_u24 v4, 3840, v4')
    p('v_lshl_add_u32 v%d, v11, 4, v4' % VWB)
    p('s_lshr_b32 s3, s%d, 3' % sCB)
    p('s_or_b32 s%d, s3, s5' % sGT)
    p('v_and_b32 v4, 15, v0')
    p('v_lshrrev_b32 v7, 1, v4')
    p('v_xor_b32 v7, v7, v5')
    p('v_lshlrev_b32 v7, 4, v7')
    p('v_lshl_add_u32 v7, v4, 7, v7')
    p('s_and_b32 s3, s%d, 7' % sCB)
    p('s_lshl_b32 s3, s3, 11')
    p('s_add_u32 s3, s3, %d' % XR_OFF)
    p('v_add_u32 v%d, s3, v7' % GX)
    p('v_xor_b32 v%d, 64, v%d' % (GX + 1, GX))
    p('v_lshlrev_b32 v7, 4, v5')
    p('v_add_u32 v%d, %d, v7' % (GG, GW_OFF))
    tail_scalars(p)
    p('s_lshl_b32 s3, s%d, 13' % sLWV)
    p('s_add_u32 s3, s3, %d' % XR_OFF)
    p('v_add_u32 v25, s3, v26')
    p('v_and_b32 v7, 31, v0')
    p('v_lshlrev_b32 v7, 4, v7')
    p('v_lshrrev_b32 v4, 5, v0')
    p('v_lshl_add_u32 v7, v4, 11, v7')
    p('s_lshl_b32 s3, s%d, 9' % sLWV)
    p('v_add_u32 v24, s3, v7')
    p('s_mul_i32 s94, s%d, %d' % (sRB, QKV_RB))
    p('s_lshl_b32 s3, s%d, 15' % sCB)
    p('s_add_u32 s94, s94, s3')
    p('s_lshl_b32 s3, s%d, 2' % sRB)
    p('s_add_u32 s3, s3, s%d' % sLWV)
    p('s_lshl_b32 s3, s3, 4')
    p('s_add_u32 s3, s3, s%d' % sCB)
    p('s_lshl_b32 s3, s3, 7')
    p('s_add_u32 s95, s3, %d' % F1A_OFF)
    sta = list(range(8))
    ilast = None
    for c in range(CF + 1):
        lim = c if c < CF else 19
        if c == CF:
            assert not q
        last = max(i for i, x in enumerate(issued) if x is not None and x <= lim)
        assert all(x[1] > lim for x in q)
        p('s_waitcnt vmcnt(%d)' % (len(issued) - 1 - last))
        if c % 2 == 0 and c < 8:
            stamp(p, 2 + (c + 1) // 2)
        if c >= 8:
            stamp(p, 36 + 2 * (c - 8))
        p('s_barrier')
        if c >= 8:
            stamp(p, 37 + 2 * (c - 8))
        quota = 8 if c < 8 else CFG['quota'].get(c, 8)
        if c == 11:
            for u in range(8):
                p('ds_read_b128 %s, v25 offset:%d' % (v(64 + u * 4, 4), u * 1024))
        if c == CFG['flA']:
            p('s_waitcnt vmcnt(%d)' % (len(issued) - 1 - ilast))
            flag_store(p, 95)
            issued.append(None)
            stamp(p, 16)
        while q and quota > 0 and q[0][3] <= c:
            emit(q.pop(0))
            quota -= 1
        if c == 11:
            p('s_waitcnt lgkmcnt(0)')
        for _ in range(CFG['stA'].get(c, 0)):
            u = sta.pop(0)
            p('s_add_u32 s3, s94, %d' % (u * 4096))
            p('buffer_store_dwordx4 %s, v24, %s, s3 offen sc1' % (v(64 + u * 4, 4), WS))
            issued.append(None)
            ilast = len(issued) - 1
        if c < 10:
            k = p.newlabel('nogate')
            p('s_cmp_lg_u32 s%d, 0' % sGT)
            p('s_cbranch_scc1 %s' % k)
            kchunk(c)
            p('s_lshl_b32 s3, s3, 7')
            p('v_add_u32 v%d, s3, v%d' % (GG + 1, GG))
            for st in range(2):
                p('ds_read_b128 %s, v%d offset:%d' % (v(36 + st * 8, 4), GX + st, (c % 3) * 16384))
                p('ds_read_b128 %s, v%d offset:%d' % (v(40 + st * 8, 4), GG + 1, st * 64))
            p('s_waitcnt lgkmcnt(0)')
            for st in range(2):
                p('v_mfma_f32_16x16x32_bf16 %s, %s, %s, %s' % (v(GA, 4), v(40 + st * 8, 4), v(36 + st * 8, 4), '0' if (c == 0 and st == 0) else v(GA, 4)))
            p.label(k)
        if c == 7:
            nonce_issue(p)
            issued.append(None)
            inon = len(issued) - 1
        if c == 13:
            ones_fill(p)
        if c == 10:
            p('s_waitcnt vmcnt(%d)' % (len(issued) - 1 - inon))
            nonce_check(p)
            p('s_mov_b32 s7, %s' % f32(-1.4426950408889634))
            p('v_mul_f32 v%d, s7, v%d' % (GA, GA))
            p('v_exp_f32 v%d, v%d' % (GA, GA))
            p('v_mov_b32 v%d, 0' % (GA + 1))
            p('v_add_f32 v%d, 1.0, v%d' % (GA, GA))
            p('v_rcp_f32 v%d, v%d' % (GA, GA))
            p('v_mov_b32 v%d, v%d' % (GA + 2, VNON))
            p('v_mov_b32 v%d, v%d' % (GA + 3, VNON + 1))
            p('s_lshl_b32 s3, s%d, 3' % sRB)
            p('s_add_u32 s3, s3, s%d' % sCB)
            p('s_lshl_b32 s3, s3, 8')
            p('s_add_u32 s3, s3, %d' % G_OFF)
            p('s_cmp_eq_u32 s%d, 0' % sGT)
            p('s_cselect_b32 s3, s3, s%d' % sFL)
            p('s_cselect_b32 exec_lo, 0xffff, 1')
            p('s_mov_b32 exec_hi, 0')
            p('buffer_store_dwordx4 %s, v26, %s, s3 offen sc1' % (v(GA, 4), WS))
            p('s_mov_b64 exec, -1')
            issued.append(None)
        if c == CF - 1:
            poll_issue(p, VPD, VPOLL)
            issued.append(None)


def loader_tail(p):
    p('s_waitcnt vmcnt(0)')
    stamp(p, 12)
    poll_check(p, VPD, lambda: poll_issue(p, VPD, VPOLL))
    stamp(p, 13)

    def dma(ldsb, ldsoff, gb, goff, vo=26, w='x4', n=1):
        p('s_add_u32 m0, s%d, %d' % (sTA + ldsb, ldsoff))
        p('s_add_u32 s3, s%d, %d' % (sTA + gb, goff))
        for i in range(n):
            p('buffer_load_dword%s v%d, %s, s3 offen offset:%d sc1 lds' % (w, vo, WS, i * 1024))
    for j in range(2):
        dma(6, QA_OFF + j * 4096, 3, j * 2048)
    dma(6, QA_OFF + 8192, 4, 0)
    for j in range(2):
        dma(5, KA_OFF + j * 8192, 1, (80 + j) * 2048, n=2)
    for i in range(4):
        dma(6, KA_OFF + 16384 + i * 256, 2, 80 * 2048 + i * 512, vo=27, w='')
    for j in range(3):
        dma(5, VA_OFF + j * VA_STR, 0, (160 + j) * 2048, n=2)
    stamp(p, 14)
    vb_masks(p)


def p1_spare(p):
    S_WO = S_X
    p('s_and_b32 s3, s2, 7')
    p('s_lshl_b32 s5, s3, 1')
    p('s_add_u32 s5, s5, s4')
    p('s_sub_u32 s%d, s5, 30' % T0)
    p('s_waitcnt lgkmcnt(0)')
    p('s_cmp_lt_u32 s%d, 8' % T0)
    p('s_cselect_b32 s6, s%d, s%d' % (KA_ + 4, KA_ + 10))
    p('s_cselect_b32 s7, s%d, s%d' % (KA_ + 5, KA_ + 11))
    srd(p, S_WO, 6, WO_BYTES)
    srd(p, S_WB, KA_ + 8, WQ_BYTES)
    late_scalars(p)
    if CFG['cpf']:
        k = p.newlabel('pc')
        p('s_getpc_b64 s[4:5]')
        p.label(k)
        p('s_sub_u32 s4, s4, %s-%s_kernel' % (k, NAME))
        p('s_subb_u32 s5, s5, 0')
        p('s_and_b32 s3, s%d, 1' % T0)
        p('s_lshl_b32 s3, s3, 3')
        p('s_add_u32 s3, s3, s%d' % sW)
        p('v_lshl_add_u32 v4, v0, 4, s3')
        p('v_lshlrev_b32 v4, 7, v4')
        p('v_min_u32 v4, .Lhot_end-%s_kernel, v4' % NAME)
        p('s_mov_b32 exec_hi, 0')
        p('global_load_dword v35, v4, s[4:5]')
        p('s_mov_b32 exec_hi, -1')
    if CFG['wbwarm'] == 1:
        p('v_lshlrev_b32 v4, 7, v0')
        p('s_lshl_b32 s3, s%d, 3' % T0)
        p('s_add_u32 s3, s3, s%d' % sW)
        p('s_mul_i32 s6, s3, 19200')
        p('s_mov_b32 exec_hi, 0x3ffff')
        for i in range(3):
            p('s_add_u32 s7, s6, %d' % (i * 6400))
            p('buffer_load_dword v%d, v4, %s, s7 offen' % (32 + i, sr(S_WB)))
        p('s_mov_b32 exec_hi, -1')
    for i in range(5):
        p('v_add_u32 v7, %d, v0' % (64 * i))
        p('v_mul_u32_u24 v8, 1639, v7')
        p('v_lshrrev_b32 v8, 16, v8')
        p('v_mul_u32_u24 v8, 640, v8')
        p('v_lshl_add_u32 v%d, v7, 4, v8' % (16 + i))
    p('s_bfe_u32 s3, s%d, 0x20001' % T0)
    p('s_mul_i32 s3, s3, 160')
    p('s_mul_i32 s4, s%d, 20' % sW)
    p('s_add_u32 s3, s3, s4')
    p('s_mul_i32 s3, s3, 1280')
    p('s_and_b32 s4, s%d, 1' % T0)
    p('s_mul_i32 s4, s4, 640')
    p('s_add_u32 s5, s3, s4')
    p('s_mul_i32 s6, s%d, 12800' % sW)
    for i in range(13):
        p('s_add_u32 m0, s6, %d' % (i * 1024))
        p('s_add_u32 s3, s5, %d' % ((i // 5) * 8 * 1280))
        if i == 12:
            p('s_mov_b32 exec_hi, 0')
        p('buffer_load_dwordx4 v%d, %s, s3 offen lds' % (16 + i % 5, sr(S_WO)))
        if i == 12:
            p('s_mov_b32 exec_hi, -1')
    nonce_issue(p)
    p('s_lshr_b32 s4, s%d, 1' % sW)
    p('s_mul_i32 s4, s4, 160')
    p('v_bfe_u32 v7, v0, 2, 3')
    p('v_lshrrev_b32 v8, 5, v0')
    p('v_mul_u32_u24 v8, 20, v8')
    p('v_add_u32 v8, v8, v7')
    p('v_mul_u32_u24 v8, 640, v8')
    p('v_and_b32 v9, 3, v0')
    p('v_lshl_add_u32 v9, v9, 3, s4')
    p('v_add_u32 v22, v8, v9')
    p('v_add_u32 v23, %d, v22' % (80 * 640))
    p('v_lshrrev_b32 v8, 4, v0')
    p('v_mul_u32_u24 v8, 20, v8')
    p('v_and_b32 v7, 3, v7')
    p('v_add3_u32 v8, v8, v7, 16')
    p('v_mul_u32_u24 v8, 640, v8')
    p('v_add_u32 v24, v8, v9')
    p('v_lshlrev_b32 v1, 4, v0')
    p('s_lshl_b32 s3, s%d, 2' % T0)
    p('s_lshr_b32 s4, s%d, 1' % sW)
    p('s_add_u32 s3, s3, s4')
    p('s_mul_i32 s5, s3, 25600')
    p('s_add_u32 s5, s5, %d' % WP_OFF)
    p('s_lshl_b32 s3, s%d, 3' % T0)
    p('s_add_u32 s3, s3, s%d' % sW)
    p('s_lshl_b32 s3, s3, 7')
    p('s_add_u32 s%d, s3, %d' % (T0 + 1, FW_OFF))
    p('s_waitcnt vmcnt(0)')
    stamp(p, 2)
    nonce_check(p)
    p('s_barrier')
    odd, done = p.newlabel('odd'), p.newlabel('packed')
    p('s_bitcmp1_b32 s%d, 0' % sW)
    p('s_cbranch_scc1 %s' % odd)
    for half, fr in ((0, range(0, 13)), (1, range(13, 25))):
        if half:
            p.label(odd)
        for n, f in enumerate(fr):
            st, u = f // 5, f % 5
            for j in range(2):
                d = v(32 + n * 4 + j * 2, 2)
                if st < 4:
                    p('ds_read_b64_tr_b16 %s, v%d offset:%d' % (d, 22 + st // 2, (st % 2) * 40 * 640 + j * 8 * 640 + u * 32))
                else:
                    p('ds_read_b64_tr_b16 %s, v24 offset:%d' % (d, j * 80 * 640 + u * 32))
            if n % 4 == 3:
                p('s_waitcnt lgkmcnt(4)')
        p('s_waitcnt lgkmcnt(0)')
        for n, f in enumerate(fr):
            p('s_add_u32 s3, s5, %d' % (f * 1024))
            p('buffer_store_dwordx4 %s, v1, %s, s3 offen sc1' % (v(32 + n * 4, 4), WS))
        if not half:
            p('s_branch %s' % done)
    p.label(done)
    p('s_waitcnt vmcnt(0)')
    flag_store(p, T0 + 1)
    p('s_barrier')
    stamp(p, 3)


VL16, VM, VHH = 1, 4, 5
AK1, AK2, AV, BV, VGO = 8, 9, 10, 11, 13
QB2, VG, Q1, Q2 = 18, 20, 24, 28
AQ1, AQ2 = 16, 17
MSK, KF, VF, PP, O, S, QB1 = 32, 40, 56, 72, 88, 104, 152
WF3 = 156


def p2_setup():
    return [
        'v_and_b32 v%d, 31, v0' % VM,
        'v_lshrrev_b32 v%d, 5, v0' % VHH,
        's_lshl_b32 s4, s%d, 5' % sW,
        'v_add_u32 v7, s4, v%d' % VM,
        'v_lshlrev_b32 v15, 13, v%d' % VHH,
        'v_lshl_add_u32 v15, v7, 4, v15',
        'v_add_u32 v%d, %d, v15' % (AK1, KA_OFF),
        'v_lshlrev_b32 v15, 3, v7',
        'v_add_u32 v%d, %d, v15' % (AK2, KA_OFF + 16384),
        'v_lshlrev_b32 v15, 12, v%d' % VHH,
        'v_lshl_add_u32 v15, v7, 4, v15',
        'v_add_u32 v%d, %d, v15' % (AQ1, QA_OFF),
        's_lshl_b32 s4, s%d, 3' % sODD,
        's_add_u32 s4, s4, %d' % (QA_OFF + 8192),
        'v_lshl_add_u32 v%d, v7, 4, s4' % AQ2,
        'v_mov_b32 v%d, 0' % Q2,
        'v_mov_b32 v%d, 0' % (Q2 + 1),
        'v_bfe_u32 v20, v0, 4, 1',
        'v_and_b32 v21, 3, v0',
        'v_lshl_add_u32 v20, v20, 2, v21',
        'v_add_u32 v21, s%d, v20' % sODD,
        'v_bfe_u32 v22, v0, 2, 2',
        'v_lshl_add_u32 v22, v%d, 2, v22' % VHH,
        'v_lshlrev_b32 v22, 4, v22',
        'v_and_b32 v23, 1, v21',
        'v_lshl_add_u32 v23, v23, 3, v22',
        'v_lshrrev_b32 v21, 1, v21',
        'v_cmp_lt_u32 vcc, 4, v20',
        's_lshl_b32 s4, s%d, 9' % sW,
        's_add_u32 s4, s4, %d' % VA_OFF,
        'v_mul_u32_u24 v7, %d, v21' % VA_STR,
        'v_add3_u32 v7, v7, v23, s4',
        'v_add_u32 v15, %d, v22' % ONES_OFF,
        'v_cndmask_b32 v%d, v7, v15, vcc' % AV,
        's_mul_i32 s4, s%d, %d' % (sW, VB_WAVE),
        'v_mul_u32_u24 v7, %d, v21' % VB_STR,
        'v_add3_u32 v7, v7, v23, s4',
        'v_cndmask_b32 v%d, v7, v15, vcc' % BV,
        'v_lshlrev_b32 v%d, 4, v0' % VL16,
    ]


def kread(t, st, kf=KF):
    return ['ds_read_b128 %s, v%d offset:%d' % (v(kf + st * 8, 4), AK1, t * 512),
            'ds_read_b64 %s, v%d offset:%d' % (v(kf + st * 8 + 4, 2), AK2, t * 256)]


def smf(dst, st, kf=KF, q1=Q1, q2=Q2):
    d = v(dst, 16)
    return ['v_mfma_f32_32x32x16_bf16 %s, %s, %s, 0' % (d, v(kf + st * 8, 4), v(q1, 4)),
            'v_mfma_f32_32x32x8_bf16 %s, %s, %s, %s' % (d, v(kf + st * 8 + 4, 2), v(q2, 2), d)]


def vread(av, t, st):
    return ['ds_read_b64_tr_b16 %s, v%d offset:%d' % (v(VF + st * 8 + m2 * 4 + j * 2, 2), av, t * 512 + m2 * 256 + j * 128) for m2 in range(2) for j in range(2)]


def pvm(st, pp, first=False):
    return ['v_mfma_f32_32x32x16_bf16 %s, %s, %s, %s' % (v(O, 16), v(VF + st * 8 + m2 * 4, 4), v(pp + m2 * 4, 4), '0' if (first and m2 == 0) else v(O, 16)) for m2 in range(2)]


def exps(t):
    return ['v_exp_f32 v%d, v%d' % (t + r, t + r) for r in range(16)]


def cvts(t, dst):
    return ['v_cvt_pk_bf16_f32 v%d, v%d, v%d' % (dst + i, t + 2 * i, t + 2 * i + 1) for i in range(8)]


def finish(p, br):
    p('v_rcp_f32 v7, v%d' % (O + 12))
    if br == 1:
        p('v_sub_f32 v%d, 1.0, v%d' % (VG, VG))
        p('s_add_u32 s30, s30, %d' % O_BR)
        p('s_add_u32 s31, s31, %d' % F2_BR)
    p('v_mul_f32 v16, v7, v%d' % VG)
    p('v_mul_f32 v17, v7, v%d' % VG)
    for r in range(0, 8, 2):
        p('v_pk_mul_f32 %s, %s, v[16:17]' % (v(O + r, 2), v(O + r, 2)))
    for i in range(4):
        p('v_cvt_pk_bf16_f32 v%d, v%d, v%d' % (PP + i, O + 2 * i, O + 2 * i + 1))
    p('buffer_store_dwordx4 %s, v%d, %s, s30 offen sc1' % (v(PP, 4), VL16, WS))
    for r in range(8, 12, 2):
        p('v_pk_mul_f32 %s, %s, v[16:17]' % (v(O + r, 2), v(O + r, 2)))
    p('v_lshlrev_b32 v7, 3, v0')
    for i in range(4, 6):
        p('v_cvt_pk_bf16_f32 v%d, v%d, v%d' % (PP + i, O + 2 * i, O + 2 * i + 1))
    p('s_mov_b32 exec_hi, 0')
    p('buffer_store_dwordx2 %s, v7, %s, s30 offen offset:1024 sc1' % (v(PP + 4, 2), WS))
    p('s_mov_b32 exec_hi, -1')


def half_max(p, M):
    p('v_mov_b32 v%d, v%d' % (M + 1, M))
    p('v_permlane32_swap_b32 v%d, v%d' % (M, M + 1))
    p('v_max_f32 v%d, v%d, v%d' % (M, M, M + 1))
    p('v_mov_b32 v%d, v%d' % (M + 1, M))


def subm(t, M):
    return ['v_pk_add_f32 %s, %s, %s neg_lo:[0,1] neg_hi:[0,1]' % (v(t + 2 * i, 2), v(t + 2 * i, 2), v(M, 2)) for i in range(8)]


sFV = 26


def safe_path(p, back):
    S0, S1, K2 = S, S + 16, S + 32
    M = 16
    p('v_mov_b32 v7, %s' % NEG_INF)
    emit_all(p, kread(0, 0, K2) + kread(8, 1, K2) + ['s_waitcnt lgkmcnt(0)'] + smf(S0, 0, K2) + smf(S1, 1, K2))
    k = p.newlabel('hasold')
    p('s_cmp_lg_u32 s%d, 0' % sR)
    p('s_cbranch_scc1 %s' % k)
    for r in range(16):
        p('v_mov_b32 v%d, v7' % (S0 + r))
    p.label(k)
    for r in range(16):
        p('v_cndmask_b32 v%d, v%d, v%d, %s' % (S1 + r, S0 + r, S1 + r, mask(r)))
    p('v_max_f32 v%d, v%d, v%d' % (M, S1, S1 + 1))
    for r in range(2, 16, 2):
        p('v_max3_f32 v%d, v%d, v%d, v%d' % (M, M, S1 + r, S1 + r + 1))
    for t in range(1, 8):
        k = p.newlabel('skip')
        p('s_cmp_gt_u32 s%d, %d' % (sFV, t))
        p('s_cbranch_scc1 %s' % k)
        emit_all(p, kread(t, 0, K2) + ['s_waitcnt lgkmcnt(0)'] + smf(S0, 0, K2))
        for r in range(0, 16, 2):
            p('v_max3_f32 v%d, v%d, v%d, v%d' % (M, M, S0 + r, S0 + r + 1))
        p.label(k)
    half_max(p, M)
    emit_all(p, vread(AV, 8, 0) + vread(AV, 0, 1) + subm(S1, M) + exps(S1) + cvts(S1, PP + 8))
    for i in range(8):
        p('v_and_b32 v%d, v%d, v%d' % (PP + i, PP + 8 + i, MSK + i))
    for i in range(8):
        p('v_xor_b32 v%d, v%d, v%d' % (PP + 8 + i, PP + 8 + i, PP + i))
    emit_all(p, ['s_waitcnt lgkmcnt(0)'] + pvm(0, PP, True) + pvm(1, PP + 8))
    for t in range(1, 8):
        k = p.newlabel('skip')
        p('s_cmp_gt_u32 s%d, %d' % (sFV, t))
        p('s_cbranch_scc1 %s' % k)
        emit_all(p, kread(t, 0, K2) + vread(AV, t, 0) + ['s_waitcnt lgkmcnt(0)'] + smf(S0, 0, K2) + subm(S0, M) + exps(S0) + cvts(S0, PP) + pvm(0, PP))
        p.label(k)
    p('s_branch %s' % back)


def zero_if(p, cmp_text, regs):
    k, L = p.newlabel('valid'), p.newlabel('zero')
    p(cmp_text)
    p('s_cbranch_scc1 %s' % L)
    p.label(k)

    def rare():
        p.label(L)
        for r in regs:
            p('v_mov_b32 v%d, 0' % r)
        p('s_branch %s' % k)
    cold.append(rare)


sWP = sCB


def wp_base(p):
    p('s_lshl_b32 s3, s%d, 3' % sW)
    p('s_add_u32 s3, s3, s%d' % sN)
    p('s_mul_i32 s3, s3, 25600')
    p('s_add_u32 s%d, s3, %d' % (sWP, WP_OFF))


def w_load(p, f):
    if f % 4 == 0 and f:
        p('s_add_u32 s%d, s%d, 4096' % (sWP, sWP))
    p('buffer_load_dwordx4 %s, v%d, %s, s%d offen offset:%d sc1' % (v(WF3 + f * 4, 4), VL16, WS, sWP, (f % 4) * 1024))


def phase2(p, grp):
    S0, S1, S2 = S, S + 16, S + 32
    safe, back = p.newlabel('safe'), p.newlabel('back')
    cold.append(lambda: (p.label(safe), safe_path(p, back)))
    sQB, sKP, sLATE = 28, 29, sROT
    p('s_barrier')
    stamp(p, 21)
    prio(p, 3)
    p('ds_read_b128 %s, v%d' % (v(Q1, 4), AQ1))
    p('s_mov_b32 exec_hi, 0')
    p('ds_read_b64 %s, v%d' % (v(Q2, 2), AQ2))
    p('s_mov_b32 exec_hi, -1')
    emit_all(p, kread(0, 0) + kread(8, 1))
    if grp == 0:
        wp_base(p)
    p('s_sub_u32 s%d, 8, s%d' % (sFV, sW))
    p('s_cmp_eq_u32 s%d, 0' % sR)
    p('s_cselect_b32 s%d, s%d, 0' % (sFV, sFV))
    p('v_mov_b32 v7, 0xffff')
    for i in range(8):
        p('v_cndmask_b32 v%d, 0, v7, %s' % (MSK + i, mask(2 * i)))
    p('s_waitcnt lgkmcnt(2)')
    a = smf(S0, 0)
    p(a[0])
    for i in range(4):
        p('v_cndmask_b32 v%d, v%d, -1, %s' % (MSK + i, MSK + i, mask(2 * i + 1)))
    p(a[1])
    emit_all(p, kread(1, 0))
    for i in range(4, 8):
        p('v_cndmask_b32 v%d, v%d, -1, %s' % (MSK + i, MSK + i, mask(2 * i + 1)))
    p('s_waitcnt lgkmcnt(2)')
    nvm = [0]
    wq = list(range(CFG['nwb0'] if grp else 0, 25))
    site = [0]

    def wl():
        site[0] += 1
        if site[0] <= 25 and (grp == 0 or site[0] > 25 - CFG['nwb1']):
            w_load(p, wq.pop(0))
            nvm[0] += 1
    pb = [
        'v_and_b32 v20, 1, v0',
        's_sub_u32 s3, s%d, 1' % sRB32,
        'v_add_u32 v21, s3, v20',
        'v_max_i32 v21, 0, v21',
        'v_lshrrev_b32 v23, 2, v0',
        'v_min_u32 v23, 2, v23',
        'v_cmp_eq_u32 vcc, 0, v23',
        'v_mul_u32_u24 v22, 5, v23',
        'v_mov_b32 v23, s%d' % sRB32,
        'v_and_b32 v20, 2, v0',
        'v_cndmask_b32 v21, v21, v23, vcc',
        'v_add_u32 v20, s%d, v20' % sC0,
        'v_lshrrev_b32 v20, 4, v20',
        'v_add_u32 v20, v20, v22',
        'v_lshl_add_u32 v20, v21, 4, v20',
        'v_lshlrev_b32 v20, 7, v20',
        'v_add_u32 v%d, %d, v20' % (VPOLL, F1B_OFF),
        'v_lshlrev_b32 v%d, 4, v%d' % (VGO, VM),
        'v_mov_b32 v%d, 0' % QB2,
        'v_mov_b32 v%d, 0' % (QB2 + 1),
    ]
    b = smf(S1, 1)
    emit_all(p, [b[0]] + pb[:6] + [b[1]] + kread(2, 1) + vread(AV, 8, 0) + vread(AV, 0, 1) + ['s_waitcnt lgkmcnt(10)'])
    c2 = smf(S2, 0)
    emit_all(p, [c2[0]] + pb[6:13] + [c2[1]] + pb[13:] + [wl])
    for r in range(16):
        p('v_cndmask_b32 v%d, v%d, v%d, %s' % (S1 + r, S0 + r, S1 + r, mask(r)))
    e = exps(S1)
    emit_all(p, [wl] + e[:8] + [wl] + e[8:] + [wl] + cvts(S1, PP + 8))
    for i in range(8):
        p('v_and_b32 v%d, v%d, v%d' % (PP + i, PP + 8 + i, MSK + i))
    wl()
    for i in range(8):
        p('v_xor_b32 v%d, v%d, v%d' % (PP + 8 + i, PP + 8 + i, PP + i))
    zero_if(p, 's_cmp_eq_u32 s%d, 0' % sR, range(PP + 8, PP + 16))
    stamp(p, 22)

    def b_loads():
        p('v_add_u32 v16, s%d, v%d' % (sODD, VHH))
        p('v_lshl_add_u32 v16, v16, 11, v%d' % VGO)
        p('s_cmp_eq_u32 s%d, 0' % sODD)
        p('s_cselect_b32 s4, 4096, 8')
        p('v_add_u32 v17, s4, v%d' % VGO)
        p('s_add_u32 s5, s%d, %d' % (sQB, 80 * 2048))
        p('s_add_u32 s6, s%d, %d' % (sKP, 80 * 2048))
        p('buffer_load_dwordx4 %s, v16, %s, s%d offen sc1' % (v(QB1, 4), WS, sQB))
        p('s_mov_b32 exec_hi, 0')
        p('buffer_load_dwordx2 %s, v17, %s, s%d offen sc1' % (v(QB2, 2), WS, sQB))
        p('s_mov_b32 exec_hi, -1')
        for st, so in ((0, 6), (1, 5)):
            p('buffer_load_dwordx4 %s, v16, %s, s%d offen sc1' % (v(KF + st * 8, 4), WS, so))
            p('buffer_load_dwordx2 %s, v17, %s, s%d offen sc1' % (v(KF + st * 8 + 4, 2), WS, so))
        p('s_sub_u32 s4, s%d, s%d' % (sQB, sKP))
        p('v_mul_lo_u32 v16, s4, v%d' % VHH)
        p('v_add_u32 v16, v16, v%d' % VGO)
        p('s_mul_i32 s4, s%d, %d' % (sW, VB_WAVE))
        for j in range(3):
            p('s_add_u32 m0, s4, %d' % (j * VB_STR))
            p('s_add_u32 s3, s%d, %d' % (sKP, (160 + j) * 2048))
            p('buffer_load_dwordx4 v16, %s, s3 offen sc1 lds' % WS)

    sc_b = [
        's_lshr_b32 s3, s%d, 2' % sRB32,
        's_mul_i32 s3, s3, %d' % QKV_RB,
        's_and_b32 s4, s%d, 3' % sRB32,
        's_lshl_b32 s4, s4, 9',
        's_add_u32 s3, s3, s4',
        's_lshl_b32 s5, s%d, 11' % sC0,
        's_add_u32 s5, s5, %d' % QKV_BR,
        's_add_u32 s%d, s3, s5' % sQB,
        's_sub_u32 s3, s%d, 1' % sRB32,
        's_max_i32 s4, s3, 0',
        's_lshr_b32 s3, s4, 2',
        's_mul_i32 s3, s3, %d' % QKV_RB,
        's_and_b32 s4, s4, 3',
        's_lshl_b32 s4, s4, 9',
        's_add_u32 s3, s3, s4',
        's_add_u32 s%d, s3, s5' % sKP,
        's_lshl_b32 s3, s%d, 5' % sRB32,
        's_add_u32 s3, s3, s%d' % sH,
        's_mul_i32 s4, s3, 1280',
        's_add_u32 s30, s4, %d' % O_OFF,
        's_lshl_b32 s4, s3, 7',
        's_add_u32 s31, s4, %d' % F2_OFF,
        's_lshl_b32 s3, s%d, 9' % sRB32,
        's_add_u32 s%d, s3, %d' % (sRB, G_OFF),
    ]
    gload = lambda: p('buffer_load_dwordx4 %s, v%d, %s, s%d offen sc1' % (v(VG, 4), VGO, WS, sRB))
    sb = lambda t: S + 16 * ((t + 1) % 3)
    for t in range(1, 8):
        cur = sb(t)
        e, c = exps(cur), cvts(cur, PP + 8 * (t & 1))
        sn = smf(sb(t + 1), t & 1) if t < 7 else []
        kr = kread(t + 2, (t + 1) & 1) if t < 6 else []
        vr = vread(AV, t, t & 1)
        if t in (1, 3, 5):
            prio(p, {1: 2, 3: 1, 5: 0}[t])
        p('s_waitcnt lgkmcnt(0)')
        if t == 1:
            po, pd = pvm(1, PP + 8, True), pvm(0, PP)
            L = ([po[0]] + kr + e[0:3] + [po[1], wl] + vr + e[3:6] + [sn[0], wl] + e[6:9] + [sn[1], wl] + e[9:12] + [pd[0], wl] + e[12:16]
                 + [pd[1]] + c)
        else:
            pv = pvm((t - 1) & 1, PP + 8 * ((t - 1) & 1))
            if t < 7:
                L = ([sn[0]] + kr + vr + e[0:4] + [pv[0], wl] + e[4:8] + c[0:2] + [sn[1], wl] + e[8:12] + c[2:4] + [pv[1], wl] + e[12:16] + [wl] + c[4:8])
            else:
                L = [pv[0]] + vr + e[0:4] + [pv[1]] + e[4:16] + c
        if t == 2:
            L2 = []
            for x in L:
                L2.append(x)
                if sc_b and isinstance(x, str) and x.startswith('v_exp'):
                    L2 += sc_b[:2]
                    del sc_b[:2]
            L = L2
        emit_all(p, L)
        zero_if(p, 's_cmp_gt_u32 s%d, %d' % (sFV, t), range(PP + 8 * (t & 1), PP + 8 * (t & 1) + 8))
        if t == CFG['flagblk'] and grp == 0:
            p('s_waitcnt vmcnt(%d)' % nvm[0])
            nonce_check(p)
            flag_store(p, sFL)
            nvm[0] += 1
            stamp(p, 23)
        if t == 5:
            gload()
            poll_issue(p, VPD, VPOLL)
        if t == 6:
            nb = p.newlabel('notyet')
            p('s_waitcnt vmcnt(0)')
            p('v_cmp_ne_u64 vcc, %s, %s' % (v(VPD, 2), v(VNON, 2)))
            p('s_mov_b32 s%d, 1' % sLATE)
            if CFG['force_late']:
                p('s_branch %s' % nb)
            else:
                p('s_cbranch_vccnz %s' % nb)
            p('s_mov_b32 s%d, 0' % sLATE)
            b_loads()
            if CFG['poll2']:
                j2 = p.newlabel('j2')
                p.label(j2)
                cold.append(lambda: (p.label(nb), poll_issue(p, VPD, VPOLL), p('s_branch %s' % j2)))
            else:
                p.label(nb)
            stamp(p, 24)
    p('s_waitcnt lgkmcnt(0)')
    emit_all(p, pvm(1, PP + 8))
    if CFG['poll2']:
        c2l, j3 = p.newlabel('chance2'), p.newlabel('j3')
        p('s_cmp_lg_u32 s%d, 0' % sLATE)
        p('s_cbranch_scc1 %s' % c2l)
        p.label(j3)

        def chance2():
            p.label(c2l)
            p('s_waitcnt vmcnt(0)')
            p('v_cmp_ne_u64 vcc, %s, %s' % (v(VPD, 2), v(VNON, 2)))
            if CFG['force_late'] == 2:
                p('s_branch %s' % j3)
            else:
                p('s_cbranch_vccnz %s' % j3)
            p('s_mov_b32 s%d, 0' % sLATE)
            b_loads()
            p('s_branch %s' % j3)
        cold.append(chance2)
    prio(p, 2)
    poll_check(p, VG + 2, gload)
    p('s_mov_b32 s3, %s' % f32(2.0 ** 60))
    p('v_cmp_gt_f32 s[6:7], s3, v%d' % (O + 12))
    p('v_pk_add_f32 v[16:17], %s, %s' % (v(O, 2), v(O + 2, 2)))
    for r in range(4, 12, 2):
        p('v_pk_add_f32 v[16:17], v[16:17], %s' % v(O + r, 2))
    p('v_cmp_lt_f32 vcc, %s, v%d' % (f32(2.0 ** -60), O + 12))
    p('v_add_f32 v7, v16, v17')
    p('s_mov_b32 s3, 0x7f800000')
    p('v_cmp_gt_f32 s[4:5], s3, abs(v7)')
    p('s_and_b64 s[6:7], s[6:7], vcc')
    p('s_and_b64 s[4:5], s[4:5], s[6:7]')
    p('s_cmp_eq_u64 s[4:5], -1')
    if CFG['force_safe']:
        p('s_branch %s' % safe)
    else:
        p('s_cbranch_scc0 %s' % safe)
    p.label(back)
    finish(p, 0)
    stamp(p, 25)
    late, lateb = p.newlabel('late'), p.newlabel('lateb')
    p('s_cmp_lg_u32 s%d, 0' % sLATE)
    p('s_cbranch_scc1 %s' % late)
    p.label(lateb)

    def late_path():
        p.label(late)
        poll_issue(p, VPD, VPOLL)
        p('s_waitcnt vmcnt(0)')
        flag_store(p, 31)
        poll_check(p, VPD, lambda: poll_issue(p, VPD, VPOLL))
        b_loads()
        p('s_waitcnt vmcnt(0)')
        p('s_branch %s' % lateb)
    cold.append(late_path)
    prio(p, 1)
    p('s_waitcnt vmcnt(2)')
    stamp(p, 26)
    M = 16
    a, b = smf(S0, 0, KF, QB1, QB2), smf(S1, 1, KF, QB1, QB2)
    po = p3_setup()
    emit_all(p, [a[0]] + vread(BV, 0, 1) + [a[1]] + vread(BV, 1, 0) + [b[0]] + po[:8] + [b[1]] + po[8:] + ['v_mov_b32 v7, %s' % NEG_INF])
    for r in range(16):
        p('v_cndmask_b32 v%d, v%d, v%d, %s' % (S1 + r, S0 + r, S1 + r, mask(r)))
    for r in range(16):
        p('v_cndmask_b32 v%d, v7, v%d, %s' % (S1 + r, S1 + r, vbm(r)))
    p('v_max_f32 v%d, v%d, v%d' % (M, S1, S1 + 1))
    p('v_max_f32 v%d, v%d, v%d' % (M + 1, S1 + 2, S1 + 3))
    for r in range(4, 16, 2):
        p('v_max3_f32 v%d, v%d, v%d, v%d' % (M + (r // 2) % 2, M + (r // 2) % 2, S1 + r, S1 + r + 1))
    p('v_max_f32 v%d, v%d, v%d' % (M, M, M + 1))
    half_max(p, M)
    emit_all(p, subm(S1, M) + exps(S1) + cvts(S1, PP + 8))
    for i in range(8):
        p('v_and_b32 v%d, v%d, v%d' % (PP + i, PP + 8 + i, MSK + i))
    p('s_waitcnt lgkmcnt(0)')
    pd = pvm(0, PP, True)
    p(pd[0])
    for i in range(8):
        p('v_xor_b32 v%d, v%d, v%d' % (PP + 8 + i, PP + 8 + i, PP + i))
    emit_all(p, [pd[1]] + pvm(1, PP + 8))
    p('s_waitcnt vmcnt(0)')
    flag_store(p, 31)
    stamp(p, 27)
    finish(p, 1)
    stamp(p, 28)
    if not wq:
        poll_issue(p, VPD, VPOLL)
        p('s_waitcnt vmcnt(1)')
        flag_store(p, 31)
        stamp(p, 29)
        p('s_barrier')
        pend3[0] = 1
    else:
        n = min(len(wq), CFG['nwb2'])
        for _ in range(n):
            w_load(p, wq.pop(0))
        p('s_waitcnt vmcnt(%d)' % n)
        flag_store(p, 31)
        stamp(p, 29)
        p('s_barrier')
        while wq:
            w_load(p, wq.pop(0))
        poll_issue(p, VPD, VPOLL)
        pend3[0] = 0


pend3 = [0]
VO1, VO2, VPW = 8, 9, 10
OF, ACC3 = 32, 112


def p3_setup():
    return [
        'v_and_b32 v15, 15, v0',
        'v_mul_u32_u24 v16, 1280, v%d' % VHH,
        'v_bfe_u32 v17, v0, 4, 1',
        'v_lshl_add_u32 v16, v17, 9, v16',
        'v_lshl_add_u32 v%d, v15, 4, v16' % VO1,
        'v_lshrrev_b32 v16, 4, v0',
        'v_mul_u32_u24 v16, 1280, v16',
        'v_lshl_add_u32 v%d, v15, 3, v16' % VO2,
        'v_mul_u32_u24 v15, 160, v15',
        'v_mul_u32_u24 v17, 10240, v17',
        'v_lshl_add_u32 v15, v%d, 4, v15' % VHH,
        's_mul_i32 s3, s%d, 20480' % sW,
        'v_add3_u32 v%d, v15, v17, s3' % VPW,
        's_lshr_b32 s4, s%d, 2' % sW,
        's_and_b32 s5, s%d, 3' % sW,
        's_lshl_b32 s3, s%d, 3' % sM,
        's_add_u32 s3, s3, s5',
        's_mul_i32 s6, s3, %d' % (8 * 1280),
        's_mul_i32 s7, s4, %d' % O_BR,
        's_add_u32 s6, s6, s7',
        's_add_u32 s27, s6, %d' % O_OFF,
        's_lshl_b32 s3, s3, 10',
        's_mul_i32 s7, s4, %d' % F2_BR,
        's_add_u32 s3, s3, s7',
        's_add_u32 s3, s3, %d' % F2_OFF,
        'v_and_b32 v16, 7, v0',
        'v_lshl_add_u32 v16, v16, 7, s3',
        'v_bfe_u32 v17, v0, 3, 1',
        'v_lshl_add_u32 v%d, v17, 12, v16' % VPOLL,
    ]


def phase3(p, grp):
    def tile_scalars(j):
        if CFG['orot']:
            p('s_add_u32 s3, s%d, %d' % (sN, j))
            p('s_and_b32 s3, s3, 3')
        else:
            p('s_mov_b32 s3, %d' % j)
        p('s_mul_i32 s%d, s3, 2560' % (68 + j))
        p('s_lshr_b32 s4, s3, 1')
        p('s_mul_i32 s4, s4, 40960')
        p('s_add_u32 s4, s4, s27')
        p('s_and_b32 s3, s3, 1')
        p('s_lshl_b32 s3, s3, 7')
        b = 72 + j * 4
        p('s_add_u32 s%d, s4, s3' % (b + 2))
        p('s_add_u32 s%d, s%d, 5120' % (b + 3, b + 2))
        p('s_add_u32 s%d, s%d, s3' % (b, b + 2))
        p('s_add_u32 s%d, s%d, 5120' % (b + 1, b))

    def loads(tt):
        b = 72 + tt * 4
        L = ['buffer_load_dwordx4 %s, v%d, %s, s%d offen offset:%d sc1' % (v(OF + (tt * 5 + st) * 4, 4), VO1, WS, b + st // 2, (st % 2) * 2560) for st in range(4)]
        L += ['buffer_load_dwordx2 %s, v%d, %s, s%d offen offset:1024 sc1' % (v(OF + (tt * 5 + 4) * 4 + j * 2, 2), VO2, WS, b + 2 + j) for j in range(2)]
        return L
    for j in range(4):
        tile_scalars(j)
    p('s_waitcnt vmcnt(%d)' % pend3[0])
    poll_check(p, VPD, lambda: poll_issue(p, VPD, VPOLL))
    stamp(p, 30)
    lq = sum([loads(tt) for tt in range(4)], [])
    nis = [0]

    def ld(n):
        for _ in range(n):
            if lq:
                p(lq.pop(0))
                nis[0] += 1
    ld(CFG['oup'])
    stamp(p, 31)

    def wr(tt, u):
        return 'ds_write_b128 v%d, %s offset:%d' % (16 + tt, v(ACC3 + (tt & 1) * 20 + u * 4, 4), u * 32)

    def mm(y1):
        for tt in range(4):
            p('v_add_u32 v%d, s%d, v%d' % (16 + tt, 68 + tt, VPW))
        for tt in range(4):
            if tt == y1:
                p('s_barrier')
            for st in range(5):
                done = tt * 6 + (st + 1 if st < 4 else 6)
                assert nis[0] >= done
                p('s_waitcnt vmcnt(%d)' % (nis[0] - done))
                for u in range(5):
                    acc = v(ACC3 + (tt & 1) * 20 + u * 4, 4)
                    p('v_mfma_f32_16x16x32_bf16 %s, %s, %s, %s' % (acc, v(WF3 + (st * 5 + u) * 4, 4), v(OF + (tt * 5 + st) * 4, 4), '0' if st == 0 else acc))
                    if tt > 0 and u == 2:
                        p(wr(tt - 1, st))
                    if u in (0, 4):
                        ld(1)
        for u in range(5):
            p(wr(3, u))

    if grp == 1:
        mm(CFG['y1'])
        stamp(p, 32)
        p('s_waitcnt lgkmcnt(0)')
        p('s_barrier')
        stamp_out(p)
        p('s_endpgm')
        return
    prio(p, 3)
    mm(-1)
    stamp(p, 32)
    p('s_mul_i32 s6, s%d, %d' % (sM, 64 * 1280))
    p('s_mul_i32 s7, s%d, 160' % sN)
    p('s_add_u32 s6, s6, s7')
    p('s_lshl_b32 s3, s%d, 6' % sW)
    p('v_add_u32 v7, s3, v0')
    p('v_lshlrev_b32 v8, 4, v7')
    p('v_add_u32 v9, 40960, v8')
    for rnd in range(3):
        p('v_add_u32 v15, %d, v7' % (rnd * 256))
        p('v_mul_u32_u24 v20, 6554, v15')
        p('v_lshrrev_b32 v20, 16, v20')
        p('v_mul_u32_u24 v20, %d, v20' % (1280 - 160))
        p('v_lshl_add_u32 v%d, v15, 4, v20' % (12 + rnd))
    p('v_add_u32 v10, 81920, v8')
    p('v_add_u32 v11, 81920, v9')
    p('s_waitcnt lgkmcnt(0)')
    p('s_barrier')
    prio(p, 0)
    SUM, TMP = 32, 56

    def rd(rnd, areg, buf):
        for k in range(4):
            for hf in range(2):
                p('ds_read_b128 %s, v%d offset:%d' % (v(TMP + buf * 32 + k * 8 + hf * 4, 4), areg + k // 2, (k % 2) * 20480 + hf * 10240 + rnd * 4096))

    def add4(rnd, buf, first):
        T = TMP + buf * 32
        for i in range(4):
            p('v_pk_add_f32 %s, %s, %s' % (v(T + 2 * i, 2), v(T + 2 * i, 2), v(T + 8 + 2 * i, 2)))
        for i in range(4):
            p('v_pk_add_f32 %s, %s, %s' % (v(T + 16 + 2 * i, 2), v(T + 16 + 2 * i, 2), v(T + 24 + 2 * i, 2)))
        if not first:
            for i in range(4):
                p('v_pk_add_f32 %s, %s, %s' % (v(T + 2 * i, 2), v(T + 2 * i, 2), v(SUM + rnd * 8 + 2 * i, 2)))
        for i in range(4):
            p('v_pk_add_f32 %s, %s, %s' % (v(SUM + rnd * 8 + 2 * i, 2), v(T + 2 * i, 2), v(T + 16 + 2 * i, 2)))

    def out(rnd):
        for i in range(4):
            p('v_cvt_pk_bf16_f32 v%d, v%d, v%d' % (20 + rnd * 4 + i, SUM + rnd * 8 + 2 * i, SUM + rnd * 8 + 2 * i + 1))
        p('buffer_store_dwordx4 %s, v%d, %s, s6 offen' % (v(20 + rnd * 4, 4), 12 + rnd, sr(S_OUT)))
    for rnd in range(3):
        rd(rnd, 8, 0)
        p('s_waitcnt lgkmcnt(0)')
        add4(rnd, 0, True)
    stamp(p, 33)
    prio(p, 3)
    p('s_barrier')
    stamp(p, 34)
    fin = p.newlabel('fin')
    rd(0, 10, 0)
    p('s_waitcnt lgkmcnt(7)')
    rd(1, 10, 1)
    p('s_waitcnt lgkmcnt(8)')
    two = p.newlabel('two')
    p('s_cmp_ge_u32 s%d, 2' % sW)
    p('s_cbranch_scc1 %s' % two)
    p('s_waitcnt lgkmcnt(7)')
    rd(2, 10, 2)
    add4(0, 0, False)
    out(0)
    p('s_waitcnt lgkmcnt(8)')
    add4(1, 1, False)
    out(1)
    p('s_waitcnt lgkmcnt(0)')
    add4(2, 2, False)
    out(2)
    p('s_branch %s' % fin)
    p.label(two)
    add4(0, 0, False)
    out(0)
    p('s_waitcnt lgkmcnt(0)')
    add4(1, 1, False)
    out(1)
    p.label(fin)
    stamp(p, 35)
    stamp_out(p)
    p('s_endpgm')


def kernel(p):
    del cold[:]
    end, spare, ltail, p2, comp = [p.newlabel(x) for x in ('end', 'spare', 'ltail', 'p2', 'comp')]
    prologue(p, end)
    p('s_cmp_ge_u32 s4, 30')
    p('s_cbranch_scc1 %s' % spare)
    p('s_cmp_lt_u32 s%d, 4' % sW)
    p('s_cbranch_scc1 %s' % comp)
    p1_loader(p)
    p.label(ltail)
    loader_tail(p)
    emit_all(p, p2_setup())
    wp_base(p)
    for f in range(CFG['nwb0']):
        w_load(p, f)
    p('s_waitcnt vmcnt(%d) lgkmcnt(0)' % CFG['nwb0'])
    stamp(p, 20)
    phase2(p, 1)
    phase3(p, 1)
    p.label(spare)
    p1_spare(p)
    k = p.newlabel('sp47')
    p('s_cmp_ge_u32 s%d, 4' % sW)
    p('s_cbranch_scc1 %s' % k)
    vb_masks(p)
    emit_all(p, p2_setup())
    p('s_branch %s' % p2)
    p.label(k)
    tail_scalars(p)
    ones_fill(p)
    poll_issue(p, VPD, VPOLL)
    p('s_branch %s' % ltail)
    p.label(end)
    p('s_endpgm')
    p.label(comp)
    p1_compute(p, p2_setup())
    p.label(p2)
    phase2(p, 0)
    phase3(p, 0)
    p.label('.Lhot_end')
    i = 0
    while i < len(cold):
        cold[i]()
        i += 1


HEADER = open('cdna_kernels/%s.s.ref' % NAME).read().split('; Override launch')[0]


def build(extra=None, **cfg):
    CFG.update(cfg)
    n = NAME + '_kernel'
    out = HEADER
    if extra:
        out += '; @launch kernel=%s grid=(256,1,1) block=(512,1,1) lds=%d\n' % (n, LDS_BYTES)
        out += '; @launch kernel=diag_kernel grid=(1,1,1) block=(64,1,1) lds=0\n'
    else:
        out += '; @launch grid=(256,1,1) block=(512,1,1) lds=%d\n' % LDS_BYTES
    out += '.amdgcn_target "amdgcn-amd-amdhsa--gfx950"\n.text\n'
    ks = [(n, kernel)] + ([('diag_kernel', extra)] if extra else [])
    desc = ''
    uid = 0
    for kn, f in ks:
        p = Prog()
        p.uid = uid
        p.label(kn)
        f(p)
        uid = p.uid
        nn = p.fix_hazards()
        ne = p.check_waits([kn])
        mx = p.max_regs()
        print(kn[-12:], 'instrs', len(p.ins), 'nops', nn, 'wait errors', ne, 'max regs', mx, file=sys.stderr)
        assert ne == 0
        out += '.globl %s\n.p2align 8\n.type %s,@function\n' % (kn, kn) + p.text()
        desc += '.p2align 6\n' + kernel_desc(kn, max(mx['v'] + 1, 8), 102)
    out += '.section .rodata,"a"\n' + desc
    return out


if __name__ == '__main__':
    cfg = {}
    args = []
    for a_ in sys.argv[1:]:
        if '=' in a_:
            k, val = a_.split('=')
            cfg[k] = eval(val)
        else:
            args.append(a_)
    path = args[0] if args else 'cdna_kernels/%s.s' % NAME
    open(path, 'w').write(build(**cfg))
```

```python
import sys, struct
sys.path.insert(0, 'gen')
from asm import *

NAME = 'gated_mix__sliding_block__sliding_local_dilated__prompt'

QKV_RB = 240 * 2048
QKV_BR = 16 * QKV_RB
O_OFF = 2 * QKV_BR
O_BR = 64 * 32 * 1280
G_OFF = O_OFF + 2 * O_BR
F1A_OFF = G_OFF + 32768
F1B_OFF = F1A_OFF + 64 * 16 * 128
F2_OFF = F1B_OFF + 64 * 16 * 128
F2_BR = 64 * 32 * 128
FW_OFF = F2_OFF + 2 * F2_BR
DUMMY_OFF = FW_OFF + 128 * 128
WP_OFF = DUMMY_OFF + 2048 * 128
WS_END = WP_OFF + 64 * 25600
ST_OFF = 28 << 20
WS_BYTES = 32 << 20
assert WS_END <= ST_OFF

X_BYTES = 2048 * 1280
WQ_BYTES = 640 * 3840
WO_BYTES = 640 * 1280
OUT_BYTES = 2048 * 1280

WSLOT = 8 * 2080
NWS = 6
XR_OFF = NWS * WSLOT
KA_OFF = XR_OFF
VA_OFF = KA_OFF + 20480
VA_STR = 8192 + 64
ONES_OFF = VA_OFF + 3 * VA_STR
ONES_LEN = 4608
QA_OFF = 149760
GW_OFF = QA_OFF + 12288
VB_WAVE = 3328
VB_STR = 1024 + 64
LDS_BYTES = 163840
assert ONES_OFF + ONES_LEN <= QA_OFF and GW_OFF + 1280 <= LDS_BYTES and VA_OFF % 256 == 0 and XR_OFF % 256 == 0
assert XR_OFF + 3 * 16384 <= GW_OFF

S_WS, S_OUT = 8, 12
sW, sFL, sH, sR, sC0, sODD, sRB32, sRB, sCB, sROT = 16, 17, 18, 19, 20, 21, 22, 23, 24, 25
sM, sN = sH, sR
T0 = 26
S_DBG = 32
sMASK = 36
sVB = 68
S_X, S_WA, S_WB, S_GW = 68, 72, 76, 80
KA_ = 36
WS = 's[%d:%d]' % (S_WS, S_WS + 3)

VNON = 2
VSTAMP = 6

CFG = dict(stamp=False, D=5, CF=17, rot=(4, 1, 0, 0), cpf=0, orot=True, fullflag=16, poll2=True, oup=12, flagblk=1, force_safe=False,
           force_late=False, wbwarm=0, tlb=False, prio=True, y1=3,
           quota={8: 6, 9: 6, 10: 6, 11: 2, 12: 2}, stA={11: 4, 12: 4}, flA=15, b1rate=2, nwb0=0, nwb1=0, nwb2=8, light=False)
SPIN = 1 << 15


def f32(x):
    return '0x%08x' % struct.unpack('<I', struct.pack('<f', x))[0]


QSCALE = (20 ** -0.5) * 1.4426950408889634
NEG_INF = '0xff800000'


def srd(p, d, ptr, nbytes):
    p('s_mov_b32 s%d, s%d' % (d, ptr))
    p('s_and_b32 s%d, s%d, 0xffff' % (d + 1, ptr + 1))
    p('s_mov_b32 s%d, 0x%x' % (d + 2, nbytes))
    p('s_mov_b32 s%d, 0x20000' % (d + 3))


def sr(d):
    return 's[%d:%d]' % (d, d + 3)


def prio(p, n):
    if CFG['prio']:
        p('s_setprio %d' % n)


def stamp(p, i):
    if CFG['stamp'] and not (CFG['light'] and i not in (0, 61)):
        p('%s s[100:101]' % ('s_memtime' if CFG['stamp'] == 'clk' else 's_memrealtime'))
        p('s_waitcnt lgkmcnt(0)')
        p('v_writelane_b32 v%d, s100, %d' % (VSTAMP, i))


def stamp_clk(p, i):
    if CFG['stamp']:
        p('s_memtime s[100:101]')
        p('s_waitcnt lgkmcnt(0)')
        p('v_writelane_b32 v%d, s100, %d' % (VSTAMP, i))


def stamp_out(p):
    if CFG['stamp']:
        p('s_waitcnt vmcnt(0)')
        stamp(p, 61)
        stamp_clk(p, 63)
        p('s_lshl_b32 s3, s2, 3')
        p('s_add_u32 s3, s3, s%d' % sW)
        p('s_lshl_b32 s3, s3, 8')
        p('s_add_u32 s3, s3, %d' % ST_OFF)
        p('v_lshlrev_b32 v7, 2, v0')
        p('buffer_store_dword v%d, v7, %s, s3 offen' % (VSTAMP, WS))
        p('s_waitcnt vmcnt(0)')


def nonce_issue(p):
    p('buffer_load_dwordx2 %s, off, %s, 0 sc1' % (v(VNON, 2), sr(S_DBG)))


cold = []


def nonce_check(p):
    ok, L = p.newlabel('nok'), p.newlabel('nsp')
    p('v_cmp_eq_u32 vcc, 0, v%d' % VNON)
    p('s_cbranch_vccnz %s' % L)
    p.label(ok)

    def rare():
        L2 = p.newlabel('nsp')
        p.label(L)
        p('s_mov_b32 s3, %d' % SPIN)
        p.label(L2)
        p('s_sleep 2')
        nonce_issue(p)
        p('s_sub_u32 s3, s3, 1')
        p('s_waitcnt vmcnt(0)')
        p('s_cbranch_scc1 %s' % ok)
        p('v_cmp_eq_u32 vcc, 0, v%d' % VNON)
        p('s_cbranch_vccnz %s' % L2)
        p('s_branch %s' % ok)
    cold.append(rare)


def flag_store(p, soff):
    if CFG['fullflag']:
        p('v_lshlrev_b32 v7, 3, v0')
        p('s_mov_b64 exec, 0x%x' % ((1 << CFG['fullflag']) - 1))
        p('buffer_store_dwordx2 %s, v7, %s, s%d offen sc1' % (v(VNON, 2), WS, soff))
        p('s_mov_b64 exec, -1')
        return
    p('s_mov_b64 exec, 1')
    p('buffer_store_dwordx2 %s, off, %s, s%d sc1' % (v(VNON, 2), WS, soff))
    p('s_mov_b64 exec, -1')


def poll_issue(p, vdat, voff):
    p('buffer_load_dwordx2 %s, v%d, %s, 0 offen sc1' % (v(vdat, 2), voff, WS))


def poll_check(p, vcmp, reissue):
    ok, L = p.newlabel('pok'), p.newlabel('psp')
    p('v_cmp_ne_u64 vcc, %s, %s' % (v(vcmp, 2), v(VNON, 2)))
    p('s_cbranch_vccz %s' % ok)
    p('s_mov_b32 s3, %d' % SPIN)
    p.label(L)
    reissue()
    p('s_sub_u32 s3, s3, 1')
    p('s_waitcnt vmcnt(0)')
    p('s_cbranch_scc1 %s' % ok)
    p('v_cmp_ne_u64 vcc, %s, %s' % (v(vcmp, 2), v(VNON, 2)))
    p('s_cbranch_vccnz %s' % L)
    p.label(ok)


def emit_all(p, L):
    for x in L:
        if callable(x):
            x()
        else:
            p(x)


def prologue(p, end):
    p('s_load_dwordx16 s[%d:%d], s[0:1], 0' % (KA_, KA_ + 15))
    p('s_load_dwordx4 s[%d:%d], s[0:1], 64' % (KA_ + 16, KA_ + 19))
    p('s_cmp_ge_u32 s2, 256')
    p('s_cbranch_scc1 %s' % end)
    if CFG['cpf'] == 2:
        k = p.newlabel('pc')
        p('s_getpc_b64 s[4:5]')
        p.label(k)
        p('s_lshr_b32 s3, s2, 3')
        p('v_lshl_add_u32 v4, v0, 5, s3')
        p('v_lshlrev_b32 v4, 7, v4')
        p('v_cmp_gt_u32 vcc, .Lhot_end-%s, v4' % k)
        p('s_and_saveexec_b64 s[6:7], vcc')
        k2 = p.newlabel('nopf')
        p('s_cbranch_execz %s' % k2)
        p('global_load_dword v253, v4, s[4:5]')
        p.label(k2)
        p('s_mov_b64 exec, -1')
    p('v_lshrrev_b32 v1, 6, v0')
    p('v_readfirstlane_b32 s%d, v1' % sW)
    p('v_and_b32 v0, 63, v0')
    if CFG['stamp']:
        p('v_mov_b32 v%d, 0' % VSTAMP)
        stamp(p, 0)
        if not CFG['light']:
            stamp_clk(p, 62)
    p('s_and_b32 s3, s2, 7')
    p('s_lshr_b32 s4, s2, 3')
    p('s_lshr_b32 s5, s3, 1')
    p('s_mul_i32 s5, s5, 30')
    p('s_add_u32 s5, s5, s4')
    p('s_lshr_b32 s%d, s5, 3' % sCB)
    p('s_and_b32 s5, s5, 7')
    p('s_and_b32 s6, s3, 1')
    p('s_lshl_b32 s6, s6, 3')
    p('s_add_u32 s%d, s5, s6' % sRB)


def late_scalars(p):
    srd(p, S_WS, KA_ + 18, WS_BYTES)
    srd(p, S_OUT, KA_ + 14, OUT_BYTES)
    srd(p, S_DBG, KA_ + 16, 256)
    p('s_and_b32 s3, s2, 7')
    p('s_lshr_b32 s4, s2, 3')
    p('s_and_b32 s7, s4, 3')
    p('s_lshl_b32 s3, s3, 2')
    p('s_add_u32 s%d, s3, s7' % sH)
    p('s_lshr_b32 s%d, s4, 2' % sR)
    p('s_and_b32 s%d, s%d, 1' % (sODD, sH))
    p('s_lshr_b32 s3, s%d, 1' % sH)
    p('s_mul_i32 s3, s3, 5')
    p('s_lshl_b32 s6, s%d, 1' % sODD)
    p('s_add_u32 s%d, s3, s6' % sC0)
    p('s_lshl_b32 s3, s%d, 3' % sR)
    p('s_add_u32 s%d, s3, s%d' % (sRB32, sW))
    p('s_lshl_b32 s3, s2, 3')
    p('s_add_u32 s3, s3, s%d' % sW)
    p('s_lshl_b32 s3, s3, 7')
    p('s_add_u32 s%d, s3, %d' % (sFL, DUMMY_OFF))
    for r in range(16):
        kl = 8 * (r // 4) + r % 4
        p('s_mov_b32 s%d, 0x%x' % (sMASK + 2 * r, (0xffffffff << kl) & 0xffffffff))
        p('s_mov_b32 s%d, 0x%x' % (sMASK + 2 * r + 1, (0xffffffff << (kl + 4)) & 0xffffffff))


def vb_masks(p):
    rotl = lambda x, n: ((x << n) | (x >> (32 - n))) & 0xffffffff
    for r in range(16):
        kl = 8 * (r // 4) + r % 4
        p('s_mov_b32 s%d, 0x%x' % (sVB + 2 * r, rotl(0x5555, kl)))
        p('s_mov_b32 s%d, 0x%x' % (sVB + 2 * r + 1, rotl(0x5555, kl + 4)))
    k, L = p.newlabel('vbok'), p.newlabel('vbfirst')
    p('s_cmp_eq_u32 s%d, 0' % sRB32)
    p('s_cbranch_scc1 %s' % L)
    p.label(k)

    def rare():
        p.label(L)
        for r in range(16):
            p('s_and_b64 %s, %s, %s' % (vbm(r), vbm(r), mask(r)))
        p('s_branch %s' % k)
    cold.append(rare)


def mask(r):
    return 's[%d:%d]' % (sMASK + 2 * r, sMASK + 2 * r + 1)


def vbm(r):
    return 's[%d:%d]' % (sVB + 2 * r, sVB + 2 * r + 1)


def p1_compute(p, tail_fill):
    D, CF = CFG['D'], CFG['CF']
    NB = D + 1
    VST, AX, AW = 1, 2, 4
    WF, ACC, X = 8, 32, 96
    p('v_and_b32 v16, 15, v0')
    p('v_lshrrev_b32 v17, 4, v0')
    p('v_lshrrev_b32 v18, 1, v16')
    p('v_xor_b32 v18, v18, v17')
    p('v_lshlrev_b32 v18, 4, v18')
    p('v_lshl_add_u32 v18, v16, 7, v18')
    p('s_lshl_b32 s3, s%d, 12' % sW)
    p('s_add_u32 s3, s3, %d' % XR_OFF)
    p('v_add_u32 v%d, s3, v18' % AX)
    p('v_xor_b32 v%d, 64, v%d' % (AX + 1, AX))
    p('v_bfe_u32 v18, v0, 2, 3')
    p('v_mul_u32_u24 v18, 2080, v18')
    p('v_lshrrev_b32 v19, 5, v0')
    p('v_lshl_add_u32 v18, v19, 10, v18')
    p('v_and_b32 v20, 3, v0')
    p('v_lshl_add_u32 v%d, v20, 3, v18' % AW)
    p('v_add_u32 v%d, %d, v%d' % (AW + 1, 3 * WSLOT, AW))
    p('v_and_b32 v18, 31, v0')
    p('v_lshlrev_b32 v18, 4, v18')
    p('v_lshl_add_u32 v18, v19, 11, v18')
    p('s_lshl_b32 s3, s%d, 9' % sW)
    p('v_add_u32 v%d, s3, v18' % VST)
    p('s_waitcnt lgkmcnt(0)')
    if CFG['wbwarm'] == 2:
        k = p.newlabel('nowarm')
        srd(p, S_WB, KA_ + 8, WQ_BYTES)
        p('s_cmp_gt_u32 s%d, 1' % sW)
        p('s_cbranch_scc1 %s' % k)
        p('s_lshl_b32 s3, s2, 1')
        p('s_add_u32 s3, s3, s%d' % sW)
        p('s_mul_i32 s3, s3, 5120')
        p('v_lshlrev_b32 v8, 7, v0')
        p('s_mov_b32 exec_hi, 0xff')
        p('buffer_load_dword v%d, v8, %s, s3 offen' % (X + 156, sr(S_WB)))
        p('s_mov_b32 exec_hi, -1')
        p.label(k)
    if CFG['wbwarm'] == 3:
        p('s_lshl_b32 s3, s2, 2')
        p('s_add_u32 s3, s3, s%d' % sW)
        p('s_mul_i32 s3, s3, 2560')
        p('s_add_u32 s4, s%d, s3' % (KA_ + 8))
        p('s_addc_u32 s5, s%d, 0' % (KA_ + 9))
        for i in range(20):
            p('s_load_dword s%d, s[4:5], %d' % (68 + i, i * 128))
        p('s_waitcnt lgkmcnt(0)')
    late_scalars(p)
    nn = p.newlabel('nononce')
    p('s_or_b32 s3, s2, s%d' % sW)
    p('s_cbranch_scc1 %s' % nn)
    p('s_memrealtime s[4:5]')
    p('s_waitcnt lgkmcnt(0)')
    p('s_or_b32 s4, s4, 1')
    p('v_mov_b32 v8, s4')
    p('v_mov_b32 v9, s5')
    p('v_mov_b32 v10, 0')
    p('v_mov_b32 v11, 0')
    p('s_mov_b64 exec, 1')
    p('buffer_atomic_cmpswap_x2 v[8:11], off, %s, 0 sc1' % sr(S_DBG))
    p('s_mov_b64 exec, -1')
    p.label(nn)
    if CFG['tlb']:
        k = p.newlabel('notlb')
        p('s_cmp_lg_u32 s%d, 3' % sW)
        p('s_cbranch_scc1 %s' % k)
        p('v_lshlrev_b32 v8, 20, v0')
        p('s_mov_b64 exec, 0xffffff')
        p('buffer_load_dword v7, v8, %s, 0 offen' % WS)
        p('s_mov_b64 exec, 7')
        p('buffer_load_dword v7, v8, %s, 0 offen' % sr(S_OUT))
        p('s_mov_b64 exec, -1')
        p.label(k)
    vb_masks(p)
    sQ, sSC = T0, T0 + 2
    p('s_mul_i32 s%d, s%d, %d' % (sQ, sRB, QKV_RB))
    p('s_lshl_b32 s3, s%d, 15' % sCB)
    p('s_add_u32 s%d, s%d, s3' % (sQ, sQ))
    p('s_cmp_lt_u32 s%d, 5' % sCB)
    p('s_cselect_b32 s%d, %s, 1.0' % (sSC, f32(QSCALE)))
    p('s_mov_b32 s%d, s%d' % (sSC + 1, sSC))
    p('s_lshl_b32 s3, s%d, 2' % sRB)
    p('s_add_u32 s3, s3, s%d' % sW)
    p('s_lshl_b32 s4, s3, 4')
    p('s_add_u32 s4, s4, s%d' % sCB)
    p('s_lshl_b32 s5, s4, 7')
    p('s_add_u32 s%d, s5, %d' % (sFL, F1B_OFF))

    frs = []
    for c in range(20):
        for i in range(16):
            if c < 10:
                st, u = i // 8, i % 8
                off = [(st * 2 + j) * 256 + u * 32 for j in range(2)]
                frs.append(dict(c=c, off=off, acc=u, xs=2 * c + st, first=(c == 0 and st == 0)))
            else:
                slab, cc = (c - 10) // 5, (c - 10) % 5
                st, u = i // 4, i % 4
                off = [(st * 2 + j) * 128 + u * 32 for j in range(2)]
                frs.append(dict(c=c, off=off, acc=slab * 4 + u, xs=4 * cc + st, first=(cc == 0 and st == 0)))
    pend = []

    def lds(text, tag):
        p(text)
        pend.append(tag)

    def need(tags):
        idx = [i for i, t in enumerate(pend) if t in tags]
        if idx:
            n = len(pend) - 1 - max(idx)
            assert n <= 15
            p('s_waitcnt lgkmcnt(%d)' % n)
            del pend[:max(idx) + 1]

    def st_(i):
        if CFG['stamp'] and not CFG['light']:
            stamp(p, i)
            del pend[:]

    def pre_read(f):
        fr = frs[f]
        if f % 16 == 0:
            c = fr['c']
            if c <= CF:
                p('s_barrier')
                if c in (0, 2, 6):
                    st_(2 + c // 2)
            if c < 10:
                for st in range(2):
                    for t in range(2):
                        lds('ds_read_b128 %s, v%d offset:%d' % (v(X + ((2 * c + st) * 2 + t) * 4, 4), AX + st, (c % 3) * 16384 + t * 2048), ('x', 2 * c + st))

    def w_read(f, j):
        fr = frs[f]
        slot = fr['c'] % NWS
        lds('ds_read_b64_tr_b16 %s, v%d offset:%d' % (v(WF + (f % NB) * 4 + j * 2, 2), AW + slot // 3, (slot % 3) * WSLOT + fr['off'][j]), ('w', f))

    def mf(f, t):
        fr = frs[f]
        acc = v(ACC + (fr['acc'] * 2 + t) * 4, 4)
        p('v_mfma_f32_16x16x32_bf16 %s, %s, %s, %s' % (acc, v(WF + (f % NB) * 4, 4), v(X + (fr['xs'] * 2 + t) * 4, 4), '0' if fr['first'] else acc))

    def conv(u, d):
        a0 = ACC + u * 8
        L = ['v_pk_mul_f32 %s, %s, s[%d:%d]' % (v(a0 + 2 * i, 2), v(a0 + 2 * i, 2), sSC, sSC + 1) for i in range(4)]
        L += ['v_cvt_pk_bf16_f32 v%d, v%d, v%d' % (d + i, a0 + 2 * i, a0 + 2 * i + 1) for i in range(4)]
        return L

    def swaps(d):
        return ['v_permlane16_swap_b32 v%d, v%d' % (d, d + 2), 'v_permlane16_swap_b32 v%d, v%d' % (d + 1, d + 3)]

    def store(br, u, d):
        return ['s_add_u32 s3, s%d, %d' % (sQ, br * QKV_BR + u * 4096) + '\n' +
                'buffer_store_dwordx4 %s, v%d, %s, s3 offen sc1' % (v(d, 4), VST, WS)]

    side = {}

    def add_side(f, L):
        side.setdefault(f, []).extend(L)
    L = []
    for u in range(4):
        L += conv(u, ACC + u * 8) + swaps(ACC + u * 8) + store(1, u, ACC + u * 8)
    f = 242
    while L:
        add_side(f, L[:CFG['b1rate']])
        del L[:CFG['b1rate']]
        f += 1

    stamp(p, 1)
    for f in range(D):
        pre_read(f)
        w_read(f, 0)
        w_read(f, 1)
    for f in range(320):
        g = f + D
        need({('w', f), ('x', frs[f]['xs'])})
        mf(f, 0)
        if g < 320:
            pre_read(g)
            w_read(g, 0)
        mf(f, 1)
        if g < 320:
            w_read(g, 1)
        emit_all(p, side.get(f, []))
        if f == 100 and (CFG['wbwarm'] == 2 or CFG['tlb'] or CFG['cpf'] == 2):
            p('s_waitcnt vmcnt(0)')
        if f == 159:
            st_(12)
            p('s_lshl_b32 s3, s%d, 13' % sW)
            p('s_add_u32 s3, s3, %d' % XR_OFF)
            p('v_lshl_add_u32 v7, v0, 4, s3')
            for u in range(8):
                emit_all(p, conv(u, ACC + u * 8))
                if u == 0:
                    p('s_waitcnt lgkmcnt(0)')
                    del pend[:]
                else:
                    lds('ds_write_b128 v7, %s offset:%d' % (v(ACC + (u - 1) * 8, 4), (u - 1) * 1024), ('s', u))
                emit_all(p, swaps(ACC + u * 8))
            p('s_waitcnt lgkmcnt(0)')
            del pend[:]
            lds('ds_write_b128 v7, %s offset:%d' % (v(ACC + 7 * 8, 4), 7 * 1024), ('s', 8))
            st_(13)
        if f == 239:
            st_(14)
            nonce_issue(p)
    st_(18)
    fill = list(tail_fill)
    per = (len(fill) + 3) // 4
    for u in range(4, 8):
        emit_all(p, conv(u, ACC + u * 8) + swaps(ACC + u * 8) + store(1, u, ACC + u * 8))
        emit_all(p, fill[:per])
        del fill[:per]
    st_(19)


VPOLL, VPD = 12, 14
sLWV, sRBQ = 84, 85
sTA = 86


def tail_scalars(p):
    p('s_sub_u32 s%d, s%d, 4' % (sLWV, sW))
    p('s_lshl_b32 s3, s%d, 1' % sR)
    p('s_add_u32 s3, s3, s%d' % sLWV)
    p('s_sub_u32 s3, s3, 2')
    p('s_max_i32 s%d, s3, 0' % sRBQ)
    p('v_and_b32 v20, 3, v0')
    p('s_lshl_b32 s3, s%d, 2' % sRBQ)
    p('v_add_u32 v21, s3, v20')
    p('v_and_b32 v23, 1, v0')
    p('s_lshl_b32 s3, s%d, 3' % sR)
    p('s_lshl_b32 s4, s%d, 1' % sLWV)
    p('s_add_u32 s3, s3, s4')
    p('v_add_u32 v20, s3, v23')
    p('v_cmp_gt_u32 vcc, 16, v0')
    p('v_cndmask_b32 v21, v20, v21, vcc')
    p('v_bfe_u32 v20, v0, 3, 1')
    p('v_mul_u32_u24 v20, 5, v20')
    p('v_add_u32 v20, 5, v20')
    p('v_cndmask_b32 v20, 0, v20, vcc')
    p('v_lshrrev_b32 v22, 1, v0')
    p('v_and_b32 v22, 2, v22')
    p('v_add_u32 v22, s%d, v22' % sC0)
    p('v_lshrrev_b32 v22, 4, v22')
    p('v_add_u32 v20, v20, v22')
    p('v_lshl_add_u32 v20, v21, 4, v20')
    p('v_lshlrev_b32 v20, 7, v20')
    p('v_add_u32 v20, %d, v20' % F1A_OFF)
    p('s_lshl_b32 s3, s%d, 3' % sLWV)
    p('s_add_u32 s3, s3, s%d' % sN)
    p('s_lshl_b32 s3, s3, 8')
    p('s_add_u32 s3, s3, %d' % FW_OFF)
    p('v_and_b32 v22, 2, v0')
    p('v_lshlrev_b32 v22, 12, v22')
    p('v_lshl_add_u32 v22, v23, 7, v22')
    p('v_add_u32 v22, s3, v22')
    p('v_cmp_gt_u32 vcc, 24, v0')
    p('v_cndmask_b32 v%d, v22, v20, vcc' % VPOLL)
    p('s_mul_i32 s%d, s%d, %d' % (sTA, sRBQ, QKV_RB))
    p('s_lshl_b32 s4, s%d, 11' % sC0)
    p('s_add_u32 s%d, s%d, s4' % (sTA, sTA))
    p('s_lshl_b32 s5, s%d, 11' % sODD)
    p('s_add_u32 s%d, s%d, s5' % (sTA + 1, sTA))
    p('s_cmp_eq_u32 s%d, 0' % sODD)
    p('s_cselect_b32 s6, 4096, 8')
    p('s_cselect_b32 s7, 4096, 0')
    p('s_add_u32 s%d, s%d, s6' % (sTA + 2, sTA))
    p('s_lshl_b32 s3, s%d, 1' % sR)
    p('s_lshr_b32 s6, s%d, 1' % sLWV)
    p('s_add_u32 s3, s3, s6')
    p('s_mul_i32 s3, s3, %d' % QKV_RB)
    p('s_and_b32 s6, s%d, 1' % sLWV)
    p('s_lshl_b32 s6, s6, 10')
    p('s_add_u32 s3, s3, s6')
    p('s_add_u32 s3, s3, s4')
    p('s_add_u32 s%d, s3, s5' % (sTA + 3))
    p('s_add_u32 s%d, s3, s7' % (sTA + 4))
    p('s_lshl_b32 s%d, s%d, 11' % (sTA + 5, sLWV))
    p('s_lshl_b32 s%d, s%d, 10' % (sTA + 6, sLWV))
    p('v_lshlrev_b32 v26, 4, v0')
    p('v_lshrrev_b32 v7, 1, v0')
    p('v_lshlrev_b32 v7, 4, v7')
    p('v_lshl_add_u32 v27, v23, 2, v7')


def ones_fill(p):
    for r in range(4):
        p('v_mov_b32 v%d, 0x3f803f80' % (28 + r))
    p('v_add_u32 v7, s%d, v26' % (sTA + 6))
    p('v_add_u32 v7, %d, v7' % ONES_OFF)
    p('ds_write_b128 v7, v[28:31]')
    p('v_lshlrev_b32 v7, 3, v0')
    p('v_add_u32 v7, %d, v7' % (ONES_OFF + 4096))
    p('ds_write_b64 v7, v[28:29]')


def p1_loader(p):
    CF = CFG['CF']
    VX, VWA, VWB = 8, 9, 10
    GX, GG, GA = 16, 18, 32
    prio(p, 2)
    p('s_sub_u32 s5, s%d, 4' % sW)
    G, m1, m2, m3 = CFG['rot']
    p('s_add_u32 s6, s%d, s%d' % (sRB, sCB))
    p('s_and_b32 s6, s6, %d' % (G - 1))
    p('s_mul_i32 s6, s6, %d' % m1)
    if m2:
        p('s_bfe_u32 s7, s2, 0x20001')
        p('s_mul_i32 s7, s7, %d' % m2)
        p('s_add_u32 s6, s6, s7')
    if m3:
        p('s_and_b32 s7, s2, 1')
        p('s_mul_i32 s7, s7, %d' % m3)
        p('s_add_u32 s6, s6, s7')
    p('s_mul_i32 s7, s6, 52')
    p('s_lshr_b32 s7, s7, 8')
    p('s_mul_i32 s7, s7, 5')
    p('s_sub_u32 s6, s6, s7')
    p('s_lshl_b32 s%d, s6, 1' % sROT)
    p('v_lshrrev_b32 v1, 3, v0')
    p('s_lshl_b32 s6, s5, 3')
    p('v_add_u32 v4, s6, v1')
    p('v_mul_u32_u24 v4, 1280, v4')
    p('v_lshrrev_b32 v5, 4, v0')
    p('s_and_b32 s6, s5, 1')
    p('s_lshl_b32 s6, s6, 2')
    p('v_add_u32 v7, s6, v5')
    p('v_and_b32 v11, 7, v0')
    p('v_xor_b32 v7, v7, v11')
    p('v_lshl_add_u32 v%d, v7, 4, v4' % VX)
    p('v_lshrrev_b32 v4, 5, v0')
    p('v_lshlrev_b32 v4, 5, v4')
    p('v_bfe_u32 v7, v0, 4, 1')
    p('v_lshl_add_u32 v4, v7, 2, v4')
    p('v_add_u32 v4, s5, v4')
    p('v_mul_u32_u24 v4, 3840, v4')
    p('v_and_b32 v7, 15, v0')
    p('v_lshl_add_u32 v%d, v7, 4, v4' % VWA)
    sXB, sWBs, sLX, sLW, sKX, sKW = T0, T0 + 1, T0 + 2, T0 + 3, T0 + 4, T0 + 5
    sGT = 93
    p('s_mul_i32 s%d, s%d, %d' % (sXB, sRB, 128 * 1280))
    p('s_lshl_b32 s%d, s%d, 8' % (sWBs, sCB))
    p('s_lshl_b32 s%d, s5, 10' % sLX)
    p('s_mul_i32 s%d, s5, 2080' % sLW)

    q = []
    for c in range(20):
        for t in range(4):
            q.append(('w', c, t, c - 4 if c >= NWS else -1))
            if c < 10:
                q.append(('x', c, t, c - 2 if c >= 3 else -1))
    cur = {'c': None}
    issued = []

    def kchunk(kk):
        p('s_add_u32 s3, s%d, %d' % (sROT, kk))
        p('s_cmp_ge_u32 s3, 10')
        p('s_cselect_b32 s4, 10, 0')
        p('s_sub_u32 s3, s3, s4')

    def kbase(c):
        if cur['c'] == c:
            return
        cur['c'] = c
        kchunk(c if c < 10 else 2 * ((c - 10) % 5))
        if c < 10:
            p('s_lshl_b32 s4, s3, 7')
            p('s_add_u32 s%d, s4, s%d' % (sKX, sXB))
        p('s_mul_i32 s4, s3, %d' % (64 * 3840))
        p('s_add_u32 s%d, s4, s%d' % (sKW, sWBs))

    def emit(it):
        kind, c, t, _ = it
        kbase(c)
        if kind == 'x':
            p('s_add_u32 m0, s%d, %d' % (sLX, XR_OFF + (c % 3) * 16384 + t * 4096))
            p('s_add_u32 s3, s%d, %d' % (sKX, t * 32 * 1280))
            p('buffer_load_dwordx4 v%d, %s, s3 offen lds' % (VX, sr(S_X)))
        else:
            kb, kh = t & 1, t >> 1
            p('s_add_u32 m0, s%d, %d' % (sLW, (c % NWS) * WSLOT + kb * 4 * 2080 + kh * 1024))
            p('s_add_u32 s3, s%d, %d' % (sKW, (16 * kh + 8 * kb) * 3840 + (128 * ((c - 10) // 5) if c >= 10 else 0)))
            p('buffer_load_dwordx4 v%d, %s, s3 offen lds' % (VWA if c < 10 else VWB, sr(S_WA if c < 10 else S_WB)))
        issued.append(c)

    kbase(0)
    p('s_waitcnt lgkmcnt(0)')
    srd(p, S_WA, KA_ + 2, WQ_BYTES)
    srd(p, S_X, KA_, X_BYTES)
    stamp(p, 1)
    for _ in range(8):
        emit(q.pop(0))
    srd(p, S_GW, KA_ + 12, 1280)
    srd(p, S_WB, KA_ + 8, WQ_BYTES)
    p('s_mul_i32 s3, s5, 320')
    p('s_add_u32 m0, s3, %d' % GW_OFF)
    p('v_lshlrev_b32 v7, 4, v0')
    p('s_mov_b64 exec, 0xfffff')
    p('buffer_load_dwordx4 v7, %s, s3 offen lds' % sr(S_GW))
    p('s_mov_b64 exec, -1')
    issued.append(0)
    for _ in range(8):
        emit(q.pop(0))
    late_scalars(p)
    p('s_sub_u32 s5, s%d, 4' % sW)
    p('v_lshlrev_b32 v4, 5, v5')
    p('v_and_b32 v7, 1, v1')
    p('v_lshl_add_u32 v4, v7, 2, v4')
    p('v_add_u32 v4, s5, v4')
    p('v_mul_u32_u24 v4, 3840, v4')
    p('v_lshl_add_u32 v%d, v11, 4, v4' % VWB)
    p('s_lshr_b32 s3, s%d, 3' % sCB)
    p('s_or_b32 s%d, s3, s5' % sGT)
    p('v_and_b32 v4, 15, v0')
    p('v_lshrrev_b32 v7, 1, v4')
    p('v_xor_b32 v7, v7, v5')
    p('v_lshlrev_b32 v7, 4, v7')
    p('v_lshl_add_u32 v7, v4, 7, v7')
    p('s_and_b32 s3, s%d, 7' % sCB)
    p('s_lshl_b32 s3, s3, 11')
    p('s_add_u32 s3, s3, %d' % XR_OFF)
    p('v_add_u32 v%d, s3, v7' % GX)
    p('v_xor_b32 v%d, 64, v%d' % (GX + 1, GX))
    p('v_lshlrev_b32 v7, 4, v5')
    p('v_add_u32 v%d, %d, v7' % (GG, GW_OFF))
    tail_scalars(p)
    p('s_lshl_b32 s3, s%d, 13' % sLWV)
    p('s_add_u32 s3, s3, %d' % XR_OFF)
    p('v_add_u32 v25, s3, v26')
    p('v_and_b32 v7, 31, v0')
    p('v_lshlrev_b32 v7, 4, v7')
    p('v_lshrrev_b32 v4, 5, v0')
    p('v_lshl_add_u32 v7, v4, 11, v7')
    p('s_lshl_b32 s3, s%d, 9' % sLWV)
    p('v_add_u32 v24, s3, v7')
    p('s_mul_i32 s94, s%d, %d' % (sRB, QKV_RB))
    p('s_lshl_b32 s3, s%d, 15' % sCB)
    p('s_add_u32 s94, s94, s3')
    p('s_lshl_b32 s3, s%d, 2' % sRB)
    p('s_add_u32 s3, s3, s%d' % sLWV)
    p('s_lshl_b32 s3, s3, 4')
    p('s_add_u32 s3, s3, s%d' % sCB)
    p('s_lshl_b32 s3, s3, 7')
    p('s_add_u32 s95, s3, %d' % F1A_OFF)
    sta = list(range(8))
    ilast = None
    for c in range(CF + 1):
        lim = c if c < CF else 19
        if c == CF:
            assert not q
        last = max(i for i, x in enumerate(issued) if x is not None and x <= lim)
        assert all(x[1] > lim for x in q)
        p('s_waitcnt vmcnt(%d)' % (len(issued) - 1 - last))
        if c % 2 == 0 and c < 8:
            stamp(p, 2 + (c + 1) // 2)
        if c >= 8:
            stamp(p, 36 + 2 * (c - 8))
        p('s_barrier')
        if c >= 8:
            stamp(p, 37 + 2 * (c - 8))
        quota = 8 if c < 8 else CFG['quota'].get(c, 8)
        if c == 11:
            for u in range(8):
                p('ds_read_b128 %s, v25 offset:%d' % (v(64 + u * 4, 4), u * 1024))
        if c == CFG['flA']:
            p('s_waitcnt vmcnt(%d)' % (len(issued) - 1 - ilast))
            flag_store(p, 95)
            issued.append(None)
            stamp(p, 16)
        while q and quota > 0 and q[0][3] <= c:
            emit(q.pop(0))
            quota -= 1
        if c == 11:
            p('s_waitcnt lgkmcnt(0)')
        for _ in range(CFG['stA'].get(c, 0)):
            u = sta.pop(0)
            p('s_add_u32 s3, s94, %d' % (u * 4096))
            p('buffer_store_dwordx4 %s, v24, %s, s3 offen sc1' % (v(64 + u * 4, 4), WS))
            issued.append(None)
            ilast = len(issued) - 1
        if c < 10:
            k = p.newlabel('nogate')
            p('s_cmp_lg_u32 s%d, 0' % sGT)
            p('s_cbranch_scc1 %s' % k)
            kchunk(c)
            p('s_lshl_b32 s3, s3, 7')
            p('v_add_u32 v%d, s3, v%d' % (GG + 1, GG))
            for st in range(2):
                p('ds_read_b128 %s, v%d offset:%d' % (v(36 + st * 8, 4), GX + st, (c % 3) * 16384))
                p('ds_read_b128 %s, v%d offset:%d' % (v(40 + st * 8, 4), GG + 1, st * 64))
            p('s_waitcnt lgkmcnt(0)')
            for st in range(2):
                p('v_mfma_f32_16x16x32_bf16 %s, %s, %s, %s' % (v(GA, 4), v(40 + st * 8, 4), v(36 + st * 8, 4), '0' if (c == 0 and st == 0) else v(GA, 4)))
            p.label(k)
        if c == 7:
            nonce_issue(p)
            issued.append(None)
            inon = len(issued) - 1
        if c == 13:
            ones_fill(p)
        if c == 10:
            p('s_waitcnt vmcnt(%d)' % (len(issued) - 1 - inon))
            nonce_check(p)
            p('s_mov_b32 s7, %s' % f32(-1.4426950408889634))
            p('v_mul_f32 v%d, s7, v%d' % (GA, GA))
            p('v_exp_f32 v%d, v%d' % (GA, GA))
            p('v_mov_b32 v%d, 0' % (GA + 1))
            p('v_add_f32 v%d, 1.0, v%d' % (GA, GA))
            p('v_rcp_f32 v%d, v%d' % (GA, GA))
            p('v_mov_b32 v%d, v%d' % (GA + 2, VNON))
            p('v_mov_b32 v%d, v%d' % (GA + 3, VNON + 1))
            p('s_lshl_b32 s3, s%d, 3' % sRB)
            p('s_add_u32 s3, s3, s%d' % sCB)
            p('s_lshl_b32 s3, s3, 8')
            p('s_add_u32 s3, s3, %d' % G_OFF)
            p('s_cmp_eq_u32 s%d, 0' % sGT)
            p('s_cselect_b32 s3, s3, s%d' % sFL)
            p('s_cselect_b32 exec_lo, 0xffff, 1')
            p('s_mov_b32 exec_hi, 0')
            p('buffer_store_dwordx4 %s, v26, %s, s3 offen sc1' % (v(GA, 4), WS))
            p('s_mov_b64 exec, -1')
            issued.append(None)
        if c == CF - 1:
            poll_issue(p, VPD, VPOLL)
            issued.append(None)


def loader_tail(p):
    p('s_waitcnt vmcnt(0)')
    stamp(p, 12)
    poll_check(p, VPD, lambda: poll_issue(p, VPD, VPOLL))
    stamp(p, 13)

    def dma(ldsb, ldsoff, gb, goff, vo=26, w='x4', n=1):
        p('s_add_u32 m0, s%d, %d' % (sTA + ldsb, ldsoff))
        p('s_add_u32 s3, s%d, %d' % (sTA + gb, goff))
        for i in range(n):
            p('buffer_load_dword%s v%d, %s, s3 offen offset:%d sc1 lds' % (w, vo, WS, i * 1024))
    for j in range(2):
        dma(6, QA_OFF + j * 4096, 3, j * 2048)
    dma(6, QA_OFF + 8192, 4, 0)
    for j in range(2):
        dma(5, KA_OFF + j * 8192, 1, (80 + j) * 2048, n=2)
    for i in range(4):
        dma(6, KA_OFF + 16384 + i * 256, 2, 80 * 2048 + i * 512, vo=27, w='')
    for j in range(3):
        dma(5, VA_OFF + j * VA_STR, 0, (160 + j) * 2048, n=2)
    stamp(p, 14)
    vb_masks(p)


def p1_spare(p):
    S_WO = S_X
    p('s_and_b32 s3, s2, 7')
    p('s_lshl_b32 s5, s3, 1')
    p('s_add_u32 s5, s5, s4')
    p('s_sub_u32 s%d, s5, 30' % T0)
    p('s_waitcnt lgkmcnt(0)')
    p('s_cmp_lt_u32 s%d, 8' % T0)
    p('s_cselect_b32 s6, s%d, s%d' % (KA_ + 4, KA_ + 10))
    p('s_cselect_b32 s7, s%d, s%d' % (KA_ + 5, KA_ + 11))
    srd(p, S_WO, 6, WO_BYTES)
    srd(p, S_WB, KA_ + 8, WQ_BYTES)
    late_scalars(p)
    if CFG['cpf'] == 1:
        k = p.newlabel('pc')
        p('s_getpc_b64 s[4:5]')
        p.label(k)
        p('s_sub_u32 s4, s4, %s-%s_kernel' % (k, NAME))
        p('s_subb_u32 s5, s5, 0')
        p('s_and_b32 s3, s%d, 1' % T0)
        p('s_lshl_b32 s3, s3, 3')
        p('s_add_u32 s3, s3, s%d' % sW)
        p('v_lshl_add_u32 v4, v0, 4, s3')
        p('v_lshlrev_b32 v4, 7, v4')
        p('v_min_u32 v4, .Lhot_end-%s_kernel, v4' % NAME)
        p('s_mov_b32 exec_hi, 0')
        p('global_load_dword v35, v4, s[4:5]')
        p('s_mov_b32 exec_hi, -1')
    if CFG['wbwarm'] == 1:
        p('v_lshlrev_b32 v4, 7, v0')
        p('s_lshl_b32 s3, s%d, 3' % T0)
        p('s_add_u32 s3, s3, s%d' % sW)
        p('s_mul_i32 s6, s3, 19200')
        p('s_mov_b32 exec_hi, 0x3ffff')
        for i in range(3):
            p('s_add_u32 s7, s6, %d' % (i * 6400))
            p('buffer_load_dword v%d, v4, %s, s7 offen' % (32 + i, sr(S_WB)))
        p('s_mov_b32 exec_hi, -1')
    for i in range(5):
        p('v_add_u32 v7, %d, v0' % (64 * i))
        p('v_mul_u32_u24 v8, 1639, v7')
        p('v_lshrrev_b32 v8, 16, v8')
        p('v_mul_u32_u24 v8, 640, v8')
        p('v_lshl_add_u32 v%d, v7, 4, v8' % (16 + i))
    p('s_bfe_u32 s3, s%d, 0x20001' % T0)
    p('s_mul_i32 s3, s3, 160')
    p('s_mul_i32 s4, s%d, 20' % sW)
    p('s_add_u32 s3, s3, s4')
    p('s_mul_i32 s3, s3, 1280')
    p('s_and_b32 s4, s%d, 1' % T0)
    p('s_mul_i32 s4, s4, 640')
    p('s_add_u32 s5, s3, s4')
    p('s_mul_i32 s6, s%d, 12800' % sW)
    for i in range(13):
        p('s_add_u32 m0, s6, %d' % (i * 1024))
        p('s_add_u32 s3, s5, %d' % ((i // 5) * 8 * 1280))
        if i == 12:
            p('s_mov_b32 exec_hi, 0')
        p('buffer_load_dwordx4 v%d, %s, s3 offen lds' % (16 + i % 5, sr(S_WO)))
        if i == 12:
            p('s_mov_b32 exec_hi, -1')
    nonce_issue(p)
    p('s_lshr_b32 s4, s%d, 1' % sW)
    p('s_mul_i32 s4, s4, 160')
    p('v_bfe_u32 v7, v0, 2, 3')
    p('v_lshrrev_b32 v8, 5, v0')
    p('v_mul_u32_u24 v8, 20, v8')
    p('v_add_u32 v8, v8, v7')
    p('v_mul_u32_u24 v8, 640, v8')
    p('v_and_b32 v9, 3, v0')
    p('v_lshl_add_u32 v9, v9, 3, s4')
    p('v_add_u32 v22, v8, v9')
    p('v_add_u32 v23, %d, v22' % (80 * 640))
    p('v_lshrrev_b32 v8, 4, v0')
    p('v_mul_u32_u24 v8, 20, v8')
    p('v_and_b32 v7, 3, v7')
    p('v_add3_u32 v8, v8, v7, 16')
    p('v_mul_u32_u24 v8, 640, v8')
    p('v_add_u32 v24, v8, v9')
    p('v_lshlrev_b32 v1, 4, v0')
    p('s_lshl_b32 s3, s%d, 2' % T0)
    p('s_lshr_b32 s4, s%d, 1' % sW)
    p('s_add_u32 s3, s3, s4')
    p('s_mul_i32 s5, s3, 25600')
    p('s_add_u32 s5, s5, %d' % WP_OFF)
    p('s_lshl_b32 s3, s%d, 3' % T0)
    p('s_add_u32 s3, s3, s%d' % sW)
    p('s_lshl_b32 s3, s3, 7')
    p('s_add_u32 s%d, s3, %d' % (T0 + 1, FW_OFF))
    p('s_waitcnt vmcnt(0)')
    stamp(p, 2)
    nonce_check(p)
    p('s_barrier')
    odd, done = p.newlabel('odd'), p.newlabel('packed')
    p('s_bitcmp1_b32 s%d, 0' % sW)
    p('s_cbranch_scc1 %s' % odd)
    for half, fr in ((0, range(0, 13)), (1, range(13, 25))):
        if half:
            p.label(odd)
        for n, f in enumerate(fr):
            st, u = f // 5, f % 5
            for j in range(2):
                d = v(32 + n * 4 + j * 2, 2)
                if st < 4:
                    p('ds_read_b64_tr_b16 %s, v%d offset:%d' % (d, 22 + st // 2, (st % 2) * 40 * 640 + j * 8 * 640 + u * 32))
                else:
                    p('ds_read_b64_tr_b16 %s, v24 offset:%d' % (d, j * 80 * 640 + u * 32))
            if n % 4 == 3:
                p('s_waitcnt lgkmcnt(4)')
        p('s_waitcnt lgkmcnt(0)')
        for n, f in enumerate(fr):
            p('s_add_u32 s3, s5, %d' % (f * 1024))
            p('buffer_store_dwordx4 %s, v1, %s, s3 offen sc1' % (v(32 + n * 4, 4), WS))
        if not half:
            p('s_branch %s' % done)
    p.label(done)
    p('s_waitcnt vmcnt(0)')
    flag_store(p, T0 + 1)
    p('s_barrier')
    stamp(p, 3)


VL16, VM, VHH = 1, 4, 5
AK1, AK2, AV, BV, VGO = 8, 9, 10, 11, 13
QB2, VG, Q1, Q2 = 18, 20, 24, 28
AQ1, AQ2 = 16, 17
MSK, KF, VF, PP, O, S, QB1 = 32, 40, 56, 72, 88, 104, 152
WF3 = 156


def p2_setup():
    return [
        'v_and_b32 v%d, 31, v0' % VM,
        'v_lshrrev_b32 v%d, 5, v0' % VHH,
        's_lshl_b32 s4, s%d, 5' % sW,
        'v_add_u32 v7, s4, v%d' % VM,
        'v_lshlrev_b32 v15, 13, v%d' % VHH,
        'v_lshl_add_u32 v15, v7, 4, v15',
        'v_add_u32 v%d, %d, v15' % (AK1, KA_OFF),
        'v_lshlrev_b32 v15, 3, v7',
        'v_add_u32 v%d, %d, v15' % (AK2, KA_OFF + 16384),
        'v_lshlrev_b32 v15, 12, v%d' % VHH,
        'v_lshl_add_u32 v15, v7, 4, v15',
        'v_add_u32 v%d, %d, v15' % (AQ1, QA_OFF),
        's_lshl_b32 s4, s%d, 3' % sODD,
        's_add_u32 s4, s4, %d' % (QA_OFF + 8192),
        'v_lshl_add_u32 v%d, v7, 4, s4' % AQ2,
        'v_mov_b32 v%d, 0' % Q2,
        'v_mov_b32 v%d, 0' % (Q2 + 1),
        'v_bfe_u32 v20, v0, 4, 1',
        'v_and_b32 v21, 3, v0',
        'v_lshl_add_u32 v20, v20, 2, v21',
        'v_add_u32 v21, s%d, v20' % sODD,
        'v_bfe_u32 v22, v0, 2, 2',
        'v_lshl_add_u32 v22, v%d, 2, v22' % VHH,
        'v_lshlrev_b32 v22, 4, v22',
        'v_and_b32 v23, 1, v21',
        'v_lshl_add_u32 v23, v23, 3, v22',
        'v_lshrrev_b32 v21, 1, v21',
        'v_cmp_lt_u32 vcc, 4, v20',
        's_lshl_b32 s4, s%d, 9' % sW,
        's_add_u32 s4, s4, %d' % VA_OFF,
        'v_mul_u32_u24 v7, %d, v21' % VA_STR,
        'v_add3_u32 v7, v7, v23, s4',
        'v_add_u32 v15, %d, v22' % ONES_OFF,
        'v_cndmask_b32 v%d, v7, v15, vcc' % AV,
        's_mul_i32 s4, s%d, %d' % (sW, VB_WAVE),
        'v_mul_u32_u24 v7, %d, v21' % VB_STR,
        'v_add3_u32 v7, v7, v23, s4',
        'v_cndmask_b32 v%d, v7, v15, vcc' % BV,
        'v_lshlrev_b32 v%d, 4, v0' % VL16,
    ]


def kread(t, st, kf=KF):
    return ['ds_read_b128 %s, v%d offset:%d' % (v(kf + st * 8, 4), AK1, t * 512),
            'ds_read_b64 %s, v%d offset:%d' % (v(kf + st * 8 + 4, 2), AK2, t * 256)]


def smf(dst, st, kf=KF, q1=Q1, q2=Q2):
    d = v(dst, 16)
    return ['v_mfma_f32_32x32x16_bf16 %s, %s, %s, 0' % (d, v(kf + st * 8, 4), v(q1, 4)),
            'v_mfma_f32_32x32x8_bf16 %s, %s, %s, %s' % (d, v(kf + st * 8 + 4, 2), v(q2, 2), d)]


def vread(av, t, st):
    return ['ds_read_b64_tr_b16 %s, v%d offset:%d' % (v(VF + st * 8 + m2 * 4 + j * 2, 2), av, t * 512 + m2 * 256 + j * 128) for m2 in range(2) for j in range(2)]


def pvm(st, pp, first=False):
    return ['v_mfma_f32_32x32x16_bf16 %s, %s, %s, %s' % (v(O, 16), v(VF + st * 8 + m2 * 4, 4), v(pp + m2 * 4, 4), '0' if (first and m2 == 0) else v(O, 16)) for m2 in range(2)]


def exps(t):
    return ['v_exp_f32 v%d, v%d' % (t + r, t + r) for r in range(16)]


def cvts(t, dst):
    return ['v_cvt_pk_bf16_f32 v%d, v%d, v%d' % (dst + i, t + 2 * i, t + 2 * i + 1) for i in range(8)]


def finish(p, br):
    p('v_rcp_f32 v7, v%d' % (O + 12))
    if br == 1:
        p('v_sub_f32 v%d, 1.0, v%d' % (VG, VG))
        p('s_add_u32 s30, s30, %d' % O_BR)
        p('s_add_u32 s31, s31, %d' % F2_BR)
    p('v_mul_f32 v16, v7, v%d' % VG)
    p('v_mul_f32 v17, v7, v%d' % VG)
    for r in range(0, 8, 2):
        p('v_pk_mul_f32 %s, %s, v[16:17]' % (v(O + r, 2), v(O + r, 2)))
    for i in range(4):
        p('v_cvt_pk_bf16_f32 v%d, v%d, v%d' % (PP + i, O + 2 * i, O + 2 * i + 1))
    p('buffer_store_dwordx4 %s, v%d, %s, s30 offen sc1' % (v(PP, 4), VL16, WS))
    for r in range(8, 12, 2):
        p('v_pk_mul_f32 %s, %s, v[16:17]' % (v(O + r, 2), v(O + r, 2)))
    p('v_lshlrev_b32 v7, 3, v0')
    for i in range(4, 6):
        p('v_cvt_pk_bf16_f32 v%d, v%d, v%d' % (PP + i, O + 2 * i, O + 2 * i + 1))
    p('s_mov_b32 exec_hi, 0')
    p('buffer_store_dwordx2 %s, v7, %s, s30 offen offset:1024 sc1' % (v(PP + 4, 2), WS))
    p('s_mov_b32 exec_hi, -1')


def half_max(p, M):
    p('v_mov_b32 v%d, v%d' % (M + 1, M))
    p('v_permlane32_swap_b32 v%d, v%d' % (M, M + 1))
    p('v_max_f32 v%d, v%d, v%d' % (M, M, M + 1))
    p('v_mov_b32 v%d, v%d' % (M + 1, M))


def subm(t, M):
    return ['v_pk_add_f32 %s, %s, %s neg_lo:[0,1] neg_hi:[0,1]' % (v(t + 2 * i, 2), v(t + 2 * i, 2), v(M, 2)) for i in range(8)]


sFV = 26


def safe_path(p, back):
    S0, S1, K2 = S, S + 16, S + 32
    M = 16
    p('v_mov_b32 v7, %s' % NEG_INF)
    emit_all(p, kread(0, 0, K2) + kread(8, 1, K2) + ['s_waitcnt lgkmcnt(0)'] + smf(S0, 0, K2) + smf(S1, 1, K2))
    k = p.newlabel('hasold')
    p('s_cmp_lg_u32 s%d, 0' % sR)
    p('s_cbranch_scc1 %s' % k)
    for r in range(16):
        p('v_mov_b32 v%d, v7' % (S0 + r))
    p.label(k)
    for r in range(16):
        p('v_cndmask_b32 v%d, v%d, v%d, %s' % (S1 + r, S0 + r, S1 + r, mask(r)))
    p('v_max_f32 v%d, v%d, v%d' % (M, S1, S1 + 1))
    for r in range(2, 16, 2):
        p('v_max3_f32 v%d, v%d, v%d, v%d' % (M, M, S1 + r, S1 + r + 1))
    for t in range(1, 8):
        k = p.newlabel('skip')
        p('s_cmp_gt_u32 s%d, %d' % (sFV, t))
        p('s_cbranch_scc1 %s' % k)
        emit_all(p, kread(t, 0, K2) + ['s_waitcnt lgkmcnt(0)'] + smf(S0, 0, K2))
        for r in range(0, 16, 2):
            p('v_max3_f32 v%d, v%d, v%d, v%d' % (M, M, S0 + r, S0 + r + 1))
        p.label(k)
    half_max(p, M)
    emit_all(p, vread(AV, 8, 0) + vread(AV, 0, 1) + subm(S1, M) + exps(S1) + cvts(S1, PP + 8))
    for i in range(8):
        p('v_and_b32 v%d, v%d, v%d' % (PP + i, PP + 8 + i, MSK + i))
    for i in range(8):
        p('v_xor_b32 v%d, v%d, v%d' % (PP + 8 + i, PP + 8 + i, PP + i))
    emit_all(p, ['s_waitcnt lgkmcnt(0)'] + pvm(0, PP, True) + pvm(1, PP + 8))
    for t in range(1, 8):
        k = p.newlabel('skip')
        p('s_cmp_gt_u32 s%d, %d' % (sFV, t))
        p('s_cbranch_scc1 %s' % k)
        emit_all(p, kread(t, 0, K2) + vread(AV, t, 0) + ['s_waitcnt lgkmcnt(0)'] + smf(S0, 0, K2) + subm(S0, M) + exps(S0) + cvts(S0, PP) + pvm(0, PP))
        p.label(k)
    p('s_branch %s' % back)


def zero_if(p, cmp_text, regs):
    k, L = p.newlabel('valid'), p.newlabel('zero')
    p(cmp_text)
    p('s_cbranch_scc1 %s' % L)
    p.label(k)

    def rare():
        p.label(L)
        for r in regs:
            p('v_mov_b32 v%d, 0' % r)
        p('s_branch %s' % k)
    cold.append(rare)


sWP = sCB


def wp_base(p):
    p('s_lshl_b32 s3, s%d, 3' % sW)
    p('s_add_u32 s3, s3, s%d' % sN)
    p('s_mul_i32 s3, s3, 25600')
    p('s_add_u32 s%d, s3, %d' % (sWP, WP_OFF))


def w_load(p, f):
    if f % 4 == 0 and f:
        p('s_add_u32 s%d, s%d, 4096' % (sWP, sWP))
    p('buffer_load_dwordx4 %s, v%d, %s, s%d offen offset:%d sc1' % (v(WF3 + f * 4, 4), VL16, WS, sWP, (f % 4) * 1024))


def phase2(p, grp):
    S0, S1, S2 = S, S + 16, S + 32
    safe, back = p.newlabel('safe'), p.newlabel('back')
    cold.append(lambda: (p.label(safe), safe_path(p, back)))
    sQB, sKP, sLATE = 28, 29, sROT
    p('s_barrier')
    stamp(p, 21)
    prio(p, 3)
    p('ds_read_b128 %s, v%d' % (v(Q1, 4), AQ1))
    p('s_mov_b32 exec_hi, 0')
    p('ds_read_b64 %s, v%d' % (v(Q2, 2), AQ2))
    p('s_mov_b32 exec_hi, -1')
    emit_all(p, kread(0, 0) + kread(8, 1))
    if grp == 0:
        wp_base(p)
    p('s_sub_u32 s%d, 8, s%d' % (sFV, sW))
    p('s_cmp_eq_u32 s%d, 0' % sR)
    p('s_cselect_b32 s%d, s%d, 0' % (sFV, sFV))
    p('v_mov_b32 v7, 0xffff')
    for i in range(8):
        p('v_cndmask_b32 v%d, 0, v7, %s' % (MSK + i, mask(2 * i)))
    p('s_waitcnt lgkmcnt(2)')
    a = smf(S0, 0)
    p(a[0])
    for i in range(4):
        p('v_cndmask_b32 v%d, v%d, -1, %s' % (MSK + i, MSK + i, mask(2 * i + 1)))
    p(a[1])
    emit_all(p, kread(1, 0))
    for i in range(4, 8):
        p('v_cndmask_b32 v%d, v%d, -1, %s' % (MSK + i, MSK + i, mask(2 * i + 1)))
    p('s_waitcnt lgkmcnt(2)')
    nvm = [0]
    wq = list(range(CFG['nwb0'] if grp else 0, 25))
    site = [0]

    def wl():
        site[0] += 1
        if site[0] <= 25 and (grp == 0 or site[0] > 25 - CFG['nwb1']):
            w_load(p, wq.pop(0))
            nvm[0] += 1
    pb = [
        'v_and_b32 v20, 1, v0',
        's_sub_u32 s3, s%d, 1' % sRB32,
        'v_add_u32 v21, s3, v20',
        'v_max_i32 v21, 0, v21',
        'v_lshrrev_b32 v23, 2, v0',
        'v_min_u32 v23, 2, v23',
        'v_cmp_eq_u32 vcc, 0, v23',
        'v_mul_u32_u24 v22, 5, v23',
        'v_mov_b32 v23, s%d' % sRB32,
        'v_and_b32 v20, 2, v0',
        'v_cndmask_b32 v21, v21, v23, vcc',
        'v_add_u32 v20, s%d, v20' % sC0,
        'v_lshrrev_b32 v20, 4, v20',
        'v_add_u32 v20, v20, v22',
        'v_lshl_add_u32 v20, v21, 4, v20',
        'v_lshlrev_b32 v20, 7, v20',
        'v_add_u32 v%d, %d, v20' % (VPOLL, F1B_OFF),
        'v_lshlrev_b32 v%d, 4, v%d' % (VGO, VM),
        'v_mov_b32 v%d, 0' % QB2,
        'v_mov_b32 v%d, 0' % (QB2 + 1),
    ]
    b = smf(S1, 1)
    emit_all(p, [b[0]] + pb[:6] + [b[1]] + kread(2, 1) + vread(AV, 8, 0) + vread(AV, 0, 1) + ['s_waitcnt lgkmcnt(10)'])
    c2 = smf(S2, 0)
    emit_all(p, [c2[0]] + pb[6:13] + [c2[1]] + pb[13:] + [wl])
    for r in range(16):
        p('v_cndmask_b32 v%d, v%d, v%d, %s' % (S1 + r, S0 + r, S1 + r, mask(r)))
    e = exps(S1)
    emit_all(p, [wl] + e[:8] + [wl] + e[8:] + [wl] + cvts(S1, PP + 8))
    for i in range(8):
        p('v_and_b32 v%d, v%d, v%d' % (PP + i, PP + 8 + i, MSK + i))
    wl()
    for i in range(8):
        p('v_xor_b32 v%d, v%d, v%d' % (PP + 8 + i, PP + 8 + i, PP + i))
    zero_if(p, 's_cmp_eq_u32 s%d, 0' % sR, range(PP + 8, PP + 16))
    stamp(p, 22)

    def b_loads():
        p('v_add_u32 v16, s%d, v%d' % (sODD, VHH))
        p('v_lshl_add_u32 v16, v16, 11, v%d' % VGO)
        p('s_cmp_eq_u32 s%d, 0' % sODD)
        p('s_cselect_b32 s4, 4096, 8')
        p('v_add_u32 v17, s4, v%d' % VGO)
        p('s_add_u32 s5, s%d, %d' % (sQB, 80 * 2048))
        p('s_add_u32 s6, s%d, %d' % (sKP, 80 * 2048))
        p('buffer_load_dwordx4 %s, v16, %s, s%d offen sc1' % (v(QB1, 4), WS, sQB))
        p('s_mov_b32 exec_hi, 0')
        p('buffer_load_dwordx2 %s, v17, %s, s%d offen sc1' % (v(QB2, 2), WS, sQB))
        p('s_mov_b32 exec_hi, -1')
        for st, so in ((0, 6), (1, 5)):
            p('buffer_load_dwordx4 %s, v16, %s, s%d offen sc1' % (v(KF + st * 8, 4), WS, so))
            p('buffer_load_dwordx2 %s, v17, %s, s%d offen sc1' % (v(KF + st * 8 + 4, 2), WS, so))
        p('s_sub_u32 s4, s%d, s%d' % (sQB, sKP))
        p('v_mul_lo_u32 v16, s4, v%d' % VHH)
        p('v_add_u32 v16, v16, v%d' % VGO)
        p('s_mul_i32 s4, s%d, %d' % (sW, VB_WAVE))
        for j in range(3):
            p('s_add_u32 m0, s4, %d' % (j * VB_STR))
            p('s_add_u32 s3, s%d, %d' % (sKP, (160 + j) * 2048))
            p('buffer_load_dwordx4 v16, %s, s3 offen sc1 lds' % WS)

    sc_b = [
        's_lshr_b32 s3, s%d, 2' % sRB32,
        's_mul_i32 s3, s3, %d' % QKV_RB,
        's_and_b32 s4, s%d, 3' % sRB32,
        's_lshl_b32 s4, s4, 9',
        's_add_u32 s3, s3, s4',
        's_lshl_b32 s5, s%d, 11' % sC0,
        's_add_u32 s5, s5, %d' % QKV_BR,
        's_add_u32 s%d, s3, s5' % sQB,
        's_sub_u32 s3, s%d, 1' % sRB32,
        's_max_i32 s4, s3, 0',
        's_lshr_b32 s3, s4, 2',
        's_mul_i32 s3, s3, %d' % QKV_RB,
        's_and_b32 s4, s4, 3',
        's_lshl_b32 s4, s4, 9',
        's_add_u32 s3, s3, s4',
        's_add_u32 s%d, s3, s5' % sKP,
        's_lshl_b32 s3, s%d, 5' % sRB32,
        's_add_u32 s3, s3, s%d' % sH,
        's_mul_i32 s4, s3, 1280',
        's_add_u32 s30, s4, %d' % O_OFF,
        's_lshl_b32 s4, s3, 7',
        's_add_u32 s31, s4, %d' % F2_OFF,
        's_lshl_b32 s3, s%d, 9' % sRB32,
        's_add_u32 s%d, s3, %d' % (sRB, G_OFF),
    ]
    gload = lambda: p('buffer_load_dwordx4 %s, v%d, %s, s%d offen sc1' % (v(VG, 4), VGO, WS, sRB))
    sb = lambda t: S + 16 * ((t + 1) % 3)
    for t in range(1, 8):
        cur = sb(t)
        e, c = exps(cur), cvts(cur, PP + 8 * (t & 1))
        sn = smf(sb(t + 1), t & 1) if t < 7 else []
        kr = kread(t + 2, (t + 1) & 1) if t < 6 else []
        vr = vread(AV, t, t & 1)
        if t in (1, 3, 5):
            prio(p, {1: 2, 3: 1, 5: 0}[t])
        p('s_waitcnt lgkmcnt(0)')
        if t == 1:
            po, pd = pvm(1, PP + 8, True), pvm(0, PP)
            L = ([po[0]] + kr + e[0:3] + [po[1], wl] + vr + e[3:6] + [sn[0], wl] + e[6:9] + [sn[1], wl] + e[9:12] + [pd[0], wl] + e[12:16]
                 + [pd[1]] + c)
        else:
            pv = pvm((t - 1) & 1, PP + 8 * ((t - 1) & 1))
            if t < 7:
                L = ([sn[0]] + kr + vr + e[0:4] + [pv[0], wl] + e[4:8] + c[0:2] + [sn[1], wl] + e[8:12] + c[2:4] + [pv[1], wl] + e[12:16] + [wl] + c[4:8])
            else:
                L = [pv[0]] + vr + e[0:4] + [pv[1]] + e[4:16] + c
        if t == 2:
            L2 = []
            for x in L:
                L2.append(x)
                if sc_b and isinstance(x, str) and x.startswith('v_exp'):
                    L2 += sc_b[:2]
                    del sc_b[:2]
            L = L2
        emit_all(p, L)
        zero_if(p, 's_cmp_gt_u32 s%d, %d' % (sFV, t), range(PP + 8 * (t & 1), PP + 8 * (t & 1) + 8))
        if t == CFG['flagblk'] and grp == 0:
            p('s_waitcnt vmcnt(%d)' % nvm[0])
            nonce_check(p)
            flag_store(p, sFL)
            nvm[0] += 1
            stamp(p, 23)
        if t == 5:
            gload()
            poll_issue(p, VPD, VPOLL)
        if t == 6:
            nb = p.newlabel('notyet')
            p('s_waitcnt vmcnt(0)')
            p('v_cmp_ne_u64 vcc, %s, %s' % (v(VPD, 2), v(VNON, 2)))
            p('s_mov_b32 s%d, 1' % sLATE)
            if CFG['force_late']:
                p('s_branch %s' % nb)
            else:
                p('s_cbranch_vccnz %s' % nb)
            p('s_mov_b32 s%d, 0' % sLATE)
            b_loads()
            if CFG['poll2']:
                j2 = p.newlabel('j2')
                p.label(j2)
                cold.append(lambda: (p.label(nb), poll_issue(p, VPD, VPOLL), p('s_branch %s' % j2)))
            else:
                p.label(nb)
            stamp(p, 24)
    p('s_waitcnt lgkmcnt(0)')
    emit_all(p, pvm(1, PP + 8))
    if CFG['poll2']:
        c2l, j3 = p.newlabel('chance2'), p.newlabel('j3')
        p('s_cmp_lg_u32 s%d, 0' % sLATE)
        p('s_cbranch_scc1 %s' % c2l)
        p.label(j3)

        def chance2():
            p.label(c2l)
            p('s_waitcnt vmcnt(0)')
            p('v_cmp_ne_u64 vcc, %s, %s' % (v(VPD, 2), v(VNON, 2)))
            if CFG['force_late'] == 2:
                p('s_branch %s' % j3)
            else:
                p('s_cbranch_vccnz %s' % j3)
            p('s_mov_b32 s%d, 0' % sLATE)
            b_loads()
            p('s_branch %s' % j3)
        cold.append(chance2)
    prio(p, 2)
    poll_check(p, VG + 2, gload)
    p('s_mov_b32 s3, %s' % f32(2.0 ** 60))
    p('v_cmp_gt_f32 s[6:7], s3, v%d' % (O + 12))
    p('v_pk_add_f32 v[16:17], %s, %s' % (v(O, 2), v(O + 2, 2)))
    for r in range(4, 12, 2):
        p('v_pk_add_f32 v[16:17], v[16:17], %s' % v(O + r, 2))
    p('v_cmp_lt_f32 vcc, %s, v%d' % (f32(2.0 ** -60), O + 12))
    p('v_add_f32 v7, v16, v17')
    p('s_mov_b32 s3, 0x7f800000')
    p('v_cmp_gt_f32 s[4:5], s3, abs(v7)')
    p('s_and_b64 s[6:7], s[6:7], vcc')
    p('s_and_b64 s[4:5], s[4:5], s[6:7]')
    p('s_cmp_eq_u64 s[4:5], -1')
    if CFG['force_safe']:
        p('s_branch %s' % safe)
    else:
        p('s_cbranch_scc0 %s' % safe)
    p.label(back)
    finish(p, 0)
    stamp(p, 25)
    late, lateb = p.newlabel('late'), p.newlabel('lateb')
    p('s_cmp_lg_u32 s%d, 0' % sLATE)
    p('s_cbranch_scc1 %s' % late)
    p.label(lateb)

    def late_path():
        p.label(late)
        poll_issue(p, VPD, VPOLL)
        p('s_waitcnt vmcnt(0)')
        flag_store(p, 31)
        poll_check(p, VPD, lambda: poll_issue(p, VPD, VPOLL))
        b_loads()
        p('s_waitcnt vmcnt(0)')
        p('s_branch %s' % lateb)
    cold.append(late_path)
    prio(p, 1)
    p('s_waitcnt vmcnt(2)')
    stamp(p, 26)
    M = 16
    a, b = smf(S0, 0, KF, QB1, QB2), smf(S1, 1, KF, QB1, QB2)
    po = p3_setup()
    emit_all(p, [a[0]] + vread(BV, 0, 1) + [a[1]] + vread(BV, 1, 0) + [b[0]] + po[:8] + [b[1]] + po[8:] + ['v_mov_b32 v7, %s' % NEG_INF])
    for r in range(16):
        p('v_cndmask_b32 v%d, v%d, v%d, %s' % (S1 + r, S0 + r, S1 + r, mask(r)))
    for r in range(16):
        p('v_cndmask_b32 v%d, v7, v%d, %s' % (S1 + r, S1 + r, vbm(r)))
    p('v_max_f32 v%d, v%d, v%d' % (M, S1, S1 + 1))
    p('v_max_f32 v%d, v%d, v%d' % (M + 1, S1 + 2, S1 + 3))
    for r in range(4, 16, 2):
        p('v_max3_f32 v%d, v%d, v%d, v%d' % (M + (r // 2) % 2, M + (r // 2) % 2, S1 + r, S1 + r + 1))
    p('v_max_f32 v%d, v%d, v%d' % (M, M, M + 1))
    half_max(p, M)
    emit_all(p, subm(S1, M) + exps(S1) + cvts(S1, PP + 8))
    for i in range(8):
        p('v_and_b32 v%d, v%d, v%d' % (PP + i, PP + 8 + i, MSK + i))
    p('s_waitcnt lgkmcnt(0)')
    pd = pvm(0, PP, True)
    p(pd[0])
    for i in range(8):
        p('v_xor_b32 v%d, v%d, v%d' % (PP + 8 + i, PP + 8 + i, PP + i))
    emit_all(p, [pd[1]] + pvm(1, PP + 8))
    p('s_waitcnt vmcnt(0)')
    flag_store(p, 31)
    stamp(p, 27)
    finish(p, 1)
    stamp(p, 28)
    if not wq:
        poll_issue(p, VPD, VPOLL)
        p('s_waitcnt vmcnt(1)')
        flag_store(p, 31)
        stamp(p, 29)
        p('s_barrier')
        pend3[0] = 1
    else:
        n = min(len(wq), CFG['nwb2'])
        for _ in range(n):
            w_load(p, wq.pop(0))
        p('s_waitcnt vmcnt(%d)' % n)
        flag_store(p, 31)
        stamp(p, 29)
        p('s_barrier')
        while wq:
            w_load(p, wq.pop(0))
        poll_issue(p, VPD, VPOLL)
        pend3[0] = 0


pend3 = [0]
VO1, VO2, VPW = 8, 9, 10
OF, ACC3 = 32, 112


def p3_setup():
    return [
        'v_and_b32 v15, 15, v0',
        'v_mul_u32_u24 v16, 1280, v%d' % VHH,
        'v_bfe_u32 v17, v0, 4, 1',
        'v_lshl_add_u32 v16, v17, 9, v16',
        'v_lshl_add_u32 v%d, v15, 4, v16' % VO1,
        'v_lshrrev_b32 v16, 4, v0',
        'v_mul_u32_u24 v16, 1280, v16',
        'v_lshl_add_u32 v%d, v15, 3, v16' % VO2,
        'v_mul_u32_u24 v15, 160, v15',
        'v_mul_u32_u24 v17, 10240, v17',
        'v_lshl_add_u32 v15, v%d, 4, v15' % VHH,
        's_mul_i32 s3, s%d, 20480' % sW,
        'v_add3_u32 v%d, v15, v17, s3' % VPW,
        's_lshr_b32 s4, s%d, 2' % sW,
        's_and_b32 s5, s%d, 3' % sW,
        's_lshl_b32 s3, s%d, 3' % sM,
        's_add_u32 s3, s3, s5',
        's_mul_i32 s6, s3, %d' % (8 * 1280),
        's_mul_i32 s7, s4, %d' % O_BR,
        's_add_u32 s6, s6, s7',
        's_add_u32 s27, s6, %d' % O_OFF,
        's_lshl_b32 s3, s3, 10',
        's_mul_i32 s7, s4, %d' % F2_BR,
        's_add_u32 s3, s3, s7',
        's_add_u32 s3, s3, %d' % F2_OFF,
        'v_and_b32 v16, 7, v0',
        'v_lshl_add_u32 v16, v16, 7, s3',
        'v_bfe_u32 v17, v0, 3, 1',
        'v_lshl_add_u32 v%d, v17, 12, v16' % VPOLL,
    ]


def phase3(p, grp):
    def tile_scalars(j):
        if CFG['orot']:
            p('s_add_u32 s3, s%d, %d' % (sN, j))
            p('s_and_b32 s3, s3, 3')
        else:
            p('s_mov_b32 s3, %d' % j)
        p('s_mul_i32 s%d, s3, 2560' % (68 + j))
        p('s_lshr_b32 s4, s3, 1')
        p('s_mul_i32 s4, s4, 40960')
        p('s_add_u32 s4, s4, s27')
        p('s_and_b32 s3, s3, 1')
        p('s_lshl_b32 s3, s3, 7')
        b = 72 + j * 4
        p('s_add_u32 s%d, s4, s3' % (b + 2))
        p('s_add_u32 s%d, s%d, 5120' % (b + 3, b + 2))
        p('s_add_u32 s%d, s%d, s3' % (b, b + 2))
        p('s_add_u32 s%d, s%d, 5120' % (b + 1, b))

    def loads(tt):
        b = 72 + tt * 4
        L = ['buffer_load_dwordx4 %s, v%d, %s, s%d offen offset:%d sc1' % (v(OF + (tt * 5 + st) * 4, 4), VO1, WS, b + st // 2, (st % 2) * 2560) for st in range(4)]
        L += ['buffer_load_dwordx2 %s, v%d, %s, s%d offen offset:1024 sc1' % (v(OF + (tt * 5 + 4) * 4 + j * 2, 2), VO2, WS, b + 2 + j) for j in range(2)]
        return L
    for j in range(4):
        tile_scalars(j)
    p('s_waitcnt vmcnt(%d)' % pend3[0])
    poll_check(p, VPD, lambda: poll_issue(p, VPD, VPOLL))
    stamp(p, 30)
    lq = sum([loads(tt) for tt in range(4)], [])
    nis = [0]

    def ld(n):
        for _ in range(n):
            if lq:
                p(lq.pop(0))
                nis[0] += 1
    ld(CFG['oup'])
    stamp(p, 31)

    def wr(tt, u):
        return 'ds_write_b128 v%d, %s offset:%d' % (16 + tt, v(ACC3 + (tt & 1) * 20 + u * 4, 4), u * 32)

    def mm(y1):
        for tt in range(4):
            p('v_add_u32 v%d, s%d, v%d' % (16 + tt, 68 + tt, VPW))
        for tt in range(4):
            if tt == y1:
                p('s_barrier')
            for st in range(5):
                done = tt * 6 + (st + 1 if st < 4 else 6)
                assert nis[0] >= done
                p('s_waitcnt vmcnt(%d)' % (nis[0] - done))
                for u in range(5):
                    acc = v(ACC3 + (tt & 1) * 20 + u * 4, 4)
                    p('v_mfma_f32_16x16x32_bf16 %s, %s, %s, %s' % (acc, v(WF3 + (st * 5 + u) * 4, 4), v(OF + (tt * 5 + st) * 4, 4), '0' if st == 0 else acc))
                    if tt > 0 and u == 2:
                        p(wr(tt - 1, st))
                    if u in (0, 4):
                        ld(1)
        for u in range(5):
            p(wr(3, u))

    if grp == 1:
        mm(CFG['y1'])
        stamp(p, 32)
        p('s_waitcnt lgkmcnt(0)')
        p('s_barrier')
        stamp_out(p)
        p('s_endpgm')
        return
    prio(p, 3)
    mm(-1)
    stamp(p, 32)
    p('s_mul_i32 s6, s%d, %d' % (sM, 64 * 1280))
    p('s_mul_i32 s7, s%d, 160' % sN)
    p('s_add_u32 s6, s6, s7')
    p('s_lshl_b32 s3, s%d, 6' % sW)
    p('v_add_u32 v7, s3, v0')
    p('v_lshlrev_b32 v8, 4, v7')
    p('v_add_u32 v9, 40960, v8')
    for rnd in range(3):
        p('v_add_u32 v15, %d, v7' % (rnd * 256))
        p('v_mul_u32_u24 v20, 6554, v15')
        p('v_lshrrev_b32 v20, 16, v20')
        p('v_mul_u32_u24 v20, %d, v20' % (1280 - 160))
        p('v_lshl_add_u32 v%d, v15, 4, v20' % (12 + rnd))
    p('v_add_u32 v10, 81920, v8')
    p('v_add_u32 v11, 81920, v9')
    p('s_waitcnt lgkmcnt(0)')
    p('s_barrier')
    prio(p, 0)
    SUM, TMP = 32, 56

    def rd(rnd, areg, buf):
        for k in range(4):
            for hf in range(2):
                p('ds_read_b128 %s, v%d offset:%d' % (v(TMP + buf * 32 + k * 8 + hf * 4, 4), areg + k // 2, (k % 2) * 20480 + hf * 10240 + rnd * 4096))

    def add4(rnd, buf, first):
        T = TMP + buf * 32
        for i in range(4):
            p('v_pk_add_f32 %s, %s, %s' % (v(T + 2 * i, 2), v(T + 2 * i, 2), v(T + 8 + 2 * i, 2)))
        for i in range(4):
            p('v_pk_add_f32 %s, %s, %s' % (v(T + 16 + 2 * i, 2), v(T + 16 + 2 * i, 2), v(T + 24 + 2 * i, 2)))
        if not first:
            for i in range(4):
                p('v_pk_add_f32 %s, %s, %s' % (v(T + 2 * i, 2), v(T + 2 * i, 2), v(SUM + rnd * 8 + 2 * i, 2)))
        for i in range(4):
            p('v_pk_add_f32 %s, %s, %s' % (v(SUM + rnd * 8 + 2 * i, 2), v(T + 2 * i, 2), v(T + 16 + 2 * i, 2)))

    def out(rnd):
        for i in range(4):
            p('v_cvt_pk_bf16_f32 v%d, v%d, v%d' % (20 + rnd * 4 + i, SUM + rnd * 8 + 2 * i, SUM + rnd * 8 + 2 * i + 1))
        p('buffer_store_dwordx4 %s, v%d, %s, s6 offen' % (v(20 + rnd * 4, 4), 12 + rnd, sr(S_OUT)))
    for rnd in range(3):
        rd(rnd, 8, 0)
        p('s_waitcnt lgkmcnt(0)')
        add4(rnd, 0, True)
    stamp(p, 33)
    prio(p, 3)
    p('s_barrier')
    stamp(p, 34)
    fin = p.newlabel('fin')
    rd(0, 10, 0)
    p('s_waitcnt lgkmcnt(7)')
    rd(1, 10, 1)
    p('s_waitcnt lgkmcnt(8)')
    two = p.newlabel('two')
    p('s_cmp_ge_u32 s%d, 2' % sW)
    p('s_cbranch_scc1 %s' % two)
    p('s_waitcnt lgkmcnt(7)')
    rd(2, 10, 2)
    add4(0, 0, False)
    out(0)
    p('s_waitcnt lgkmcnt(8)')
    add4(1, 1, False)
    out(1)
    p('s_waitcnt lgkmcnt(0)')
    add4(2, 2, False)
    out(2)
    p('s_branch %s' % fin)
    p.label(two)
    add4(0, 0, False)
    out(0)
    p('s_waitcnt lgkmcnt(0)')
    add4(1, 1, False)
    out(1)
    p.label(fin)
    stamp(p, 35)
    stamp_out(p)
    p('s_endpgm')


def kernel(p):
    del cold[:]
    end, spare, ltail, p2, comp = [p.newlabel(x) for x in ('end', 'spare', 'ltail', 'p2', 'comp')]
    prologue(p, end)
    p('s_cmp_ge_u32 s4, 30')
    p('s_cbranch_scc1 %s' % spare)
    p('s_cmp_lt_u32 s%d, 4' % sW)
    p('s_cbranch_scc1 %s' % comp)
    p1_loader(p)
    p.label(ltail)
    loader_tail(p)
    emit_all(p, p2_setup())
    wp_base(p)
    for f in range(CFG['nwb0']):
        w_load(p, f)
    p('s_waitcnt vmcnt(%d) lgkmcnt(0)' % CFG['nwb0'])
    stamp(p, 20)
    phase2(p, 1)
    phase3(p, 1)
    p.label(spare)
    p1_spare(p)
    k = p.newlabel('sp47')
    p('s_cmp_ge_u32 s%d, 4' % sW)
    p('s_cbranch_scc1 %s' % k)
    vb_masks(p)
    emit_all(p, p2_setup())
    p('s_branch %s' % p2)
    p.label(k)
    tail_scalars(p)
    ones_fill(p)
    poll_issue(p, VPD, VPOLL)
    p('s_branch %s' % ltail)
    p.label(end)
    p('s_endpgm')
    p.label(comp)
    p1_compute(p, p2_setup())
    p.label(p2)
    phase2(p, 0)
    phase3(p, 0)
    p.label('.Lhot_end')
    i = 0
    while i < len(cold):
        cold[i]()
        i += 1


HEADER = open('cdna_kernels/%s.s.ref' % NAME).read().split('; Override launch')[0]


def build(extra=None, **cfg):
    CFG.update(cfg)
    n = NAME + '_kernel'
    out = HEADER
    if extra:
        out += '; @launch kernel=%s grid=(256,1,1) block=(512,1,1) lds=%d\n' % (n, LDS_BYTES)
        out += '; @launch kernel=diag_kernel grid=(1,1,1) block=(64,1,1) lds=0\n'
    else:
        out += '; @launch grid=(256,1,1) block=(512,1,1) lds=%d\n' % LDS_BYTES
    out += '.amdgcn_target "amdgcn-amd-amdhsa--gfx950"\n.text\n'
    ks = [(n, kernel)] + ([('diag_kernel', extra)] if extra else [])
    desc = ''
    uid = 0
    for kn, f in ks:
        p = Prog()
        p.uid = uid
        p.label(kn)
        f(p)
        uid = p.uid
        nn = p.fix_hazards()
        ne = p.check_waits([kn])
        mx = p.max_regs()
        print(kn[-12:], 'instrs', len(p.ins), 'nops', nn, 'wait errors', ne, 'max regs', mx, file=sys.stderr)
        assert ne == 0
        out += '.globl %s\n.p2align 8\n.type %s,@function\n' % (kn, kn) + p.text()
        desc += '.p2align 6\n' + kernel_desc(kn, max(mx['v'] + 1, 8), 102)
    out += '.section .rodata,"a"\n' + desc
    return out


if __name__ == '__main__':
    cfg = {}
    args = []
    for a_ in sys.argv[1:]:
        if '=' in a_:
            k, val = a_.split('=')
            cfg[k] = eval(val)
        else:
            args.append(a_)
    path = args[0] if args else 'cdna_kernels/%s.s' % NAME
    open(path, 'w').write(build(**cfg))
```

```python
import sys, struct
sys.path.insert(0, 'gen')
from asm import *

NAME = 'gated_mix__sliding_block__sliding_local_dilated__prompt'

QKV_RB = 240 * 2048
QKV_BR = 16 * QKV_RB
O_OFF = 2 * QKV_BR
O_BR = 64 * 32 * 1280
G_OFF = O_OFF + 2 * O_BR
F1A_OFF = G_OFF + 32768
F1B_OFF = F1A_OFF + 64 * 16 * 128
F2_OFF = F1B_OFF + 64 * 16 * 128
F2_BR = 64 * 32 * 128
FW_OFF = F2_OFF + 2 * F2_BR
DUMMY_OFF = FW_OFF + 128 * 128
WP_OFF = DUMMY_OFF + 2048 * 128
WS_END = WP_OFF + 64 * 25600
ST_OFF = 28 << 20
WS_BYTES = 32 << 20
assert WS_END <= ST_OFF

X_BYTES = 2048 * 1280
WQ_BYTES = 640 * 3840
WO_BYTES = 640 * 1280
OUT_BYTES = 2048 * 1280

WSLOT = 8 * 2080
NWS = 6
XR_OFF = NWS * WSLOT
KA_OFF = XR_OFF
VA_OFF = KA_OFF + 20480
VA_STR = 8192 + 64
ONES_OFF = VA_OFF + 3 * VA_STR
ONES_LEN = 4608
QA_OFF = 149760
GW_OFF = QA_OFF + 12288
VB_WAVE = 3328
VB_STR = 1024 + 64
LDS_BYTES = 163840
assert ONES_OFF + ONES_LEN <= QA_OFF and GW_OFF + 1280 <= LDS_BYTES and VA_OFF % 256 == 0 and XR_OFF % 256 == 0
assert XR_OFF + 3 * WSLOT <= GW_OFF

S_WS, S_OUT = 8, 12
sW, sFL, sH, sR, sC0, sODD, sRB32, sRB, sCB, sROT = 16, 17, 18, 19, 20, 21, 22, 23, 24, 25
sM, sN = sH, sR
T0 = 26
S_DBG = 32
sMASK = 36
sVB = 68
S_X, S_WA, S_WB, S_GW = 68, 72, 76, 80
KA_ = 36
WS = 's[%d:%d]' % (S_WS, S_WS + 3)

VNON = 2
VSTAMP = 6

CFG = dict(stamp=False, light=False, force_safe=False, force_late=False,
           D=5, rot=(4, 1, 0, 0), cpf=2, wbwarm=2, prio=True, fullflag=16,
           ntx='', nta='', ntb='', nto='nt',
           BB=[10, 12, 14, 17], g1last=15, n8=3, nwa=0, b1rate=1,
           sched='S I WWWW SSS B SSSS WWWWWWWW B WWWW N F B',
           flagblk=1, poll2=True, nwb1=12, nwb2=8, orot=True, oup=12, y1=3)
SPIN = 1 << 15


def f32(x):
    return '0x%08x' % struct.unpack('<I', struct.pack('<f', x))[0]


QSCALE = (20 ** -0.5) * 1.4426950408889634
NEG_INF = '0xff800000'


def srd(p, d, ptr, nbytes):
    p('s_mov_b32 s%d, s%d' % (d, ptr))
    p('s_and_b32 s%d, s%d, 0xffff' % (d + 1, ptr + 1))
    p('s_mov_b32 s%d, 0x%x' % (d + 2, nbytes))
    p('s_mov_b32 s%d, 0x20000' % (d + 3))


def sr(d):
    return 's[%d:%d]' % (d, d + 3)


def prio(p, n):
    if CFG['prio']:
        p('s_setprio %d' % n)


def stamp(p, i):
    if CFG['stamp'] and not (CFG['light'] and i not in (0, 61)):
        p('%s s[100:101]' % ('s_memtime' if CFG['stamp'] == 'clk' else 's_memrealtime'))
        p('s_waitcnt lgkmcnt(0)')
        p('v_writelane_b32 v%d, s100, %d' % (VSTAMP, i))


def stamp_clk(p, i):
    if CFG['stamp']:
        p('s_memtime s[100:101]')
        p('s_waitcnt lgkmcnt(0)')
        p('v_writelane_b32 v%d, s100, %d' % (VSTAMP, i))


def stamp_out(p):
    if CFG['stamp']:
        p('s_waitcnt vmcnt(0)')
        stamp(p, 61)
        stamp_clk(p, 63)
        p('s_lshl_b32 s3, s2, 3')
        p('s_add_u32 s3, s3, s%d' % sW)
        p('s_lshl_b32 s3, s3, 8')
        p('s_add_u32 s3, s3, %d' % ST_OFF)
        p('v_lshlrev_b32 v7, 2, v0')
        p('buffer_store_dword v%d, v7, %s, s3 offen' % (VSTAMP, WS))
        p('s_waitcnt vmcnt(0)')


def nonce_issue(p, r=VNON):
    p('buffer_load_dwordx2 %s, off, %s, 0 sc1' % (v(r, 2), sr(S_DBG)))


cold = []


def nonce_check(p, r=VNON):
    ok, L = p.newlabel('nok'), p.newlabel('nsp')
    p('v_cmp_eq_u32 vcc, 0, v%d' % r)
    p('s_cbranch_vccnz %s' % L)
    p.label(ok)

    def rare():
        L2 = p.newlabel('nsp')
        p.label(L)
        p('s_mov_b32 s3, %d' % SPIN)
        p.label(L2)
        p('s_sleep 2')
        nonce_issue(p, r)
        p('s_sub_u32 s3, s3, 1')
        p('s_waitcnt vmcnt(0)')
        p('s_cbranch_scc1 %s' % ok)
        p('v_cmp_eq_u32 vcc, 0, v%d' % r)
        p('s_cbranch_vccnz %s' % L2)
        p('s_branch %s' % ok)
    cold.append(rare)


def flag_store(p, soff):
    if CFG['fullflag']:
        p('v_lshlrev_b32 v7, 3, v0')
        p('s_mov_b64 exec, 0x%x' % ((1 << CFG['fullflag']) - 1))
        p('buffer_store_dwordx2 %s, v7, %s, s%d offen sc1' % (v(VNON, 2), WS, soff))
        p('s_mov_b64 exec, -1')
        return
    p('s_mov_b64 exec, 1')
    p('buffer_store_dwordx2 %s, off, %s, s%d sc1' % (v(VNON, 2), WS, soff))
    p('s_mov_b64 exec, -1')


def poll_issue(p, vdat, voff):
    p('buffer_load_dwordx2 %s, v%d, %s, 0 offen sc1' % (v(vdat, 2), voff, WS))


def poll_check(p, vcmp, reissue):
    ok, L = p.newlabel('pok'), p.newlabel('psp')
    p('v_cmp_ne_u64 vcc, %s, %s' % (v(vcmp, 2), v(VNON, 2)))
    p('s_cbranch_vccz %s' % ok)
    p('s_mov_b32 s3, %d' % SPIN)
    p.label(L)
    reissue()
    p('s_sub_u32 s3, s3, 1')
    p('s_waitcnt vmcnt(0)')
    p('s_cbranch_scc1 %s' % ok)
    p('v_cmp_ne_u64 vcc, %s, %s' % (v(vcmp, 2), v(VNON, 2)))
    p('s_cbranch_vccnz %s' % L)
    p.label(ok)


def emit_all(p, L):
    for x in L:
        if callable(x):
            x()
        else:
            p(x)


def prologue(p, end):
    p('s_load_dwordx16 s[%d:%d], s[0:1], 0' % (KA_, KA_ + 15))
    p('s_load_dwordx4 s[%d:%d], s[0:1], 64' % (KA_ + 16, KA_ + 19))
    p('s_cmp_ge_u32 s2, 256')
    p('s_cbranch_scc1 %s' % end)
    if CFG['cpf'] == 2:
        k = p.newlabel('pc')
        p('s_getpc_b64 s[4:5]')
        p.label(k)
        p('s_lshr_b32 s3, s2, 3')
        p('v_lshl_add_u32 v4, v0, 5, s3')
        p('v_lshlrev_b32 v4, 7, v4')
        p('v_cmp_gt_u32 vcc, .Lhot_end-%s, v4' % k)
        p('s_and_saveexec_b64 s[6:7], vcc')
        k2 = p.newlabel('nopf')
        p('s_cbranch_execz %s' % k2)
        p('global_load_dword v253, v4, s[4:5]')
        p.label(k2)
        p('s_mov_b64 exec, -1')
    p('v_lshrrev_b32 v1, 6, v0')
    p('v_readfirstlane_b32 s%d, v1' % sW)
    p('v_and_b32 v0, 63, v0')
    if CFG['stamp']:
        p('v_mov_b32 v%d, 0' % VSTAMP)
        stamp(p, 0)
        if not CFG['light']:
            stamp_clk(p, 62)
    p('s_and_b32 s3, s2, 7')
    p('s_lshr_b32 s4, s2, 3')
    p('s_lshr_b32 s5, s3, 1')
    p('s_mul_i32 s5, s5, 30')
    p('s_add_u32 s5, s5, s4')
    p('s_lshr_b32 s%d, s5, 3' % sCB)
    p('s_and_b32 s5, s5, 7')
    p('s_and_b32 s6, s3, 1')
    p('s_lshl_b32 s6, s6, 3')
    p('s_add_u32 s%d, s5, s6' % sRB)


def late_scalars(p):
    srd(p, S_WS, KA_ + 18, WS_BYTES)
    srd(p, S_OUT, KA_ + 14, OUT_BYTES)
    srd(p, S_DBG, KA_ + 16, 256)
    p('s_and_b32 s3, s2, 7')
    p('s_lshr_b32 s4, s2, 3')
    p('s_and_b32 s7, s4, 3')
    p('s_lshl_b32 s3, s3, 2')
    p('s_add_u32 s%d, s3, s7' % sH)
    p('s_lshr_b32 s%d, s4, 2' % sR)
    p('s_and_b32 s%d, s%d, 1' % (sODD, sH))
    p('s_lshr_b32 s3, s%d, 1' % sH)
    p('s_mul_i32 s3, s3, 5')
    p('s_lshl_b32 s6, s%d, 1' % sODD)
    p('s_add_u32 s%d, s3, s6' % sC0)
    p('s_lshl_b32 s3, s%d, 3' % sR)
    p('s_add_u32 s%d, s3, s%d' % (sRB32, sW))
    p('s_lshl_b32 s3, s2, 3')
    p('s_add_u32 s3, s3, s%d' % sW)
    p('s_lshl_b32 s3, s3, 7')
    p('s_add_u32 s%d, s3, %d' % (sFL, DUMMY_OFF))
    for r in range(16):
        kl = 8 * (r // 4) + r % 4
        p('s_mov_b32 s%d, 0x%x' % (sMASK + 2 * r, (0xffffffff << kl) & 0xffffffff))
        p('s_mov_b32 s%d, 0x%x' % (sMASK + 2 * r + 1, (0xffffffff << (kl + 4)) & 0xffffffff))


def vb_masks(p):
    rotl = lambda x, n: ((x << n) | (x >> (32 - n))) & 0xffffffff
    for r in range(16):
        kl = 8 * (r // 4) + r % 4
        p('s_mov_b32 s%d, 0x%x' % (sVB + 2 * r, rotl(0x5555, kl)))
        p('s_mov_b32 s%d, 0x%x' % (sVB + 2 * r + 1, rotl(0x5555, kl + 4)))
    k, L = p.newlabel('vbok'), p.newlabel('vbfirst')
    p('s_cmp_eq_u32 s%d, 0' % sRB32)
    p('s_cbranch_scc1 %s' % L)
    p.label(k)

    def rare():
        p.label(L)
        for r in range(16):
            p('s_and_b64 %s, %s, %s' % (vbm(r), vbm(r), mask(r)))
        p('s_branch %s' % k)
    cold.append(rare)


def mask(r):
    return 's[%d:%d]' % (sMASK + 2 * r, sMASK + 2 * r + 1)


def vbm(r):
    return 's[%d:%d]' % (sVB + 2 * r, sVB + 2 * r + 1)


WF, ACC, X = 8, 32, 96
VST, AX = 1, 2
sQ, sFA, sSC = T0, T0 + 1, T0 + 2
SLOT_B = {10: 4, 11: 5, 12: 7, 13: 8, 14: 0, 15: 1, 16: 2, 17: 3, 18: 4, 19: 5}
FREE_B = {10: 6, 11: 7, 12: 8, 13: 9, 14: 8, 15: 9, 16: 10, 17: 11, 18: 12, 19: 13}


def slot_of(c):
    return c % NWS if c < 10 else SLOT_B[c]


def frag_list():
    frs = []
    for c in range(20):
        for i in range(16):
            if c < 10:
                st, u = i // 8, i % 8
                off = [(st * 2 + j) * 256 + u * 32 for j in range(2)]
                frs.append(dict(c=c, off=off, acc=u, xs=2 * c + st, first=(c == 0 and st == 0)))
            else:
                slab, cc = (c - 10) // 5, (c - 10) % 5
                st, u = i // 4, i % 4
                off = [(st * 2 + j) * 128 + u * 32 for j in range(2)]
                frs.append(dict(c=c, off=off, acc=slab * 4 + u, xs=4 * cc + st, first=(cc == 0 and st == 0)))
    return frs


def x_reads(c):
    return [('ds_read_b128 %s, v%d offset:%d' % (v(X + ((2 * c + st) * 2 + t) * 4, 4), AX + st, (c % 3) * WSLOT + t * 2048), ('x', 2 * c + st))
            for st in range(2) for t in range(2)]


def gemm_addr(p, sl):
    p('v_and_b32 v24, 15, v0')
    p('v_lshrrev_b32 v25, 4, v0')
    p('v_lshrrev_b32 v26, 1, v24')
    p('v_xor_b32 v26, v26, v25')
    p('v_lshlrev_b32 v26, 4, v26')
    p('v_lshl_add_u32 v26, v24, 7, v26')
    p('s_lshl_b32 s3, s%d, 12' % sl)
    p('s_add_u32 s3, s3, %d' % XR_OFF)
    p('v_add_u32 v%d, s3, v26' % AX)
    p('v_xor_b32 v%d, 64, v%d' % (AX + 1, AX))
    p('v_bfe_u32 v26, v0, 2, 3')
    p('v_mul_u32_u24 v26, 2080, v26')
    p('v_lshrrev_b32 v27, 5, v0')
    p('v_lshl_add_u32 v26, v27, 10, v26')
    p('v_and_b32 v28, 3, v0')
    p('v_lshl_add_u32 v4, v28, 3, v26')
    p('v_add_u32 v5, %d, v4' % (4 * WSLOT))
    p('v_and_b32 v26, 31, v0')
    p('v_lshlrev_b32 v26, 4, v26')
    p('v_lshl_add_u32 v26, v27, 11, v26')
    p('s_lshl_b32 s3, s%d, 9' % sl)
    p('v_add_u32 v%d, s3, v26' % VST)


def gemm_scalars(p, sl, br, sflag):
    p('s_mul_i32 s%d, s%d, %d' % (sQ, sRB, QKV_RB))
    p('s_lshl_b32 s3, s%d, 15' % sCB)
    p('s_add_u32 s%d, s%d, s3' % (sQ, sQ))
    p('s_cmp_lt_u32 s%d, 5' % sCB)
    p('s_cselect_b32 s%d, %s, 1.0' % (sSC, f32(QSCALE)))
    p('s_mov_b32 s%d, s%d' % (sSC + 1, sSC))
    p('s_lshl_b32 s3, s%d, 2' % sRB)
    p('s_add_u32 s3, s3, s%d' % sl)
    p('s_lshl_b32 s4, s3, 4')
    p('s_add_u32 s4, s4, s%d' % sCB)
    p('s_lshl_b32 s5, s4, 7')
    p('s_add_u32 s%d, s5, %d' % (sflag, F1B_OFF if br else F1A_OFF))


def rot_scalar(p):
    G, m1, m2, m3 = CFG['rot']
    p('s_add_u32 s6, s%d, s%d' % (sRB, sCB))
    p('s_and_b32 s6, s6, %d' % (G - 1))
    if m1 != 1:
        p('s_mul_i32 s6, s6, %d' % m1)
    if m2:
        p('s_bfe_u32 s7, s2, 0x20001')
        p('s_mul_i32 s7, s7, %d' % m2)
        p('s_add_u32 s6, s6, s7')
    if m3:
        p('s_and_b32 s7, s2, 1')
        p('s_mul_i32 s7, s7, %d' % m3)
        p('s_add_u32 s6, s6, s7')
    if (G - 1) * m1 + 3 * m2 + m3 >= 5:
        p('s_mul_i32 s7, s6, 52')
        p('s_lshr_b32 s7, s7, 8')
        p('s_mul_i32 s7, s7, 5')
        p('s_sub_u32 s6, s6, s7')
    p('s_lshl_b32 s%d, s6, 1' % sROT)


def conv(u, pk=False):
    a0 = ACC + u * 8
    if pk:
        L = ['v_pk_mul_f32 %s, %s, s[%d:%d]' % (v(a0 + 2 * i, 2), v(a0 + 2 * i, 2), sSC, sSC + 1) for i in range(4)]
    else:
        L = ['v_mul_f32 v%d, s%d, v%d\nv_mul_f32 v%d, s%d, v%d' % (a0 + 2 * i, sSC, a0 + 2 * i, a0 + 2 * i + 1, sSC, a0 + 2 * i + 1) for i in range(4)]
    L += ['v_cvt_pk_bf16_f32 v%d, v%d, v%d' % (a0 + i, a0 + 2 * i, a0 + 2 * i + 1) for i in range(4)]
    return L


def swaps(u):
    d = ACC + u * 8
    return ['v_permlane16_swap_b32 v%d, v%d' % (d, d + 2), 'v_permlane16_swap_b32 v%d, v%d' % (d + 1, d + 3)]


def qstore(br, u):
    return ['s_add_u32 s3, s%d, %d' % (sQ, br * QKV_BR + u * 4096) + '\n' +
            'buffer_store_dwordx4 %s, v%d, %s, s3 offen sc1' % (v(ACC + u * 8, 4), VST, WS)]


def epilogue(br, us, pk=False):
    L = []
    prev = None
    for u in us:
        c = conv(u, pk)
        L += c[:4]
        if prev is not None:
            L += swaps(prev) + c[4:6] + qstore(br, prev) + c[6:]
        else:
            L += c[4:]
        prev = u
    return L + swaps(prev) + qstore(br, prev)


def gemm_stream(p, f0, f1, barriers, pre_barrier, side, aw, with_x):
    D = CFG['D']
    NB = D + 1
    frs = frag_list()
    pend = []

    def lds(text, tag):
        p(text)
        pend.append(tag)

    def need(tags):
        idx = [i for i, t in enumerate(pend) if t in tags]
        if idx:
            n = len(pend) - 1 - max(idx)
            assert n <= 15
            p('s_waitcnt lgkmcnt(%d)' % n)
            del pend[:max(idx) + 1]

    def pre_read(f):
        if f % 16 == 0:
            c = f // 16
            if c in barriers:
                pre_barrier(c)
                p('s_barrier')
                if CFG['stamp'] and not CFG['light'] and c in (0, 2, 6, 10, 14):
                    stamp(p, 2 + c // 2)
                    del pend[:]
            if with_x and c < 10:
                for t, tag in x_reads(c):
                    lds(t, tag)

    def w_read(f, j):
        fr = frs[f]
        slot = slot_of(fr['c'])
        lds('ds_read_b64_tr_b16 %s, v%d offset:%d' % (v(WF + (f % NB) * 4 + j * 2, 2), aw[slot // 4], (slot % 4) * WSLOT + fr['off'][j]), ('w', f))

    def mf(f, t):
        fr = frs[f]
        acc = v(ACC + (fr['acc'] * 2 + t) * 4, 4)
        p('v_mfma_f32_16x16x32_bf16 %s, %s, %s, %s' % (acc, v(WF + (f % NB) * 4, 4), v(X + (fr['xs'] * 2 + t) * 4, 4), '0' if fr['first'] else acc))

    for f in range(f0, f0 + D):
        pre_read(f)
        w_read(f, 0)
        w_read(f, 1)
    for f in range(f0, f1):
        g = f + D
        need({('w', f), ('x', frs[f]['xs'])})
        mf(f, 0)
        if g <= f1 and g < 320:
            pre_read(g)
        if g < f1:
            w_read(g, 0)
        mf(f, 1)
        if g < f1:
            w_read(g, 1)
        emit_all(p, side.get(f, []))


class Dma:
    def __init__(self, p, sXB, sWBs, sLX, sLW, sKX, sKW, VX, VWA, VWB):
        self.p, self.r, self.v = p, (sXB, sWBs, sLX, sLW, sKX, sKW), (VX, VWA, VWB)
        self.cur = None
        self.issued = []

    def kchunk(self, kk):
        p = self.p
        p('s_add_u32 s3, s%d, %d' % (sROT, kk))
        p('s_cmp_ge_u32 s3, 10')
        p('s_cselect_b32 s4, 10, 0')
        p('s_sub_u32 s3, s3, s4')

    def kbase(self, c):
        if self.cur == c:
            return
        self.cur = c
        p = self.p
        sXB, sWBs, sLX, sLW, sKX, sKW = self.r
        self.kchunk(c if c < 10 else 2 * ((c - 10) % 5))
        if c < 10:
            p('s_lshl_b32 s4, s3, 7')
            p('s_add_u32 s%d, s4, s%d' % (sKX, sXB))
        p('s_mul_i32 s4, s3, %d' % (64 * 3840))
        p('s_add_u32 s%d, s4, s%d' % (sKW, sWBs))

    def emit(self, kind, c, t):
        p = self.p
        sXB, sWBs, sLX, sLW, sKX, sKW = self.r
        VX, VWA, VWB = self.v
        self.kbase(c)
        if kind == 'x':
            p('s_add_u32 m0, s%d, %d' % (sLX, XR_OFF + (c % 3) * WSLOT + t * 4096))
            p('s_add_u32 s3, s%d, %d' % (sKX, t * 32 * 1280))
            p('buffer_load_dwordx4 v%d, %s, s3 offen %s lds' % (VX, sr(S_X), CFG['ntx']))
        else:
            kb, kh = t & 1, t >> 1
            p('s_add_u32 m0, s%d, %d' % (sLW, slot_of(c) * WSLOT + kb * 4 * 2080 + kh * 1024))
            p('s_add_u32 s3, s%d, %d' % (sKW, (16 * kh + 8 * kb) * 3840 + (128 * ((c - 10) // 5) if c >= 10 else 0)))
            p('buffer_load_dwordx4 v%d, %s, s3 offen %s lds' % (VWA if c < 10 else VWB, sr(S_WA if c < 10 else S_WB), CFG['nta'] if c < 10 else CFG['ntb']))
        self.issued.append(c)

    def chunk(self, c):
        for t in range(4):
            self.emit('w', c, t)
            if c < 10:
                self.emit('x', c, t)

    def other(self, tag=None):
        self.issued.append(tag)

    def wait(self, pred):
        idx = [i for i, x in enumerate(self.issued) if pred(x)]
        if idx:
            self.p('s_waitcnt vmcnt(%d)' % (len(self.issued) - 1 - max(idx)))
            del self.issued[:max(idx) + 1]

    def wait_chunks(self, lim):
        self.wait(lambda x: isinstance(x, int) and x <= lim)


def wb_voffset(p, d, sl):
    p('v_lshrrev_b32 v20, 4, v0')
    p('v_lshlrev_b32 v20, 5, v20')
    p('v_bfe_u32 v21, v0, 3, 1')
    p('v_lshl_add_u32 v20, v21, 2, v20')
    p('v_add_u32 v20, s%d, v20' % sl)
    p('v_mul_u32_u24 v20, 3840, v20')
    p('v_and_b32 v21, 7, v0')
    p('v_lshl_add_u32 v%d, v21, 4, v20' % d)


def cert_limit(c):
    BB = CFG['BB']
    if c < 10:
        return c
    nxt = [b for b in BB if b > c]
    return nxt[0] - 1 if nxt else 19


VPOLL, VPD = 12, 14
sRBQ = 85
sTA = 86
sNW = 69


def tail_scalars(p):
    p('s_lshl_b32 s3, s%d, 1' % sR)
    p('s_add_u32 s3, s3, s%d' % sW)
    p('s_sub_u32 s3, s3, 2')
    p('s_max_i32 s%d, s3, 0' % sRBQ)
    p('s_mul_i32 s%d, s%d, %d' % (sTA, sRBQ, QKV_RB))
    p('s_lshl_b32 s4, s%d, 11' % sC0)
    p('s_add_u32 s%d, s%d, s4' % (sTA, sTA))
    p('s_lshl_b32 s5, s%d, 11' % sODD)
    p('s_add_u32 s%d, s%d, s5' % (sTA + 1, sTA))
    p('s_cmp_eq_u32 s%d, 0' % sODD)
    p('s_cselect_b32 s6, 4096, 8')
    p('s_cselect_b32 s7, 4096, 0')
    p('s_add_u32 s%d, s%d, s6' % (sTA + 2, sTA))
    p('s_lshl_b32 s3, s%d, 1' % sR)
    p('s_lshr_b32 s6, s%d, 1' % sW)
    p('s_add_u32 s3, s3, s6')
    p('s_mul_i32 s3, s3, %d' % QKV_RB)
    p('s_and_b32 s6, s%d, 1' % sW)
    p('s_lshl_b32 s6, s6, 10')
    p('s_add_u32 s3, s3, s6')
    p('s_add_u32 s3, s3, s4')
    p('s_add_u32 s%d, s3, s5' % (sTA + 3))
    p('s_add_u32 s%d, s3, s7' % (sTA + 4))
    p('s_lshl_b32 s%d, s%d, 11' % (sTA + 5, sW))
    p('s_lshl_b32 s%d, s%d, 10' % (sTA + 6, sW))
    p('s_lshl_b32 s3, s%d, 3' % sW)
    p('s_add_u32 s3, s3, s%d' % sN)
    p('s_lshl_b32 s3, s3, 8')
    p('s_add_u32 s84, s3, %d' % FW_OFF)


def tail_vectors(p):
    p('v_and_b32 v20, 3, v0')
    p('s_lshl_b32 s3, s%d, 2' % sRBQ)
    p('v_add_u32 v21, s3, v20')
    p('v_and_b32 v23, 1, v0')
    p('s_lshl_b32 s3, s%d, 3' % sR)
    p('s_lshl_b32 s4, s%d, 1' % sW)
    p('s_add_u32 s3, s3, s4')
    p('v_add_u32 v20, s3, v23')
    p('v_cmp_gt_u32 vcc, 16, v0')
    p('v_lshrrev_b32 v22, 1, v0')
    p('v_and_b32 v22, 2, v22')
    p('v_cndmask_b32 v21, v20, v21, vcc')
    p('v_bfe_u32 v20, v0, 3, 1')
    p('v_mul_u32_u24 v20, 5, v20')
    p('v_add_u32 v20, 5, v20')
    p('v_cndmask_b32 v20, 0, v20, vcc')
    p('v_add_u32 v22, s%d, v22' % sC0)
    p('v_lshrrev_b32 v22, 4, v22')
    p('v_add_u32 v20, v20, v22')
    p('v_lshl_add_u32 v20, v21, 4, v20')
    p('v_lshlrev_b32 v20, 7, v20')
    p('v_add_u32 v20, %d, v20' % F1A_OFF)
    p('v_cmp_gt_u32 vcc, 24, v0')
    p('v_and_b32 v22, 2, v0')
    p('v_lshlrev_b32 v22, 12, v22')
    p('v_lshl_add_u32 v22, v23, 7, v22')
    p('v_add_u32 v22, s84, v22')
    p('v_cndmask_b32 v%d, v22, v20, vcc' % VPOLL)
    p('v_lshrrev_b32 v7, 1, v0')
    p('v_lshlrev_b32 v7, 4, v7')
    p('v_lshl_add_u32 v27, v23, 2, v7')


def ones_fill(p):
    for r in range(4):
        p('v_mov_b32 v%d, 0x3f803f80' % (28 + r))
    p('v_add_u32 v7, s%d, v1' % (sTA + 6))
    p('v_add_u32 v7, %d, v7' % ONES_OFF)
    p('ds_write_b128 v7, v[28:31]')
    p('v_lshlrev_b32 v7, 3, v0')
    p('v_add_u32 v7, %d, v7' % (ONES_OFF + 4096))
    p('ds_write_b64 v7, v[28:29]')


def p1_grp0(p):
    BB = CFG['BB']
    gemm_addr(p, sW)
    rot_scalar(p)
    p('s_waitcnt lgkmcnt(0)')
    srd(p, S_WB, KA_ + 8, WQ_BYTES)

    def warm():
        k = p.newlabel('nowarm')
        p('s_cmp_gt_u32 s%d, 1' % sW)
        p('s_cbranch_scc1 %s' % k)
        p('s_lshl_b32 s3, s2, 1')
        p('s_add_u32 s3, s3, s%d' % sW)
        p('s_mul_i32 s3, s3, 5120')
        p('v_lshlrev_b32 v7, 7, v0')
        p('s_mov_b32 exec_hi, 0xff')
        p('buffer_load_dword v%d, v7, %s, s3 offen' % (X + 156, sr(S_WB)))
        p('s_mov_b32 exec_hi, -1')
        p.label(k)
    if CFG['wbwarm'] == 2:
        warm()
    late_scalars(p)
    nn = p.newlabel('nononce')
    p('s_or_b32 s3, s2, s%d' % sW)
    p('s_cbranch_scc1 %s' % nn)
    p('s_memrealtime s[4:5]')
    p('s_waitcnt lgkmcnt(0)')
    p('s_or_b32 s4, s4, 1')
    p('v_mov_b32 v8, s4')
    p('v_mov_b32 v9, s5')
    p('v_mov_b32 v10, 0')
    p('v_mov_b32 v11, 0')
    p('s_mov_b64 exec, 1')
    p('buffer_atomic_cmpswap_x2 v[8:11], off, %s, 0 sc1' % sr(S_DBG))
    p('s_mov_b64 exec, -1')
    p.label(nn)
    gemm_scalars(p, sW, 0, sFA)
    tail_scalars(p)
    sWBs, sKW, sLW = T0 + 4, T0 + 5, 68
    p('s_lshl_b32 s%d, s%d, 8' % (sWBs, sCB))
    p('s_mul_i32 s%d, s%d, 2080' % (sLW, sW))
    wp_base(p)
    stamp(p, 1)
    side = {130: ['s_waitcnt vmcnt(0)']}
    if CFG['wbwarm'] > 2:
        side[CFG['wbwarm']] = [warm]
    gemm_stream(p, 0, 160, range(11), lambda c: None, side, (4, 5), True)
    stamp(p, 12)
    prio(p, 2)
    VWB = 10
    d = Dma(p, None, sWBs, None, sLW, None, sKW, None, None, VWB)
    todo = [(c, t) for c in range(CFG['g1last'] + 1, 20) for t in range(4)]
    wq = list(range(CFG['nwa']))
    bq = list(BB[1:])
    ep = epilogue(0, range(8))
    passed = 10
    seen = set()
    nt_ = [0]
    for ch in CFG['sched']:
        if ch == 'S':
            while True:
                x = ep.pop(0)
                p(x)
                if 'buffer_store' in x:
                    d.other('s')
                    break
            if not ep:
                stamp(p, 13)
        elif ch == 'I':
            nonce_issue(p)
            d.other('n')
            if CFG['nwa']:
                p('v_and_b32 v7, 1, v0')
                p('v_lshlrev_b32 v7, 7, v7')
                p('buffer_load_dwordx2 %s, v7, %s, s84 offen sc1' % (v(VPD, 2), WS))
                d.other('n')
                p('v_lshlrev_b32 v11, 4, v0')
            wb_voffset(p, VWB, sW)
        elif ch == 't':
            stamp(p, 44 + nt_[0])
            nt_[0] += 1
        elif ch == 'W':
            c, t = todo.pop(0)
            assert FREE_B[c] <= passed and 'I' in seen, (c, passed)
            d.emit('w', c, t)
        elif ch == 'P':
            assert 'N' in seen
            if wq:
                w_load(p, wq.pop(0), 11)
                d.other()
        elif ch == 'B':
            c = bq.pop(0)
            lim = cert_limit(c)
            assert not (todo and todo[0][0] <= lim), (c, todo[0])
            d.wait_chunks(lim)
            stamp(p, 36 + 2 * BB.index(c))
            p('s_barrier')
            stamp(p, 37 + 2 * BB.index(c))
            passed = c
        elif ch == 'N':
            d.wait(lambda x: x == 'n')
            nonce_check(p)
            if CFG['nwa']:
                p('v_cmp_ne_u64 vcc, %s, %s' % (v(VPD, 2), v(VNON, 2)))
                p('s_or_b32 s%d, vcc_lo, vcc_hi' % sNW)
            else:
                p('s_mov_b32 s%d, 0' % sNW)
            if CFG['force_late']:
                p('s_mov_b32 s%d, 1' % sNW)
            tail_vectors(p)
        elif ch == 'F':
            assert not ep and 'N' in seen
            d.wait(lambda x: x == 's')
            flag_store(p, sFA)
            d.other()
            stamp(p, 16)
        seen.add(ch)
    assert not todo and not wq and not bq and not ep and 'F' in seen and BB[-1] >= 15
    p('v_lshlrev_b32 v1, 4, v0')
    poll_issue(p, VPD, VPOLL)


def kv_tail(p):
    ones_fill(p)
    p('s_waitcnt vmcnt(0)')
    stamp(p, 14)
    poll_check(p, VPD, lambda: poll_issue(p, VPD, VPOLL))
    stamp(p, 15)

    def dma(ldsb, ldsoff, gb, goff, vo=1, w='x4', n=1):
        p('s_add_u32 m0, s%d, %d' % (sTA + ldsb, ldsoff))
        p('s_add_u32 s3, s%d, %d' % (sTA + gb, goff))
        for i in range(n):
            p('buffer_load_dword%s v%d, %s, s3 offen offset:%d sc1 lds' % (w, vo, WS, i * 1024))
    for j in range(2):
        dma(6, QA_OFF + j * 4096, 3, j * 2048)
    dma(6, QA_OFF + 8192, 4, 0)
    for j in range(2):
        dma(5, KA_OFF + j * 8192, 1, (80 + j) * 2048, n=2)
    for i in range(4):
        dma(6, KA_OFF + 16384 + i * 256, 2, 80 * 2048 + i * 512, vo=27, w='')
    for j in range(3):
        dma(5, VA_OFF + j * VA_STR, 0, (160 + j) * 2048, n=2)
    stamp(p, 17)
    redo, back = p.newlabel('redo'), p.newlabel('redone')
    p('s_cmp_lg_u32 s%d, 0' % sNW)
    p('s_cbranch_scc1 %s' % redo)
    p.label(back)

    def rare():
        p.label(redo)
        wp_base(p)
        for f in range(CFG['nwa']):
            w_load(p, f)
        p('s_branch %s' % back)
    cold.append(rare)
    vb_masks(p)
    emit_all(p, p2_setup())
    p('s_waitcnt vmcnt(0) lgkmcnt(0)')
    stamp(p, 20)


def p1_grp1(p):
    VX, VWA, VWB = 8, 9, 10
    GG, GF, GA, GN = 18, 36, 44, 52
    sXB, sWBs, sLX, sLW, sKX, sKW, sGT, sL = 84, 85, 86, 87, 88, 89, 90, 91
    prio(p, 2)
    p('s_sub_u32 s%d, s%d, 4' % (sL, sW))
    rot_scalar(p)
    p('v_lshrrev_b32 v12, 3, v0')
    p('s_lshl_b32 s6, s%d, 3' % sL)
    p('v_add_u32 v12, s6, v12')
    p('v_mul_u32_u24 v12, 1280, v12')
    p('v_lshrrev_b32 v13, 4, v0')
    p('s_and_b32 s6, s%d, 1' % sL)
    p('s_lshl_b32 s6, s6, 2')
    p('v_add_u32 v7, s6, v13')
    p('v_and_b32 v11, 7, v0')
    p('v_xor_b32 v7, v7, v11')
    p('v_lshl_add_u32 v%d, v7, 4, v12' % VX)
    p('v_and_b32 v12, 32, v0')
    p('v_bfe_u32 v7, v0, 4, 1')
    p('v_lshl_add_u32 v12, v7, 2, v12')
    p('v_add_u32 v12, s%d, v12' % sL)
    p('v_mul_u32_u24 v12, 3840, v12')
    p('v_and_b32 v7, 15, v0')
    p('v_lshl_add_u32 v%d, v7, 4, v12' % VWA)
    p('s_mul_i32 s%d, s%d, %d' % (sXB, sRB, 128 * 1280))
    p('s_lshl_b32 s%d, s%d, 8' % (sWBs, sCB))
    p('s_lshl_b32 s%d, s%d, 10' % (sLX, sL))
    p('s_mul_i32 s%d, s%d, 2080' % (sLW, sL))
    d = Dma(p, sXB, sWBs, sLX, sLW, sKX, sKW, VX, VWA, VWB)
    d.kbase(0)
    p('s_waitcnt lgkmcnt(0)')
    srd(p, S_WA, KA_ + 2, WQ_BYTES)
    srd(p, S_X, KA_, X_BYTES)
    stamp(p, 1)
    d.chunk(0)
    srd(p, S_GW, KA_ + 12, 1280)
    srd(p, S_WB, KA_ + 8, WQ_BYTES)
    p('s_mul_i32 s3, s%d, 320' % sL)
    p('s_add_u32 m0, s3, %d' % GW_OFF)
    p('v_lshlrev_b32 v16, 4, v0')
    p('s_mov_b64 exec, 0xfffff')
    p('buffer_load_dwordx4 v16, %s, s3 offen lds' % sr(S_GW))
    p('s_mov_b64 exec, -1')
    d.other(0)
    d.chunk(1)
    late_scalars(p)
    p('s_mov_b32 s92, s%d' % sFL)
    wb_voffset(p, VWB, sL)
    gemm_addr(p, sL)
    gemm_scalars(p, sL, 1, sFL)
    p('s_xor_b32 s%d, s%d, s%d' % (sGT, sCB, sL))
    p('v_lshlrev_b32 v7, 4, v13')
    p('v_add_u32 v%d, %d, v7' % (GG, GW_OFF))
    todo = list(range(2, CFG['g1last'] + 1))
    for c in range(10):
        d.wait_chunks(c)
        if c:
            p('s_waitcnt lgkmcnt(0)')
        if c % 2 == 0 and c < 8:
            stamp(p, 2 + c // 2)
        p('s_barrier')
        for t, _ in x_reads(c):
            p(t)
        n = 1 if c < 8 else (CFG['n8'] if c == 8 else 9)
        while todo and n > 0:
            assert todo[0] < 10 or FREE_B[todo[0]] <= c
            d.chunk(todo.pop(0))
            n -= 1
        k = p.newlabel('nogate')
        p('s_cmp_lg_u32 s%d, 0' % sGT)
        p('s_cbranch_scc1 %s' % k)
        d.kchunk(c)
        p('s_lshl_b32 s3, s3, 7')
        p('v_add_u32 v%d, s3, v%d' % (GG + 1, GG))
        for st in range(2):
            p('ds_read_b128 %s, v%d offset:%d' % (v(GF + st * 4, 4), GG + 1, st * 64))
        p('s_waitcnt lgkmcnt(0)')
        for st in range(2):
            for t in range(2):
                p('v_mfma_f32_16x16x32_bf16 %s, %s, %s, %s' % (v(GA + t * 4, 4), v(GF + st * 4, 4), v(X + ((2 * c + st) * 2 + t) * 4, 4), '0' if (c == 0 and st == 0) else v(GA + t * 4, 4)))
        p.label(k)
        if c == 5:
            nonce_issue(p, GN)
            d.other('n')
        if c == 8:
            d.wait(lambda x: x == 'n')
            nonce_check(p, GN)
            p('v_readfirstlane_b32 s30, v%d' % GN)
            p('v_readfirstlane_b32 s31, v%d' % (GN + 1))
    p('v_cmp_gt_u32 vcc, 16, v0')
    p('s_lshl_b32 s3, s%d, 2' % sRB)
    p('s_add_u32 s3, s3, s%d' % sL)
    p('s_lshl_b32 s3, s3, 9')
    p('s_add_u32 s3, s3, %d' % G_OFF)
    p('s_mov_b32 s7, %s' % f32(-1.4426950408889634))
    p('v_cndmask_b32 v7, v%d, v%d, vcc' % (GA + 4, GA))
    p('v_mul_f32 v7, s7, v7')
    p('v_exp_f32 v7, v7')
    p('v_mov_b32 v%d, 0' % (GN - 1))
    p('v_add_f32 v7, 1.0, v7')
    p('v_rcp_f32 v%d, v7' % (GN - 2))
    p('s_cmp_eq_u32 s%d, 0' % sGT)
    p('s_cselect_b32 s3, s3, s92')
    p('s_cselect_b32 exec_lo, -1, 0xff')
    p('s_mov_b32 exec_hi, 0')
    p('buffer_store_dwordx4 %s, v16, %s, s3 offen sc1' % (v(GN - 2, 4), WS))
    p('s_mov_b64 exec, -1')
    d.other()
    vb_masks(p)
    p('s_waitcnt lgkmcnt(0)')
    p('v_add_u32 v2, %d, v4' % (8 * WSLOT))
    prio(p, 0)
    side = {}
    L = epilogue(1, range(4))
    f = 242
    while L:
        side[f] = L[:CFG['b1rate']]
        del L[:CFG['b1rate']]
        f += 1
    gemm_stream(p, 160, 320, CFG['BB'], lambda c: d.wait_chunks(cert_limit(c)), side, (4, 5, 2), False)
    stamp(p, 18)
    prio(p, 2)
    fill = p2_setup() + ['v_mov_b32 v%d, s30' % VNON, 'v_mov_b32 v%d, s31' % (VNON + 1)]
    per = (len(fill) - 3) // 3
    for x in epilogue(1, range(4, 8), True):
        p(x)
        if 'buffer_store' in x:
            emit_all(p, fill[:per])
            del fill[:per]
    emit_all(p, fill)
    stamp(p, 19)


def p1_spare(p):
    S_WO = S_X
    p('s_and_b32 s3, s2, 7')
    p('s_lshl_b32 s5, s3, 1')
    p('s_add_u32 s5, s5, s4')
    p('s_sub_u32 s%d, s5, 30' % T0)
    p('s_waitcnt lgkmcnt(0)')
    p('s_cmp_lt_u32 s%d, 8' % T0)
    p('s_cselect_b32 s6, s%d, s%d' % (KA_ + 4, KA_ + 10))
    p('s_cselect_b32 s7, s%d, s%d' % (KA_ + 5, KA_ + 11))
    srd(p, S_WO, 6, WO_BYTES)
    srd(p, S_WB, KA_ + 8, WQ_BYTES)
    late_scalars(p)
    if CFG['cpf'] == 1:
        k = p.newlabel('pc')
        p('s_getpc_b64 s[4:5]')
        p.label(k)
        p('s_sub_u32 s4, s4, %s-%s_kernel' % (k, NAME))
        p('s_subb_u32 s5, s5, 0')
        p('s_and_b32 s3, s%d, 1' % T0)
        p('s_lshl_b32 s3, s3, 3')
        p('s_add_u32 s3, s3, s%d' % sW)
        p('v_lshl_add_u32 v4, v0, 4, s3')
        p('v_lshlrev_b32 v4, 7, v4')
        p('v_min_u32 v4, .Lhot_end-%s_kernel, v4' % NAME)
        p('s_mov_b32 exec_hi, 0')
        p('global_load_dword v35, v4, s[4:5]')
        p('s_mov_b32 exec_hi, -1')
    if CFG['wbwarm'] == 1:
        p('v_lshlrev_b32 v4, 7, v0')
        p('s_lshl_b32 s3, s%d, 3' % T0)
        p('s_add_u32 s3, s3, s%d' % sW)
        p('s_mul_i32 s6, s3, 19200')
        p('s_mov_b32 exec_hi, 0x3ffff')
        for i in range(3):
            p('s_add_u32 s7, s6, %d' % (i * 6400))
            p('buffer_load_dword v%d, v4, %s, s7 offen' % (32 + i, sr(S_WB)))
        p('s_mov_b32 exec_hi, -1')
    for i in range(5):
        p('v_add_u32 v7, %d, v0' % (64 * i))
        p('v_mul_u32_u24 v8, 1639, v7')
        p('v_lshrrev_b32 v8, 16, v8')
        p('v_mul_u32_u24 v8, 640, v8')
        p('v_lshl_add_u32 v%d, v7, 4, v8' % (16 + i))
    p('s_bfe_u32 s3, s%d, 0x20001' % T0)
    p('s_mul_i32 s3, s3, 160')
    p('s_mul_i32 s4, s%d, 20' % sW)
    p('s_add_u32 s3, s3, s4')
    p('s_mul_i32 s3, s3, 1280')
    p('s_and_b32 s4, s%d, 1' % T0)
    p('s_mul_i32 s4, s4, 640')
    p('s_add_u32 s5, s3, s4')
    p('s_mul_i32 s6, s%d, 12800' % sW)
    for i in range(13):
        p('s_add_u32 m0, s6, %d' % (i * 1024))
        p('s_add_u32 s3, s5, %d' % ((i // 5) * 8 * 1280))
        if i == 12:
            p('s_mov_b32 exec_hi, 0')
        p('buffer_load_dwordx4 v%d, %s, s3 offen %s lds' % (16 + i % 5, sr(S_WO), CFG['nto']))
        if i == 12:
            p('s_mov_b32 exec_hi, -1')
    nonce_issue(p)
    p('s_lshr_b32 s4, s%d, 1' % sW)
    p('s_mul_i32 s4, s4, 160')
    p('v_bfe_u32 v7, v0, 2, 3')
    p('v_lshrrev_b32 v8, 5, v0')
    p('v_mul_u32_u24 v8, 20, v8')
    p('v_add_u32 v8, v8, v7')
    p('v_mul_u32_u24 v8, 640, v8')
    p('v_and_b32 v9, 3, v0')
    p('v_lshl_add_u32 v9, v9, 3, s4')
    p('v_add_u32 v22, v8, v9')
    p('v_add_u32 v23, %d, v22' % (80 * 640))
    p('v_lshrrev_b32 v8, 4, v0')
    p('v_mul_u32_u24 v8, 20, v8')
    p('v_and_b32 v7, 3, v7')
    p('v_add3_u32 v8, v8, v7, 16')
    p('v_mul_u32_u24 v8, 640, v8')
    p('v_add_u32 v24, v8, v9')
    p('v_lshlrev_b32 v1, 4, v0')
    p('s_lshl_b32 s3, s%d, 2' % T0)
    p('s_lshr_b32 s4, s%d, 1' % sW)
    p('s_add_u32 s3, s3, s4')
    p('s_mul_i32 s5, s3, 25600')
    p('s_add_u32 s5, s5, %d' % WP_OFF)
    p('s_lshl_b32 s3, s%d, 3' % T0)
    p('s_add_u32 s3, s3, s%d' % sW)
    p('s_lshl_b32 s3, s3, 7')
    p('s_add_u32 s%d, s3, %d' % (T0 + 1, FW_OFF))
    p('s_waitcnt vmcnt(0)')
    stamp(p, 2)
    nonce_check(p)
    p('s_barrier')
    odd, done = p.newlabel('odd'), p.newlabel('packed')
    p('s_bitcmp1_b32 s%d, 0' % sW)
    p('s_cbranch_scc1 %s' % odd)
    for half, fr in ((0, range(0, 13)), (1, range(13, 25))):
        if half:
            p.label(odd)
        for n, f in enumerate(fr):
            st, u = f // 5, f % 5
            for j in range(2):
                d = v(32 + n * 4 + j * 2, 2)
                if st < 4:
                    p('ds_read_b64_tr_b16 %s, v%d offset:%d' % (d, 22 + st // 2, (st % 2) * 40 * 640 + j * 8 * 640 + u * 32))
                else:
                    p('ds_read_b64_tr_b16 %s, v24 offset:%d' % (d, j * 80 * 640 + u * 32))
            if n % 4 == 3:
                p('s_waitcnt lgkmcnt(4)')
        p('s_waitcnt lgkmcnt(0)')
        for n, f in enumerate(fr):
            p('s_add_u32 s3, s5, %d' % (f * 1024))
            p('buffer_store_dwordx4 %s, v1, %s, s3 offen sc1' % (v(32 + n * 4, 4), WS))
        if not half:
            p('s_branch %s' % done)
    p.label(done)
    p('s_waitcnt vmcnt(0)')
    flag_store(p, T0 + 1)
    p('s_barrier')
    stamp(p, 3)


VL16, VM, VHH = 1, 4, 5
AK1, AK2, AV, BV, VGO = 8, 9, 10, 11, 13
QB2, VG, Q1, Q2 = 18, 20, 24, 28
AQ1, AQ2 = 16, 17
MSK, KF, VF, PP, O, S, QB1 = 32, 40, 56, 72, 88, 104, 152
WF3 = 156


def p2_setup():
    return [
        'v_and_b32 v%d, 31, v0' % VM,
        'v_lshrrev_b32 v%d, 5, v0' % VHH,
        's_lshl_b32 s4, s%d, 5' % sW,
        'v_add_u32 v7, s4, v%d' % VM,
        'v_lshlrev_b32 v15, 13, v%d' % VHH,
        'v_lshl_add_u32 v15, v7, 4, v15',
        'v_add_u32 v%d, %d, v15' % (AK1, KA_OFF),
        'v_lshlrev_b32 v15, 3, v7',
        'v_add_u32 v%d, %d, v15' % (AK2, KA_OFF + 16384),
        'v_lshlrev_b32 v15, 12, v%d' % VHH,
        'v_lshl_add_u32 v15, v7, 4, v15',
        'v_add_u32 v%d, %d, v15' % (AQ1, QA_OFF),
        's_lshl_b32 s4, s%d, 3' % sODD,
        's_add_u32 s4, s4, %d' % (QA_OFF + 8192),
        'v_lshl_add_u32 v%d, v7, 4, s4' % AQ2,
        'v_mov_b32 v%d, 0' % Q2,
        'v_mov_b32 v%d, 0' % (Q2 + 1),
        'v_bfe_u32 v20, v0, 4, 1',
        'v_and_b32 v21, 3, v0',
        'v_lshl_add_u32 v20, v20, 2, v21',
        'v_add_u32 v21, s%d, v20' % sODD,
        'v_bfe_u32 v22, v0, 2, 2',
        'v_lshl_add_u32 v22, v%d, 2, v22' % VHH,
        'v_lshlrev_b32 v22, 4, v22',
        'v_and_b32 v23, 1, v21',
        'v_lshl_add_u32 v23, v23, 3, v22',
        'v_lshrrev_b32 v21, 1, v21',
        'v_cmp_lt_u32 vcc, 4, v20',
        's_lshl_b32 s4, s%d, 9' % sW,
        's_add_u32 s4, s4, %d' % VA_OFF,
        'v_mul_u32_u24 v7, %d, v21' % VA_STR,
        'v_add3_u32 v7, v7, v23, s4',
        'v_add_u32 v15, %d, v22' % ONES_OFF,
        'v_cndmask_b32 v%d, v7, v15, vcc' % AV,
        's_mul_i32 s4, s%d, %d' % (sW, VB_WAVE),
        'v_mul_u32_u24 v7, %d, v21' % VB_STR,
        'v_add3_u32 v7, v7, v23, s4',
        'v_cndmask_b32 v%d, v7, v15, vcc' % BV,
        'v_lshlrev_b32 v%d, 4, v0' % VL16,
    ]


def kread(t, st, kf=KF):
    return ['ds_read_b128 %s, v%d offset:%d' % (v(kf + st * 8, 4), AK1, t * 512),
            'ds_read_b64 %s, v%d offset:%d' % (v(kf + st * 8 + 4, 2), AK2, t * 256)]


def smf(dst, st, kf=KF, q1=Q1, q2=Q2):
    d = v(dst, 16)
    return ['v_mfma_f32_32x32x16_bf16 %s, %s, %s, 0' % (d, v(kf + st * 8, 4), v(q1, 4)),
            'v_mfma_f32_32x32x8_bf16 %s, %s, %s, %s' % (d, v(kf + st * 8 + 4, 2), v(q2, 2), d)]


def vread(av, t, st):
    return ['ds_read_b64_tr_b16 %s, v%d offset:%d' % (v(VF + st * 8 + m2 * 4 + j * 2, 2), av, t * 512 + m2 * 256 + j * 128) for m2 in range(2) for j in range(2)]


def pvm(st, pp, first=False):
    return ['v_mfma_f32_32x32x16_bf16 %s, %s, %s, %s' % (v(O, 16), v(VF + st * 8 + m2 * 4, 4), v(pp + m2 * 4, 4), '0' if (first and m2 == 0) else v(O, 16)) for m2 in range(2)]


def exps(t):
    return ['v_exp_f32 v%d, v%d' % (t + r, t + r) for r in range(16)]


def cvts(t, dst):
    return ['v_cvt_pk_bf16_f32 v%d, v%d, v%d' % (dst + i, t + 2 * i, t + 2 * i + 1) for i in range(8)]


def finish(p, br):
    p('v_rcp_f32 v7, v%d' % (O + 12))
    if br == 1:
        p('v_sub_f32 v%d, 1.0, v%d' % (VG, VG))
        p('s_add_u32 s30, s30, %d' % O_BR)
        p('s_add_u32 s31, s31, %d' % F2_BR)
    p('v_mul_f32 v16, v7, v%d' % VG)
    for r in range(0, 8):
        p('v_mul_f32 v%d, v16, v%d' % (O + r, O + r))
    for i in range(4):
        p('v_cvt_pk_bf16_f32 v%d, v%d, v%d' % (PP + i, O + 2 * i, O + 2 * i + 1))
    p('buffer_store_dwordx4 %s, v%d, %s, s30 offen sc1' % (v(PP, 4), VL16, WS))
    for r in range(8, 12):
        p('v_mul_f32 v%d, v16, v%d' % (O + r, O + r))
    p('v_lshlrev_b32 v7, 3, v0')
    for i in range(4, 6):
        p('v_cvt_pk_bf16_f32 v%d, v%d, v%d' % (PP + i, O + 2 * i, O + 2 * i + 1))
    p('s_mov_b32 exec_hi, 0')
    p('buffer_store_dwordx2 %s, v7, %s, s30 offen offset:1024 sc1' % (v(PP + 4, 2), WS))
    p('s_mov_b32 exec_hi, -1')


def half_max(p, M):
    p('v_mov_b32 v%d, v%d' % (M + 1, M))
    p('v_permlane32_swap_b32 v%d, v%d' % (M, M + 1))
    p('v_max_f32 v%d, v%d, v%d' % (M, M, M + 1))


def subm(t, M):
    return ['v_sub_f32 v%d, v%d, v%d' % (t + i, t + i, M) for i in range(16)]


sFV = 26


def safe_path(p, back):
    S0, S1, K2 = S, S + 16, S + 32
    M = 16
    p('v_mov_b32 v7, %s' % NEG_INF)
    emit_all(p, kread(0, 0, K2) + kread(8, 1, K2) + ['s_waitcnt lgkmcnt(0)'] + smf(S0, 0, K2) + smf(S1, 1, K2))
    k = p.newlabel('hasold')
    p('s_cmp_lg_u32 s%d, 0' % sR)
    p('s_cbranch_scc1 %s' % k)
    for r in range(16):
        p('v_mov_b32 v%d, v7' % (S0 + r))
    p.label(k)
    for r in range(16):
        p('v_cndmask_b32 v%d, v%d, v%d, %s' % (S1 + r, S0 + r, S1 + r, mask(r)))
    p('v_max_f32 v%d, v%d, v%d' % (M, S1, S1 + 1))
    for r in range(2, 16, 2):
        p('v_max3_f32 v%d, v%d, v%d, v%d' % (M, M, S1 + r, S1 + r + 1))
    for t in range(1, 8):
        k = p.newlabel('skip')
        p('s_cmp_gt_u32 s%d, %d' % (sFV, t))
        p('s_cbranch_scc1 %s' % k)
        emit_all(p, kread(t, 0, K2) + ['s_waitcnt lgkmcnt(0)'] + smf(S0, 0, K2))
        for r in range(0, 16, 2):
            p('v_max3_f32 v%d, v%d, v%d, v%d' % (M, M, S0 + r, S0 + r + 1))
        p.label(k)
    half_max(p, M)
    emit_all(p, vread(AV, 8, 0) + vread(AV, 0, 1) + subm(S1, M) + exps(S1) + cvts(S1, PP + 8))
    for i in range(8):
        p('v_and_b32 v%d, v%d, v%d' % (PP + i, PP + 8 + i, MSK + i))
    for i in range(8):
        p('v_xor_b32 v%d, v%d, v%d' % (PP + 8 + i, PP + 8 + i, PP + i))
    emit_all(p, ['s_waitcnt lgkmcnt(0)'] + pvm(0, PP, True) + pvm(1, PP + 8))
    for t in range(1, 8):
        k = p.newlabel('skip')
        p('s_cmp_gt_u32 s%d, %d' % (sFV, t))
        p('s_cbranch_scc1 %s' % k)
        emit_all(p, kread(t, 0, K2) + vread(AV, t, 0) + ['s_waitcnt lgkmcnt(0)'] + smf(S0, 0, K2) + subm(S0, M) + exps(S0) + cvts(S0, PP) + pvm(0, PP))
        p.label(k)
    p('s_branch %s' % back)


def zero_if(p, cmp_text, regs):
    k, L = p.newlabel('valid'), p.newlabel('zero')
    p(cmp_text)
    p('s_cbranch_scc1 %s' % L)
    p.label(k)

    def rare():
        p.label(L)
        for r in regs:
            p('v_mov_b32 v%d, 0' % r)
        p('s_branch %s' % k)
    cold.append(rare)


sWP = sCB


def wp_base(p):
    p('s_lshl_b32 s3, s%d, 3' % sW)
    p('s_add_u32 s3, s3, s%d' % sN)
    p('s_mul_i32 s3, s3, 25600')
    p('s_add_u32 s%d, s3, %d' % (sWP, WP_OFF))


def w_load(p, f, va=None):
    if f % 4 == 0 and f:
        p('s_add_u32 s%d, s%d, 4096' % (sWP, sWP))
    p('buffer_load_dwordx4 %s, v%d, %s, s%d offen offset:%d sc1' % (v(WF3 + f * 4, 4), va or VL16, WS, sWP, (f % 4) * 1024))


def phase2(p, grp):
    S0, S1, S2 = S, S + 16, S + 32
    safe, back = p.newlabel('safe'), p.newlabel('back')
    cold.append(lambda: (p.label(safe), safe_path(p, back)))
    sQB, sKP, sLATE = 28, 29, sROT
    p('s_barrier')
    stamp(p, 21)
    prio(p, 3)
    p('ds_read_b128 %s, v%d' % (v(Q1, 4), AQ1))
    p('s_mov_b32 exec_hi, 0')
    p('ds_read_b64 %s, v%d' % (v(Q2, 2), AQ2))
    p('s_mov_b32 exec_hi, -1')
    emit_all(p, kread(0, 0) + kread(8, 1))
    if grp == 1:
        wp_base(p)
    p('s_sub_u32 s%d, 8, s%d' % (sFV, sW))
    p('s_cmp_eq_u32 s%d, 0' % sR)
    p('s_cselect_b32 s%d, s%d, 0' % (sFV, sFV))
    p('v_mov_b32 v7, 0xffff')
    for i in range(8):
        p('v_cndmask_b32 v%d, 0, v7, %s' % (MSK + i, mask(2 * i)))
    p('s_waitcnt lgkmcnt(2)')
    a = smf(S0, 0)
    p(a[0])
    for i in range(4):
        p('v_cndmask_b32 v%d, v%d, -1, %s' % (MSK + i, MSK + i, mask(2 * i + 1)))
    p(a[1])
    emit_all(p, kread(1, 0))
    for i in range(4, 8):
        p('v_cndmask_b32 v%d, v%d, -1, %s' % (MSK + i, MSK + i, mask(2 * i + 1)))
    p('s_waitcnt lgkmcnt(2)')
    nvm = [0]
    wq = list(range(0 if grp else CFG['nwa'], 25))
    site = [0]

    def wl():
        site[0] += 1
        if wq and (grp == 0 or site[0] <= CFG['nwb1']):
            w_load(p, wq.pop(0))
            nvm[0] += 1
    pb = [
        'v_and_b32 v20, 1, v0',
        's_sub_u32 s3, s%d, 1' % sRB32,
        'v_add_u32 v21, s3, v20',
        'v_max_i32 v21, 0, v21',
        'v_lshrrev_b32 v23, 2, v0',
        'v_min_u32 v23, 2, v23',
        'v_cmp_eq_u32 vcc, 0, v23',
        'v_mul_u32_u24 v22, 5, v23',
        'v_mov_b32 v23, s%d' % sRB32,
        'v_and_b32 v20, 2, v0',
        'v_cndmask_b32 v21, v21, v23, vcc',
        'v_add_u32 v20, s%d, v20' % sC0,
        'v_lshrrev_b32 v20, 4, v20',
        'v_add_u32 v20, v20, v22',
        'v_lshl_add_u32 v20, v21, 4, v20',
        'v_lshlrev_b32 v20, 7, v20',
        'v_add_u32 v%d, %d, v20' % (VPOLL, F1B_OFF),
        'v_lshlrev_b32 v%d, 4, v%d' % (VGO, VM),
        'v_mov_b32 v%d, 0' % QB2,
        'v_mov_b32 v%d, 0' % (QB2 + 1),
    ]
    b = smf(S1, 1)
    emit_all(p, [b[0]] + pb[:6] + [b[1]] + kread(2, 1) + vread(AV, 8, 0) + vread(AV, 0, 1) + ['s_waitcnt lgkmcnt(10)'])
    c2 = smf(S2, 0)
    emit_all(p, [c2[0]] + pb[6:13] + [c2[1]] + pb[13:] + [wl])
    for r in range(16):
        p('v_cndmask_b32 v%d, v%d, v%d, %s' % (S1 + r, S0 + r, S1 + r, mask(r)))
    e = exps(S1)
    emit_all(p, [wl] + e[:8] + [wl] + e[8:] + [wl] + cvts(S1, PP + 8))
    for i in range(8):
        p('v_and_b32 v%d, v%d, v%d' % (PP + i, PP + 8 + i, MSK + i))
    wl()
    for i in range(8):
        p('v_xor_b32 v%d, v%d, v%d' % (PP + 8 + i, PP + 8 + i, PP + i))
    zero_if(p, 's_cmp_eq_u32 s%d, 0' % sR, range(PP + 8, PP + 16))
    stamp(p, 22)

    def b_loads():
        p('v_add_u32 v16, s%d, v%d' % (sODD, VHH))
        p('v_lshl_add_u32 v16, v16, 11, v%d' % VGO)
        p('s_cmp_eq_u32 s%d, 0' % sODD)
        p('s_cselect_b32 s4, 4096, 8')
        p('v_add_u32 v17, s4, v%d' % VGO)
        p('s_add_u32 s5, s%d, %d' % (sQB, 80 * 2048))
        p('s_add_u32 s6, s%d, %d' % (sKP, 80 * 2048))
        p('buffer_load_dwordx4 %s, v16, %s, s%d offen sc1' % (v(QB1, 4), WS, sQB))
        p('s_mov_b32 exec_hi, 0')
        p('buffer_load_dwordx2 %s, v17, %s, s%d offen sc1' % (v(QB2, 2), WS, sQB))
        p('s_mov_b32 exec_hi, -1')
        for st, so in ((0, 6), (1, 5)):
            p('buffer_load_dwordx4 %s, v16, %s, s%d offen sc1' % (v(KF + st * 8, 4), WS, so))
            p('buffer_load_dwordx2 %s, v17, %s, s%d offen sc1' % (v(KF + st * 8 + 4, 2), WS, so))
        p('s_sub_u32 s4, s%d, s%d' % (sQB, sKP))
        p('v_mul_lo_u32 v16, s4, v%d' % VHH)
        p('v_add_u32 v16, v16, v%d' % VGO)
        p('s_mul_i32 s4, s%d, %d' % (sW, VB_WAVE))
        for j in range(3):
            p('s_add_u32 m0, s4, %d' % (j * VB_STR))
            p('s_add_u32 s3, s%d, %d' % (sKP, (160 + j) * 2048))
            p('buffer_load_dwordx4 v16, %s, s3 offen sc1 lds' % WS)

    sc_b = [
        's_lshr_b32 s3, s%d, 2' % sRB32,
        's_mul_i32 s3, s3, %d' % QKV_RB,
        's_and_b32 s4, s%d, 3' % sRB32,
        's_lshl_b32 s4, s4, 9',
        's_add_u32 s3, s3, s4',
        's_lshl_b32 s5, s%d, 11' % sC0,
        's_add_u32 s5, s5, %d' % QKV_BR,
        's_add_u32 s%d, s3, s5' % sQB,
        's_sub_u32 s3, s%d, 1' % sRB32,
        's_max_i32 s4, s3, 0',
        's_lshr_b32 s3, s4, 2',
        's_mul_i32 s3, s3, %d' % QKV_RB,
        's_and_b32 s4, s4, 3',
        's_lshl_b32 s4, s4, 9',
        's_add_u32 s3, s3, s4',
        's_add_u32 s%d, s3, s5' % sKP,
        's_lshl_b32 s3, s%d, 5' % sRB32,
        's_add_u32 s3, s3, s%d' % sH,
        's_mul_i32 s4, s3, 1280',
        's_add_u32 s30, s4, %d' % O_OFF,
        's_lshl_b32 s4, s3, 7',
        's_add_u32 s31, s4, %d' % F2_OFF,
        's_lshl_b32 s3, s%d, 9' % sRB32,
        's_add_u32 s%d, s3, %d' % (sRB, G_OFF),
    ]
    gload = lambda: p('buffer_load_dwordx4 %s, v%d, %s, s%d offen sc1' % (v(VG, 4), VGO, WS, sRB))
    sb = lambda t: S + 16 * ((t + 1) % 3)
    for t in range(1, 8):
        cur = sb(t)
        e, c = exps(cur), cvts(cur, PP + 8 * (t & 1))
        sn = smf(sb(t + 1), t & 1) if t < 7 else []
        kr = kread(t + 2, (t + 1) & 1) if t < 6 else []
        vr = vread(AV, t, t & 1)
        if t in (1, 3, 5):
            prio(p, {1: 2, 3: 1, 5: 0}[t])
        p('s_waitcnt lgkmcnt(0)')
        if t == 1:
            po, pd = pvm(1, PP + 8, True), pvm(0, PP)
            L = ([po[0]] + kr + e[0:3] + [po[1], wl] + vr + e[3:6] + [sn[0], wl] + e[6:9] + [sn[1], wl] + e[9:12] + [pd[0], wl] + e[12:16]
                 + [pd[1]] + c)
        else:
            pv = pvm((t - 1) & 1, PP + 8 * ((t - 1) & 1))
            if t < 7:
                L = ([sn[0]] + kr + vr + e[0:4] + [pv[0], wl] + e[4:8] + c[0:2] + [sn[1], wl] + e[8:12] + c[2:4] + [pv[1], wl] + e[12:16] + [wl] + c[4:8])
            else:
                L = [pv[0]] + vr + e[0:4] + [pv[1]] + e[4:16] + c
        if t == 2:
            L2 = []
            for x in L:
                L2.append(x)
                if sc_b and isinstance(x, str) and x.startswith('v_exp'):
                    L2 += sc_b[:2]
                    del sc_b[:2]
            L = L2
        emit_all(p, L)
        zero_if(p, 's_cmp_gt_u32 s%d, %d' % (sFV, t), range(PP + 8 * (t & 1), PP + 8 * (t & 1) + 8))
        if t == CFG['flagblk'] and grp == 1:
            p('s_waitcnt vmcnt(%d)' % nvm[0])
            flag_store(p, sFL)
            nvm[0] += 1
            stamp(p, 23)
        if t == 5:
            gload()
            poll_issue(p, VPD, VPOLL)
        if t == 6:
            nb = p.newlabel('notyet')
            p('s_waitcnt vmcnt(0)')
            p('v_cmp_ne_u64 vcc, %s, %s' % (v(VPD, 2), v(VNON, 2)))
            p('s_mov_b32 s%d, 1' % sLATE)
            if CFG['force_late']:
                p('s_branch %s' % nb)
            else:
                p('s_cbranch_vccnz %s' % nb)
            p('s_mov_b32 s%d, 0' % sLATE)
            b_loads()
            if CFG['poll2']:
                j2 = p.newlabel('j2')
                p.label(j2)
                cold.append(lambda: (p.label(nb), poll_issue(p, VPD, VPOLL), p('s_branch %s' % j2)))
            else:
                p.label(nb)
            stamp(p, 24)
    p('s_waitcnt lgkmcnt(0)')
    emit_all(p, pvm(1, PP + 8))
    if CFG['poll2']:
        c2l, j3 = p.newlabel('chance2'), p.newlabel('j3')
        p('s_cmp_lg_u32 s%d, 0' % sLATE)
        p('s_cbranch_scc1 %s' % c2l)
        p.label(j3)

        def chance2():
            p.label(c2l)
            p('s_waitcnt vmcnt(0)')
            p('v_cmp_ne_u64 vcc, %s, %s' % (v(VPD, 2), v(VNON, 2)))
            if CFG['force_late'] == 2:
                p('s_branch %s' % j3)
            else:
                p('s_cbranch_vccnz %s' % j3)
            p('s_mov_b32 s%d, 0' % sLATE)
            b_loads()
            p('s_branch %s' % j3)
        cold.append(chance2)
    prio(p, 2)
    poll_check(p, VG + 2, gload)
    p('s_mov_b32 s3, %s' % f32(2.0 ** 60))
    p('v_cmp_gt_f32 s[6:7], s3, v%d' % (O + 12))
    p('v_add_f32 v16, v%d, v%d' % (O, O + 2))
    p('v_add_f32 v17, v%d, v%d' % (O + 1, O + 3))
    for r in range(4, 12):
        p('v_add_f32 v%d, v%d, v%d' % (16 + r % 2, 16 + r % 2, O + r))
    p('v_cmp_lt_f32 vcc, %s, v%d' % (f32(2.0 ** -60), O + 12))
    p('v_add_f32 v7, v16, v17')
    p('s_mov_b32 s3, 0x7f800000')
    p('v_cmp_gt_f32 s[4:5], s3, abs(v7)')
    p('s_and_b64 s[6:7], s[6:7], vcc')
    p('s_and_b64 s[4:5], s[4:5], s[6:7]')
    p('s_cmp_eq_u64 s[4:5], -1')
    if CFG['force_safe']:
        p('s_branch %s' % safe)
    else:
        p('s_cbranch_scc0 %s' % safe)
    p.label(back)
    finish(p, 0)
    stamp(p, 25)
    late, lateb = p.newlabel('late'), p.newlabel('lateb')
    p('s_cmp_lg_u32 s%d, 0' % sLATE)
    p('s_cbranch_scc1 %s' % late)
    p.label(lateb)

    def late_path():
        p.label(late)
        poll_issue(p, VPD, VPOLL)
        p('s_waitcnt vmcnt(0)')
        flag_store(p, 31)
        poll_check(p, VPD, lambda: poll_issue(p, VPD, VPOLL))
        b_loads()
        p('s_waitcnt vmcnt(0)')
        p('s_branch %s' % lateb)
    cold.append(late_path)
    prio(p, 1)
    p('s_waitcnt vmcnt(2)')
    stamp(p, 26)
    M = 16
    a, b = smf(S0, 0, KF, QB1, QB2), smf(S1, 1, KF, QB1, QB2)
    po = p3_setup()
    emit_all(p, [a[0]] + vread(BV, 0, 1) + [a[1]] + vread(BV, 1, 0) + [b[0]] + po[:8] + [b[1]] + po[8:] + ['v_mov_b32 v7, %s' % NEG_INF])
    for r in range(16):
        p('v_cndmask_b32 v%d, v%d, v%d, %s' % (S1 + r, S0 + r, S1 + r, mask(r)))
    for r in range(16):
        p('v_cndmask_b32 v%d, v7, v%d, %s' % (S1 + r, S1 + r, vbm(r)))
    p('v_max_f32 v%d, v%d, v%d' % (M, S1, S1 + 1))
    p('v_max_f32 v%d, v%d, v%d' % (M + 1, S1 + 2, S1 + 3))
    for r in range(4, 16, 2):
        p('v_max3_f32 v%d, v%d, v%d, v%d' % (M + (r // 2) % 2, M + (r // 2) % 2, S1 + r, S1 + r + 1))
    p('v_max_f32 v%d, v%d, v%d' % (M, M, M + 1))
    half_max(p, M)
    emit_all(p, subm(S1, M) + exps(S1) + cvts(S1, PP + 8))
    for i in range(8):
        p('v_and_b32 v%d, v%d, v%d' % (PP + i, PP + 8 + i, MSK + i))
    p('s_waitcnt lgkmcnt(0)')
    pd = pvm(0, PP, True)
    p(pd[0])
    for i in range(8):
        p('v_xor_b32 v%d, v%d, v%d' % (PP + 8 + i, PP + 8 + i, PP + i))
    emit_all(p, [pd[1]] + pvm(1, PP + 8))
    p('s_waitcnt vmcnt(0)')
    flag_store(p, 31)
    stamp(p, 27)
    finish(p, 1)
    stamp(p, 28)
    if not wq:
        poll_issue(p, VPD, VPOLL)
        p('s_waitcnt vmcnt(1)')
        flag_store(p, 31)
        stamp(p, 29)
        if grp == 1:
            p('s_barrier')
        pend3[0] = 1
    else:
        n = min(len(wq), CFG['nwb2'])
        for _ in range(n):
            w_load(p, wq.pop(0))
        p('s_waitcnt vmcnt(%d)' % n)
        flag_store(p, 31)
        stamp(p, 29)
        p('s_barrier')
        while wq:
            w_load(p, wq.pop(0))
        poll_issue(p, VPD, VPOLL)
        pend3[0] = 0


pend3 = [0]
VO1, VO2, VPW = 8, 9, 10
OF, ACC3 = 32, 112


def p3_setup():
    return [
        'v_and_b32 v15, 15, v0',
        'v_mul_u32_u24 v16, 1280, v%d' % VHH,
        'v_bfe_u32 v17, v0, 4, 1',
        'v_lshl_add_u32 v16, v17, 9, v16',
        'v_lshl_add_u32 v%d, v15, 4, v16' % VO1,
        'v_lshrrev_b32 v16, 4, v0',
        'v_mul_u32_u24 v16, 1280, v16',
        'v_lshl_add_u32 v%d, v15, 3, v16' % VO2,
        'v_mul_u32_u24 v15, 160, v15',
        'v_mul_u32_u24 v17, 10240, v17',
        'v_lshl_add_u32 v15, v%d, 4, v15' % VHH,
        's_mul_i32 s3, s%d, 20480' % sW,
        'v_add3_u32 v%d, v15, v17, s3' % VPW,
        's_lshr_b32 s4, s%d, 2' % sW,
        's_and_b32 s5, s%d, 3' % sW,
        's_lshl_b32 s3, s%d, 3' % sM,
        's_add_u32 s3, s3, s5',
        's_mul_i32 s6, s3, %d' % (8 * 1280),
        's_mul_i32 s7, s4, %d' % O_BR,
        's_add_u32 s6, s6, s7',
        's_add_u32 s27, s6, %d' % O_OFF,
        's_lshl_b32 s3, s3, 10',
        's_mul_i32 s7, s4, %d' % F2_BR,
        's_add_u32 s3, s3, s7',
        's_add_u32 s3, s3, %d' % F2_OFF,
        'v_and_b32 v16, 7, v0',
        'v_lshl_add_u32 v16, v16, 7, s3',
        'v_bfe_u32 v17, v0, 3, 1',
        'v_lshl_add_u32 v%d, v17, 12, v16' % VPOLL,
    ]


def phase3(p, grp):
    def tile_scalars(j):
        if CFG['orot']:
            p('s_add_u32 s3, s%d, %d' % (sN, j))
            p('s_and_b32 s3, s3, 3')
        else:
            p('s_mov_b32 s3, %d' % j)
        p('s_mul_i32 s%d, s3, 2560' % (68 + j))
        p('s_lshr_b32 s4, s3, 1')
        p('s_mul_i32 s4, s4, 40960')
        p('s_add_u32 s4, s4, s27')
        p('s_and_b32 s3, s3, 1')
        p('s_lshl_b32 s3, s3, 7')
        b = 72 + j * 4
        p('s_add_u32 s%d, s4, s3' % (b + 2))
        p('s_add_u32 s%d, s%d, 5120' % (b + 3, b + 2))
        p('s_add_u32 s%d, s%d, s3' % (b, b + 2))
        p('s_add_u32 s%d, s%d, 5120' % (b + 1, b))

    def loads(tt):
        b = 72 + tt * 4
        L = ['buffer_load_dwordx4 %s, v%d, %s, s%d offen offset:%d sc1' % (v(OF + (tt * 5 + st) * 4, 4), VO1, WS, b + st // 2, (st % 2) * 2560) for st in range(4)]
        L += ['buffer_load_dwordx2 %s, v%d, %s, s%d offen offset:1024 sc1' % (v(OF + (tt * 5 + 4) * 4 + j * 2, 2), VO2, WS, b + 2 + j) for j in range(2)]
        return L
    for j in range(4):
        tile_scalars(j)
    p('s_waitcnt vmcnt(%d)' % pend3[0])
    poll_check(p, VPD, lambda: poll_issue(p, VPD, VPOLL))
    stamp(p, 30)
    lq = sum([loads(tt) for tt in range(4)], [])
    nis = [0]

    def ld(n):
        for _ in range(n):
            if lq:
                p(lq.pop(0))
                nis[0] += 1
    ld(CFG['oup'])
    stamp(p, 31)

    def wr(tt, u):
        return 'ds_write_b128 v%d, %s offset:%d' % (16 + tt, v(ACC3 + (tt & 1) * 20 + u * 4, 4), u * 32)

    def mm(y1):
        for tt in range(4):
            p('v_add_u32 v%d, s%d, v%d' % (16 + tt, 68 + tt, VPW))
        for tt in range(4):
            if tt == y1 or (grp == 0 and tt == 1):
                p('s_barrier')
            for st in range(5):
                done = tt * 6 + (st + 1 if st < 4 else 6)
                assert nis[0] >= done
                p('s_waitcnt vmcnt(%d)' % (nis[0] - done))
                for u in range(5):
                    acc = v(ACC3 + (tt & 1) * 20 + u * 4, 4)
                    p('v_mfma_f32_16x16x32_bf16 %s, %s, %s, %s' % (acc, v(WF3 + (st * 5 + u) * 4, 4), v(OF + (tt * 5 + st) * 4, 4), '0' if st == 0 else acc))
                    if tt > 0 and u == 2:
                        p(wr(tt - 1, st))
                    if u in (0, 4):
                        ld(1)
        for u in range(5):
            p(wr(3, u))

    if grp == 1:
        mm(CFG['y1'])
        stamp(p, 32)
        p('s_waitcnt lgkmcnt(0)')
        p('s_barrier')
        stamp_out(p)
        p('s_endpgm')
        return
    prio(p, 3)
    mm(-1)
    stamp(p, 32)
    p('s_mul_i32 s6, s%d, %d' % (sM, 64 * 1280))
    p('s_mul_i32 s7, s%d, 160' % sN)
    p('s_add_u32 s6, s6, s7')
    p('s_lshl_b32 s3, s%d, 6' % sW)
    p('v_add_u32 v7, s3, v0')
    p('v_lshlrev_b32 v8, 4, v7')
    p('v_add_u32 v9, 40960, v8')
    for rnd in range(3):
        p('v_add_u32 v15, %d, v7' % (rnd * 256))
        p('v_mul_u32_u24 v20, 6554, v15')
        p('v_lshrrev_b32 v20, 16, v20')
        p('v_mul_u32_u24 v20, %d, v20' % (1280 - 160))
        p('v_lshl_add_u32 v%d, v15, 4, v20' % (12 + rnd))
    p('v_add_u32 v10, 81920, v8')
    p('v_add_u32 v11, 81920, v9')
    p('s_waitcnt lgkmcnt(0)')
    p('s_barrier')
    prio(p, 0)
    SUM, TMP = 32, 56

    def rd(rnd, areg, buf):
        for k in range(4):
            for hf in range(2):
                p('ds_read_b128 %s, v%d offset:%d' % (v(TMP + buf * 32 + k * 8 + hf * 4, 4), areg + k // 2, (k % 2) * 20480 + hf * 10240 + rnd * 4096))

    def add4(rnd, buf, first):
        T = TMP + buf * 32
        if first:
            for i in range(8):
                p('v_add_f32 v%d, v%d, v%d' % (T + i, T + i, T + 8 + i))
            for i in range(8):
                p('v_add_f32 v%d, v%d, v%d' % (T + 16 + i, T + 16 + i, T + 24 + i))
            for i in range(8):
                p('v_add_f32 v%d, v%d, v%d' % (SUM + rnd * 8 + i, T + i, T + 16 + i))
            return
        for i in range(4):
            p('v_pk_add_f32 %s, %s, %s' % (v(T + 2 * i, 2), v(T + 2 * i, 2), v(T + 8 + 2 * i, 2)))
        for i in range(4):
            p('v_pk_add_f32 %s, %s, %s' % (v(T + 16 + 2 * i, 2), v(T + 16 + 2 * i, 2), v(T + 24 + 2 * i, 2)))
        if not first:
            for i in range(4):
                p('v_pk_add_f32 %s, %s, %s' % (v(T + 2 * i, 2), v(T + 2 * i, 2), v(SUM + rnd * 8 + 2 * i, 2)))
        for i in range(4):
            p('v_pk_add_f32 %s, %s, %s' % (v(SUM + rnd * 8 + 2 * i, 2), v(T + 2 * i, 2), v(T + 16 + 2 * i, 2)))

    def out(rnd):
        for i in range(4):
            p('v_cvt_pk_bf16_f32 v%d, v%d, v%d' % (20 + rnd * 4 + i, SUM + rnd * 8 + 2 * i, SUM + rnd * 8 + 2 * i + 1))
        p('buffer_store_dwordx4 %s, v%d, %s, s6 offen' % (v(20 + rnd * 4, 4), 12 + rnd, sr(S_OUT)))
    for rnd in range(3):
        rd(rnd, 8, 0)
        p('s_waitcnt lgkmcnt(0)')
        add4(rnd, 0, True)
    stamp(p, 33)
    prio(p, 3)
    p('s_barrier')
    stamp(p, 34)
    fin = p.newlabel('fin')
    rd(0, 10, 0)
    p('s_waitcnt lgkmcnt(7)')
    rd(1, 10, 1)
    p('s_waitcnt lgkmcnt(8)')
    two = p.newlabel('two')
    p('s_cmp_ge_u32 s%d, 2' % sW)
    p('s_cbranch_scc1 %s' % two)
    p('s_waitcnt lgkmcnt(7)')
    rd(2, 10, 2)
    add4(0, 0, False)
    out(0)
    p('s_waitcnt lgkmcnt(8)')
    add4(1, 1, False)
    out(1)
    p('s_waitcnt lgkmcnt(0)')
    add4(2, 2, False)
    out(2)
    p('s_branch %s' % fin)
    p.label(two)
    add4(0, 0, False)
    out(0)
    p('s_waitcnt lgkmcnt(0)')
    add4(1, 1, False)
    out(1)
    p.label(fin)
    stamp(p, 35)
    stamp_out(p)
    p('s_endpgm')


def kernel(p):
    del cold[:]
    end, spare, ktail, p2b, g0 = [p.newlabel(x) for x in ('end', 'spare', 'ktail', 'p2b', 'g0')]
    prologue(p, end)
    p('s_cmp_ge_u32 s4, 30')
    p('s_cbranch_scc1 %s' % spare)
    p('s_cmp_lt_u32 s%d, 4' % sW)
    p('s_cbranch_scc1 %s' % g0)
    p1_grp1(p)
    p.label(p2b)
    phase2(p, 1)
    phase3(p, 1)
    p.label(spare)
    p1_spare(p)
    k = p.newlabel('sp03')
    p('s_cmp_lt_u32 s%d, 4' % sW)
    p('s_cbranch_scc1 %s' % k)
    vb_masks(p)
    emit_all(p, p2_setup())
    p('s_branch %s' % p2b)
    p.label(k)
    tail_scalars(p)
    tail_vectors(p)
    p('s_mov_b32 s%d, 1' % sNW)
    poll_issue(p, VPD, VPOLL)
    p('s_branch %s' % ktail)
    p.label(end)
    p('s_endpgm')
    p.label(g0)
    p1_grp0(p)
    p.label(ktail)
    kv_tail(p)
    phase2(p, 0)
    phase3(p, 0)
    p.label('.Lhot_end')
    i = 0
    while i < len(cold):
        cold[i]()
        i += 1


HEADER = open('cdna_kernels/%s.s.ref' % NAME).read().split('; Override launch')[0]


def build(extra=None, **cfg):
    CFG.update(cfg)
    n = NAME + '_kernel'
    out = HEADER
    if extra:
        out += '; @launch kernel=%s grid=(256,1,1) block=(512,1,1) lds=%d\n' % (n, LDS_BYTES)
        out += '; @launch kernel=diag_kernel grid=(1,1,1) block=(64,1,1) lds=0\n'
    else:
        out += '; @launch grid=(256,1,1) block=(512,1,1) lds=%d\n' % LDS_BYTES
    out += '.amdgcn_target "amdgcn-amd-amdhsa--gfx950"\n.text\n'
    ks = [(n, kernel)] + ([('diag_kernel', extra)] if extra else [])
    desc = ''
    uid = 0
    for kn, f in ks:
        p = Prog()
        p.uid = uid
        p.label(kn)
        f(p)
        uid = p.uid
        nn = p.fix_hazards()
        ne = p.check_waits([kn])
        mx = p.max_regs()
        print(kn[-12:], 'instrs', len(p.ins), 'nops', nn, 'wait errors', ne, 'max regs', mx, file=sys.stderr)
        assert ne == 0
        out += '.globl %s\n.p2align 8\n.type %s,@function\n' % (kn, kn) + p.text()
        desc += '.p2align 6\n' + kernel_desc(kn, max(mx['v'] + 1, 8), 102)
    out += '.section .rodata,"a"\n' + desc
    return out


if __name__ == '__main__':
    cfg = {}
    args = []
    for a_ in sys.argv[1:]:
        if '=' in a_:
            k, val = a_.split('=')
            cfg[k] = eval(val)
        else:
            args.append(a_)
    path = args[0] if args else 'cdna_kernels/%s.s' % NAME
    open(path, 'w').write(build(**cfg))
```

```python
import sys, struct
sys.path.insert(0, 'gen')
from asm import *

NAME = 'gated_mix__sliding_block__sliding_local_dilated__prompt'

QKV_RB = 240 * 2048
QKV_BR = 16 * QKV_RB
O_OFF = 2 * QKV_BR
O_BR = 64 * 32 * 1280
G_OFF = O_OFF + 2 * O_BR
F1A_OFF = G_OFF + 32768
F1B_OFF = F1A_OFF + 64 * 16 * 128
F2_OFF = F1B_OFF + 64 * 16 * 128
F2_BR = 64 * 32 * 128
FW_OFF = F2_OFF + 2 * F2_BR
DUMMY_OFF = FW_OFF + 128 * 128
WP_OFF = DUMMY_OFF + 2048 * 128
WS_END = WP_OFF + 64 * 25600
ST_OFF = 28 << 20
WS_BYTES = 32 << 20
assert WS_END <= ST_OFF

X_BYTES = 2048 * 1280
WQ_BYTES = 640 * 3840
WO_BYTES = 640 * 1280
OUT_BYTES = 2048 * 1280

WSLOT = 8 * 2080
NWS = 6
XR_OFF = NWS * WSLOT
KA_OFF = XR_OFF
VA_OFF = KA_OFF + 20480
VA_STR = 8192 + 64
ONES_OFF = VA_OFF + 3 * VA_STR
ONES_LEN = 4608
QA_OFF = 149760
GW_OFF = QA_OFF + 12288
VB_WAVE = 3328
VB_STR = 1024 + 64
LDS_BYTES = 163840
assert ONES_OFF + ONES_LEN <= QA_OFF and GW_OFF + 1280 <= LDS_BYTES and VA_OFF % 256 == 0 and XR_OFF % 256 == 0
assert XR_OFF + 3 * WSLOT <= GW_OFF

S_WS, S_OUT = 8, 12
sW, sFL, sH, sR, sC0, sODD, sRB32, sRB, sCB, sROT = 16, 17, 18, 19, 20, 21, 22, 23, 24, 25
sM, sN = sH, sR
T0 = 26
S_DBG = 32
sMASK = 36
sVB = 68
S_X, S_WA, S_WB, S_GW = 68, 72, 76, 80
KA_ = 36
WS = 's[%d:%d]' % (S_WS, S_WS + 3)

VNON = 2
VSTAMP = 6

CFG = dict(stamp=False, light=False, force_safe=False, force_late=False, wsrot=False,
           D=5, rot=(4, 1, 0, 0), cpf=2, wbwarm=2, prio=True, fullflag=16,
           ntx='', nta='', ntb='', nto='nt',
           BB=[10, 12, 14, 17], g1last=15, n8=3, nwa=0, b1rate=1,
           sched='S I WWWW SSS B SSSS WWWWWWWW B WWWW N F B',
           flagblk=1, poll2=True, nwb1=12, nwb2=8, orot=True, oup=12, y1=3)
SPIN = 1 << 15


def f32(x):
    return '0x%08x' % struct.unpack('<I', struct.pack('<f', x))[0]


QSCALE = (20 ** -0.5) * 1.4426950408889634
NEG_INF = '0xff800000'


def srd(p, d, ptr, nbytes):
    p('s_mov_b32 s%d, s%d' % (d, ptr))
    p('s_and_b32 s%d, s%d, 0xffff' % (d + 1, ptr + 1))
    p('s_mov_b32 s%d, 0x%x' % (d + 2, nbytes))
    p('s_mov_b32 s%d, 0x20000' % (d + 3))


def sr(d):
    return 's[%d:%d]' % (d, d + 3)


def prio(p, n):
    if CFG['prio']:
        p('s_setprio %d' % n)


def stamp(p, i):
    if CFG['stamp'] and not (CFG['light'] and i not in (0, 61)):
        p('%s s[100:101]' % ('s_memtime' if CFG['stamp'] == 'clk' else 's_memrealtime'))
        p('s_waitcnt lgkmcnt(0)')
        p('v_writelane_b32 v%d, s100, %d' % (VSTAMP, i))


def stamp_clk(p, i):
    if CFG['stamp']:
        p('s_memtime s[100:101]')
        p('s_waitcnt lgkmcnt(0)')
        p('v_writelane_b32 v%d, s100, %d' % (VSTAMP, i))


def stamp_out(p):
    if CFG['stamp']:
        p('s_waitcnt vmcnt(0)')
        stamp(p, 61)
        stamp_clk(p, 63)
        p('s_lshl_b32 s3, s2, 3')
        p('s_add_u32 s3, s3, s%d' % sW)
        p('s_lshl_b32 s3, s3, 8')
        p('s_add_u32 s3, s3, %d' % ST_OFF)
        p('v_lshlrev_b32 v7, 2, v0')
        p('buffer_store_dword v%d, v7, %s, s3 offen' % (VSTAMP, WS))
        p('s_waitcnt vmcnt(0)')


def nonce_issue(p, r=VNON):
    p('buffer_load_dwordx2 %s, off, %s, 0 sc1' % (v(r, 2), sr(S_DBG)))


cold = []


def nonce_check(p, r=VNON):
    ok, L = p.newlabel('nok'), p.newlabel('nsp')
    p('v_cmp_eq_u32 vcc, 0, v%d' % r)
    p('s_cbranch_vccnz %s' % L)
    p.label(ok)

    def rare():
        L2 = p.newlabel('nsp')
        p.label(L)
        p('s_mov_b32 s3, %d' % SPIN)
        p.label(L2)
        p('s_sleep 2')
        nonce_issue(p, r)
        p('s_sub_u32 s3, s3, 1')
        p('s_waitcnt vmcnt(0)')
        p('s_cbranch_scc1 %s' % ok)
        p('v_cmp_eq_u32 vcc, 0, v%d' % r)
        p('s_cbranch_vccnz %s' % L2)
        p('s_branch %s' % ok)
    cold.append(rare)


def ws_rot(p, r):
    if CFG['wsrot']:
        p('v_readfirstlane_b32 s3, v%d' % r)
        p('s_bfe_u32 s3, s3, 0x30001')
        p('s_mul_i32 s3, s3, %d' % (28 << 20))
        p('s_add_u32 s%d, s%d, s3' % (S_WS, S_WS))
        p('s_addc_u32 s%d, s%d, 0' % (S_WS + 1, S_WS + 1))


def flag_store(p, soff):
    if CFG['fullflag']:
        p('v_lshlrev_b32 v7, 3, v0')
        p('s_mov_b64 exec, 0x%x' % ((1 << CFG['fullflag']) - 1))
        p('buffer_store_dwordx2 %s, v7, %s, s%d offen sc1' % (v(VNON, 2), WS, soff))
        p('s_mov_b64 exec, -1')
        return
    p('s_mov_b64 exec, 1')
    p('buffer_store_dwordx2 %s, off, %s, s%d sc1' % (v(VNON, 2), WS, soff))
    p('s_mov_b64 exec, -1')


def poll_issue(p, vdat, voff):
    p('buffer_load_dwordx2 %s, v%d, %s, 0 offen sc1' % (v(vdat, 2), voff, WS))


def poll_check(p, vcmp, reissue):
    ok, L = p.newlabel('pok'), p.newlabel('psp')
    p('v_cmp_ne_u64 vcc, %s, %s' % (v(vcmp, 2), v(VNON, 2)))
    p('s_cbranch_vccz %s' % ok)
    p('s_mov_b32 s3, %d' % SPIN)
    p.label(L)
    reissue()
    p('s_sub_u32 s3, s3, 1')
    p('s_waitcnt vmcnt(0)')
    p('s_cbranch_scc1 %s' % ok)
    p('v_cmp_ne_u64 vcc, %s, %s' % (v(vcmp, 2), v(VNON, 2)))
    p('s_cbranch_vccnz %s' % L)
    p.label(ok)


def emit_all(p, L):
    for x in L:
        if callable(x):
            x()
        else:
            p(x)


def prologue(p, end):
    p('s_load_dwordx16 s[%d:%d], s[0:1], 0' % (KA_, KA_ + 15))
    p('s_load_dwordx4 s[%d:%d], s[0:1], 64' % (KA_ + 16, KA_ + 19))
    p('s_cmp_ge_u32 s2, 256')
    p('s_cbranch_scc1 %s' % end)
    if CFG['cpf'] == 2:
        k = p.newlabel('pc')
        p('s_getpc_b64 s[4:5]')
        p.label(k)
        p('s_lshr_b32 s3, s2, 3')
        p('v_lshl_add_u32 v4, v0, 5, s3')
        p('v_lshlrev_b32 v4, 7, v4')
        p('v_cmp_gt_u32 vcc, .Lhot_end-%s, v4' % k)
        p('s_and_saveexec_b64 s[6:7], vcc')
        k2 = p.newlabel('nopf')
        p('s_cbranch_execz %s' % k2)
        p('global_load_dword v253, v4, s[4:5]')
        p.label(k2)
        p('s_mov_b64 exec, -1')
    p('v_lshrrev_b32 v1, 6, v0')
    p('v_readfirstlane_b32 s%d, v1' % sW)
    p('v_and_b32 v0, 63, v0')
    if CFG['stamp']:
        p('v_mov_b32 v%d, 0' % VSTAMP)
        stamp(p, 0)
        if not CFG['light']:
            stamp_clk(p, 62)
    p('s_and_b32 s3, s2, 7')
    p('s_lshr_b32 s4, s2, 3')
    p('s_lshr_b32 s5, s3, 1')
    p('s_mul_i32 s5, s5, 30')
    p('s_add_u32 s5, s5, s4')
    p('s_lshr_b32 s%d, s5, 3' % sCB)
    p('s_and_b32 s5, s5, 7')
    p('s_and_b32 s6, s3, 1')
    p('s_lshl_b32 s6, s6, 3')
    p('s_add_u32 s%d, s5, s6' % sRB)


def late_scalars(p):
    srd(p, S_WS, KA_ + 18, WS_BYTES)
    srd(p, S_OUT, KA_ + 14, OUT_BYTES)
    srd(p, S_DBG, KA_ + 16, 256)
    p('s_and_b32 s3, s2, 7')
    p('s_lshr_b32 s4, s2, 3')
    p('s_and_b32 s7, s4, 3')
    p('s_lshl_b32 s3, s3, 2')
    p('s_add_u32 s%d, s3, s7' % sH)
    p('s_lshr_b32 s%d, s4, 2' % sR)
    p('s_and_b32 s%d, s%d, 1' % (sODD, sH))
    p('s_lshr_b32 s3, s%d, 1' % sH)
    p('s_mul_i32 s3, s3, 5')
    p('s_lshl_b32 s6, s%d, 1' % sODD)
    p('s_add_u32 s%d, s3, s6' % sC0)
    p('s_lshl_b32 s3, s%d, 3' % sR)
    p('s_add_u32 s%d, s3, s%d' % (sRB32, sW))
    p('s_lshl_b32 s3, s2, 3')
    p('s_add_u32 s3, s3, s%d' % sW)
    p('s_lshl_b32 s3, s3, 7')
    p('s_add_u32 s%d, s3, %d' % (sFL, DUMMY_OFF))
    for r in range(16):
        kl = 8 * (r // 4) + r % 4
        p('s_mov_b32 s%d, 0x%x' % (sMASK + 2 * r, (0xffffffff << kl) & 0xffffffff))
        p('s_mov_b32 s%d, 0x%x' % (sMASK + 2 * r + 1, (0xffffffff << (kl + 4)) & 0xffffffff))


def vb_masks(p):
    rotl = lambda x, n: ((x << n) | (x >> (32 - n))) & 0xffffffff
    for r in range(16):
        kl = 8 * (r // 4) + r % 4
        p('s_mov_b32 s%d, 0x%x' % (sVB + 2 * r, rotl(0x5555, kl)))
        p('s_mov_b32 s%d, 0x%x' % (sVB + 2 * r + 1, rotl(0x5555, kl + 4)))
    k, L = p.newlabel('vbok'), p.newlabel('vbfirst')
    p('s_cmp_eq_u32 s%d, 0' % sRB32)
    p('s_cbranch_scc1 %s' % L)
    p.label(k)

    def rare():
        p.label(L)
        for r in range(16):
            p('s_and_b64 %s, %s, %s' % (vbm(r), vbm(r), mask(r)))
        p('s_branch %s' % k)
    cold.append(rare)


def mask(r):
    return 's[%d:%d]' % (sMASK + 2 * r, sMASK + 2 * r + 1)


def vbm(r):
    return 's[%d:%d]' % (sVB + 2 * r, sVB + 2 * r + 1)


WF, ACC, X = 8, 32, 96
VST, AX = 1, 2
sQ, sFA, sSC = T0, T0 + 1, T0 + 2
SLOT_B = {10: 4, 11: 5, 12: 7, 13: 8, 14: 0, 15: 1, 16: 2, 17: 3, 18: 4, 19: 5}
FREE_B = {10: 6, 11: 7, 12: 8, 13: 9, 14: 8, 15: 9, 16: 10, 17: 11, 18: 12, 19: 13}


def slot_of(c):
    return c % NWS if c < 10 else SLOT_B[c]


def frag_list():
    frs = []
    for c in range(20):
        for i in range(16):
            if c < 10:
                st, u = i // 8, i % 8
                off = [(st * 2 + j) * 256 + u * 32 for j in range(2)]
                frs.append(dict(c=c, off=off, acc=u, xs=2 * c + st, first=(c == 0 and st == 0)))
            else:
                slab, cc = (c - 10) // 5, (c - 10) % 5
                st, u = i // 4, i % 4
                off = [(st * 2 + j) * 128 + u * 32 for j in range(2)]
                frs.append(dict(c=c, off=off, acc=slab * 4 + u, xs=4 * cc + st, first=(cc == 0 and st == 0)))
    return frs


def x_reads(c):
    return [('ds_read_b128 %s, v%d offset:%d' % (v(X + ((2 * c + st) * 2 + t) * 4, 4), AX + st, (c % 3) * WSLOT + t * 2048), ('x', 2 * c + st))
            for st in range(2) for t in range(2)]


def gemm_addr(p, sl):
    p('v_and_b32 v24, 15, v0')
    p('v_lshrrev_b32 v25, 4, v0')
    p('v_lshrrev_b32 v26, 1, v24')
    p('v_xor_b32 v26, v26, v25')
    p('v_lshlrev_b32 v26, 4, v26')
    p('v_lshl_add_u32 v26, v24, 7, v26')
    p('s_lshl_b32 s3, s%d, 12' % sl)
    p('s_add_u32 s3, s3, %d' % XR_OFF)
    p('v_add_u32 v%d, s3, v26' % AX)
    p('v_xor_b32 v%d, 64, v%d' % (AX + 1, AX))
    p('v_bfe_u32 v26, v0, 2, 3')
    p('v_mul_u32_u24 v26, 2080, v26')
    p('v_lshrrev_b32 v27, 5, v0')
    p('v_lshl_add_u32 v26, v27, 10, v26')
    p('v_and_b32 v28, 3, v0')
    p('v_lshl_add_u32 v4, v28, 3, v26')
    p('v_add_u32 v5, %d, v4' % (4 * WSLOT))
    p('v_and_b32 v26, 31, v0')
    p('v_lshlrev_b32 v26, 4, v26')
    p('v_lshl_add_u32 v26, v27, 11, v26')
    p('s_lshl_b32 s3, s%d, 9' % sl)
    p('v_add_u32 v%d, s3, v26' % VST)


def gemm_scalars(p, sl, br, sflag):
    p('s_mul_i32 s%d, s%d, %d' % (sQ, sRB, QKV_RB))
    p('s_lshl_b32 s3, s%d, 15' % sCB)
    p('s_add_u32 s%d, s%d, s3' % (sQ, sQ))
    p('s_cmp_lt_u32 s%d, 5' % sCB)
    p('s_cselect_b32 s%d, %s, 1.0' % (sSC, f32(QSCALE)))
    p('s_mov_b32 s%d, s%d' % (sSC + 1, sSC))
    p('s_lshl_b32 s3, s%d, 2' % sRB)
    p('s_add_u32 s3, s3, s%d' % sl)
    p('s_lshl_b32 s4, s3, 4')
    p('s_add_u32 s4, s4, s%d' % sCB)
    p('s_lshl_b32 s5, s4, 7')
    p('s_add_u32 s%d, s5, %d' % (sflag, F1B_OFF if br else F1A_OFF))


def rot_scalar(p):
    G, m1, m2, m3 = CFG['rot']
    p('s_add_u32 s6, s%d, s%d' % (sRB, sCB))
    p('s_and_b32 s6, s6, %d' % (G - 1))
    if m1 != 1:
        p('s_mul_i32 s6, s6, %d' % m1)
    if m2:
        p('s_bfe_u32 s7, s2, 0x20001')
        p('s_mul_i32 s7, s7, %d' % m2)
        p('s_add_u32 s6, s6, s7')
    if m3:
        p('s_and_b32 s7, s2, 1')
        p('s_mul_i32 s7, s7, %d' % m3)
        p('s_add_u32 s6, s6, s7')
    if (G - 1) * m1 + 3 * m2 + m3 >= 5:
        p('s_mul_i32 s7, s6, 52')
        p('s_lshr_b32 s7, s7, 8')
        p('s_mul_i32 s7, s7, 5')
        p('s_sub_u32 s6, s6, s7')
    p('s_lshl_b32 s%d, s6, 1' % sROT)


def conv(u, pk=False):
    a0 = ACC + u * 8
    if pk:
        L = ['v_pk_mul_f32 %s, %s, s[%d:%d]' % (v(a0 + 2 * i, 2), v(a0 + 2 * i, 2), sSC, sSC + 1) for i in range(4)]
    else:
        L = ['v_mul_f32 v%d, s%d, v%d\nv_mul_f32 v%d, s%d, v%d' % (a0 + 2 * i, sSC, a0 + 2 * i, a0 + 2 * i + 1, sSC, a0 + 2 * i + 1) for i in range(4)]
    L += ['v_cvt_pk_bf16_f32 v%d, v%d, v%d' % (a0 + i, a0 + 2 * i, a0 + 2 * i + 1) for i in range(4)]
    return L


def swaps(u):
    d = ACC + u * 8
    return ['v_permlane16_swap_b32 v%d, v%d' % (d, d + 2), 'v_permlane16_swap_b32 v%d, v%d' % (d + 1, d + 3)]


def qstore(br, u):
    return ['s_add_u32 s3, s%d, %d' % (sQ, br * QKV_BR + u * 4096) + '\n' +
            'buffer_store_dwordx4 %s, v%d, %s, s3 offen sc1' % (v(ACC + u * 8, 4), VST, WS)]


def epilogue(br, us, pk=False):
    L = []
    prev = None
    for u in us:
        c = conv(u, pk)
        L += c[:4]
        if prev is not None:
            L += swaps(prev) + c[4:6] + qstore(br, prev) + c[6:]
        else:
            L += c[4:]
        prev = u
    return L + swaps(prev) + qstore(br, prev)


def gemm_stream(p, f0, f1, barriers, pre_barrier, side, aw, with_x):
    D = CFG['D']
    NB = D + 1
    frs = frag_list()
    pend = []

    def lds(text, tag):
        p(text)
        pend.append(tag)

    def need(tags):
        idx = [i for i, t in enumerate(pend) if t in tags]
        if idx:
            n = len(pend) - 1 - max(idx)
            assert n <= 15
            p('s_waitcnt lgkmcnt(%d)' % n)
            del pend[:max(idx) + 1]

    def pre_read(f):
        if f % 16 == 0:
            c = f // 16
            if c in barriers:
                pre_barrier(c)
                p('s_barrier')
                if CFG['stamp'] and not CFG['light'] and c in (0, 2, 6, 10, 14):
                    stamp(p, 2 + c // 2)
                    del pend[:]
            if with_x and c < 10:
                for t, tag in x_reads(c):
                    lds(t, tag)

    def w_read(f, j):
        fr = frs[f]
        slot = slot_of(fr['c'])
        lds('ds_read_b64_tr_b16 %s, v%d offset:%d' % (v(WF + (f % NB) * 4 + j * 2, 2), aw[slot // 4], (slot % 4) * WSLOT + fr['off'][j]), ('w', f))

    def mf(f, t):
        fr = frs[f]
        acc = v(ACC + (fr['acc'] * 2 + t) * 4, 4)
        p('v_mfma_f32_16x16x32_bf16 %s, %s, %s, %s' % (acc, v(WF + (f % NB) * 4, 4), v(X + (fr['xs'] * 2 + t) * 4, 4), '0' if fr['first'] else acc))

    for f in range(f0, f0 + D):
        pre_read(f)
        w_read(f, 0)
        w_read(f, 1)
    for f in range(f0, f1):
        g = f + D
        need({('w', f), ('x', frs[f]['xs'])})
        mf(f, 0)
        if g <= f1 and g < 320:
            pre_read(g)
        if g < f1:
            w_read(g, 0)
        mf(f, 1)
        if g < f1:
            w_read(g, 1)
        emit_all(p, side.get(f, []))


class Dma:
    def __init__(self, p, sXB, sWBs, sLX, sLW, sKX, sKW, VX, VWA, VWB):
        self.p, self.r, self.v = p, (sXB, sWBs, sLX, sLW, sKX, sKW), (VX, VWA, VWB)
        self.cur = None
        self.issued = []

    def kchunk(self, kk):
        p = self.p
        p('s_add_u32 s3, s%d, %d' % (sROT, kk))
        p('s_cmp_ge_u32 s3, 10')
        p('s_cselect_b32 s4, 10, 0')
        p('s_sub_u32 s3, s3, s4')

    def kbase(self, c):
        if self.cur == c:
            return
        self.cur = c
        p = self.p
        sXB, sWBs, sLX, sLW, sKX, sKW = self.r
        self.kchunk(c if c < 10 else 2 * ((c - 10) % 5))
        if c < 10:
            p('s_lshl_b32 s4, s3, 7')
            p('s_add_u32 s%d, s4, s%d' % (sKX, sXB))
        p('s_mul_i32 s4, s3, %d' % (64 * 3840))
        p('s_add_u32 s%d, s4, s%d' % (sKW, sWBs))

    def emit(self, kind, c, t):
        p = self.p
        sXB, sWBs, sLX, sLW, sKX, sKW = self.r
        VX, VWA, VWB = self.v
        self.kbase(c)
        if kind == 'x':
            p('s_add_u32 m0, s%d, %d' % (sLX, XR_OFF + (c % 3) * WSLOT + t * 4096))
            p('s_add_u32 s3, s%d, %d' % (sKX, t * 32 * 1280))
            p('buffer_load_dwordx4 v%d, %s, s3 offen %s lds' % (VX, sr(S_X), CFG['ntx']))
        else:
            kb, kh = t & 1, t >> 1
            p('s_add_u32 m0, s%d, %d' % (sLW, slot_of(c) * WSLOT + kb * 4 * 2080 + kh * 1024))
            p('s_add_u32 s3, s%d, %d' % (sKW, (16 * kh + 8 * kb) * 3840 + (128 * ((c - 10) // 5) if c >= 10 else 0)))
            p('buffer_load_dwordx4 v%d, %s, s3 offen %s lds' % (VWA if c < 10 else VWB, sr(S_WA if c < 10 else S_WB), CFG['nta'] if c < 10 else CFG['ntb']))
        self.issued.append(c)

    def chunk(self, c):
        for t in range(4):
            self.emit('w', c, t)
            if c < 10:
                self.emit('x', c, t)

    def other(self, tag=None):
        self.issued.append(tag)

    def wait(self, pred):
        idx = [i for i, x in enumerate(self.issued) if pred(x)]
        if idx:
            self.p('s_waitcnt vmcnt(%d)' % (len(self.issued) - 1 - max(idx)))
            del self.issued[:max(idx) + 1]

    def wait_chunks(self, lim):
        self.wait(lambda x: isinstance(x, int) and x <= lim)


def wb_voffset(p, d, sl):
    p('v_lshrrev_b32 v20, 4, v0')
    p('v_lshlrev_b32 v20, 5, v20')
    p('v_bfe_u32 v21, v0, 3, 1')
    p('v_lshl_add_u32 v20, v21, 2, v20')
    p('v_add_u32 v20, s%d, v20' % sl)
    p('v_mul_u32_u24 v20, 3840, v20')
    p('v_and_b32 v21, 7, v0')
    p('v_lshl_add_u32 v%d, v21, 4, v20' % d)


def cert_limit(c):
    BB = CFG['BB']
    if c < 10:
        return c
    nxt = [b for b in BB if b > c]
    return nxt[0] - 1 if nxt else 19


VPOLL, VPD = 12, 14
sRBQ = 85
sTA = 86
sNW = 69


def tail_scalars(p):
    p('s_lshl_b32 s3, s%d, 1' % sR)
    p('s_add_u32 s3, s3, s%d' % sW)
    p('s_sub_u32 s3, s3, 2')
    p('s_max_i32 s%d, s3, 0' % sRBQ)
    p('s_mul_i32 s%d, s%d, %d' % (sTA, sRBQ, QKV_RB))
    p('s_lshl_b32 s4, s%d, 11' % sC0)
    p('s_add_u32 s%d, s%d, s4' % (sTA, sTA))
    p('s_lshl_b32 s5, s%d, 11' % sODD)
    p('s_add_u32 s%d, s%d, s5' % (sTA + 1, sTA))
    p('s_cmp_eq_u32 s%d, 0' % sODD)
    p('s_cselect_b32 s6, 4096, 8')
    p('s_cselect_b32 s7, 4096, 0')
    p('s_add_u32 s%d, s%d, s6' % (sTA + 2, sTA))
    p('s_lshl_b32 s3, s%d, 1' % sR)
    p('s_lshr_b32 s6, s%d, 1' % sW)
    p('s_add_u32 s3, s3, s6')
    p('s_mul_i32 s3, s3, %d' % QKV_RB)
    p('s_and_b32 s6, s%d, 1' % sW)
    p('s_lshl_b32 s6, s6, 10')
    p('s_add_u32 s3, s3, s6')
    p('s_add_u32 s3, s3, s4')
    p('s_add_u32 s%d, s3, s5' % (sTA + 3))
    p('s_add_u32 s%d, s3, s7' % (sTA + 4))
    p('s_lshl_b32 s%d, s%d, 11' % (sTA + 5, sW))
    p('s_lshl_b32 s%d, s%d, 10' % (sTA + 6, sW))
    p('s_lshl_b32 s3, s%d, 3' % sW)
    p('s_add_u32 s3, s3, s%d' % sN)
    p('s_lshl_b32 s3, s3, 8')
    p('s_add_u32 s84, s3, %d' % FW_OFF)


def tail_vectors(p):
    p('v_and_b32 v20, 3, v0')
    p('s_lshl_b32 s3, s%d, 2' % sRBQ)
    p('v_add_u32 v21, s3, v20')
    p('v_and_b32 v23, 1, v0')
    p('s_lshl_b32 s3, s%d, 3' % sR)
    p('s_lshl_b32 s4, s%d, 1' % sW)
    p('s_add_u32 s3, s3, s4')
    p('v_add_u32 v20, s3, v23')
    p('v_cmp_gt_u32 vcc, 16, v0')
    p('v_lshrrev_b32 v22, 1, v0')
    p('v_and_b32 v22, 2, v22')
    p('v_cndmask_b32 v21, v20, v21, vcc')
    p('v_bfe_u32 v20, v0, 3, 1')
    p('v_mul_u32_u24 v20, 5, v20')
    p('v_add_u32 v20, 5, v20')
    p('v_cndmask_b32 v20, 0, v20, vcc')
    p('v_add_u32 v22, s%d, v22' % sC0)
    p('v_lshrrev_b32 v22, 4, v22')
    p('v_add_u32 v20, v20, v22')
    p('v_lshl_add_u32 v20, v21, 4, v20')
    p('v_lshlrev_b32 v20, 7, v20')
    p('v_add_u32 v20, %d, v20' % F1A_OFF)
    p('v_cmp_gt_u32 vcc, 24, v0')
    p('v_and_b32 v22, 2, v0')
    p('v_lshlrev_b32 v22, 12, v22')
    p('v_lshl_add_u32 v22, v23, 7, v22')
    p('v_add_u32 v22, s84, v22')
    p('v_cndmask_b32 v%d, v22, v20, vcc' % VPOLL)
    p('v_lshrrev_b32 v7, 1, v0')
    p('v_lshlrev_b32 v7, 4, v7')
    p('v_lshl_add_u32 v27, v23, 2, v7')


def ones_fill(p):
    for r in range(4):
        p('v_mov_b32 v%d, 0x3f803f80' % (28 + r))
    p('v_add_u32 v7, s%d, v1' % (sTA + 6))
    p('v_add_u32 v7, %d, v7' % ONES_OFF)
    p('ds_write_b128 v7, v[28:31]')
    p('v_lshlrev_b32 v7, 3, v0')
    p('v_add_u32 v7, %d, v7' % (ONES_OFF + 4096))
    p('ds_write_b64 v7, v[28:29]')


def p1_grp0(p):
    BB = CFG['BB']
    gemm_addr(p, sW)
    rot_scalar(p)
    p('s_waitcnt lgkmcnt(0)')
    srd(p, S_WB, KA_ + 8, WQ_BYTES)

    def warm():
        k = p.newlabel('nowarm')
        p('s_cmp_gt_u32 s%d, 1' % sW)
        p('s_cbranch_scc1 %s' % k)
        p('s_lshl_b32 s3, s2, 1')
        p('s_add_u32 s3, s3, s%d' % sW)
        p('s_mul_i32 s3, s3, 5120')
        p('v_lshlrev_b32 v7, 7, v0')
        p('s_mov_b32 exec_hi, 0xff')
        p('buffer_load_dword v%d, v7, %s, s3 offen' % (X + 156, sr(S_WB)))
        p('s_mov_b32 exec_hi, -1')
        p.label(k)
    if CFG['wbwarm'] == 2:
        warm()
    late_scalars(p)
    nn = p.newlabel('nononce')
    p('s_or_b32 s3, s2, s%d' % sW)
    p('s_cbranch_scc1 %s' % nn)
    p('s_memrealtime s[4:5]')
    p('s_waitcnt lgkmcnt(0)')
    p('s_or_b32 s4, s4, 1')
    p('v_mov_b32 v8, s4')
    p('v_mov_b32 v9, s5')
    p('v_mov_b32 v10, 0')
    p('v_mov_b32 v11, 0')
    p('s_mov_b64 exec, 1')
    p('buffer_atomic_cmpswap_x2 v[8:11], off, %s, 0 sc1' % sr(S_DBG))
    p('s_mov_b64 exec, -1')
    p.label(nn)
    gemm_scalars(p, sW, 0, sFA)
    tail_scalars(p)
    sWBs, sKW, sLW = T0 + 4, T0 + 5, 68
    p('s_lshl_b32 s%d, s%d, 8' % (sWBs, sCB))
    p('s_mul_i32 s%d, s%d, 2080' % (sLW, sW))
    wp_base(p)
    stamp(p, 1)
    side = {130: ['s_waitcnt vmcnt(0)']}
    if CFG['wsrot']:
        side[90] = [lambda: nonce_issue(p, 254)]
        side[130] += [lambda: nonce_check(p, 254), lambda: ws_rot(p, 254)]
    if CFG['wbwarm'] > 2:
        side[CFG['wbwarm']] = [warm]
    gemm_stream(p, 0, 160, range(11), lambda c: None, side, (4, 5), True)
    stamp(p, 12)
    prio(p, 2)
    VWB = 10
    d = Dma(p, None, sWBs, None, sLW, None, sKW, None, None, VWB)
    todo = [(c, t) for c in range(CFG['g1last'] + 1, 20) for t in range(4)]
    wq = list(range(CFG['nwa']))
    bq = list(BB[1:])
    ep = epilogue(0, range(8))
    passed = 10
    seen = set()
    nt_ = [0]
    for ch in CFG['sched']:
        if ch == 'S':
            while True:
                x = ep.pop(0)
                p(x)
                if 'buffer_store' in x:
                    d.other('s')
                    break
            if not ep:
                stamp(p, 13)
        elif ch == 'I':
            nonce_issue(p)
            d.other('n')
            if CFG['nwa']:
                p('v_and_b32 v7, 1, v0')
                p('v_lshlrev_b32 v7, 7, v7')
                p('buffer_load_dwordx2 %s, v7, %s, s84 offen sc1' % (v(VPD, 2), WS))
                d.other('n')
                p('v_lshlrev_b32 v11, 4, v0')
            wb_voffset(p, VWB, sW)
        elif ch == 't':
            stamp(p, 44 + nt_[0])
            nt_[0] += 1
        elif ch == 'W':
            c, t = todo.pop(0)
            assert FREE_B[c] <= passed and 'I' in seen, (c, passed)
            d.emit('w', c, t)
        elif ch == 'P':
            assert 'N' in seen
            if wq:
                w_load(p, wq.pop(0), 11)
                d.other()
        elif ch == 'B':
            c = bq.pop(0)
            lim = cert_limit(c)
            assert not (todo and todo[0][0] <= lim), (c, todo[0])
            d.wait_chunks(lim)
            stamp(p, 36 + 2 * BB.index(c))
            p('s_barrier')
            stamp(p, 37 + 2 * BB.index(c))
            passed = c
        elif ch == 'N':
            d.wait(lambda x: x == 'n')
            nonce_check(p)
            if CFG['nwa']:
                p('v_cmp_ne_u64 vcc, %s, %s' % (v(VPD, 2), v(VNON, 2)))
                p('s_or_b32 s%d, vcc_lo, vcc_hi' % sNW)
            else:
                p('s_mov_b32 s%d, 0' % sNW)
            if CFG['force_late']:
                p('s_mov_b32 s%d, 1' % sNW)
            tail_vectors(p)
        elif ch == 'F':
            assert not ep and 'N' in seen
            d.wait(lambda x: x == 's')
            flag_store(p, sFA)
            d.other()
            stamp(p, 16)
        seen.add(ch)
    assert not todo and not wq and not bq and not ep and 'F' in seen and BB[-1] >= 15
    p('v_lshlrev_b32 v1, 4, v0')
    poll_issue(p, VPD, VPOLL)


def kv_tail(p):
    ones_fill(p)
    p('s_waitcnt vmcnt(0)')
    stamp(p, 14)
    poll_check(p, VPD, lambda: poll_issue(p, VPD, VPOLL))
    stamp(p, 15)

    def dma(ldsb, ldsoff, gb, goff, vo=1, w='x4', n=1):
        p('s_add_u32 m0, s%d, %d' % (sTA + ldsb, ldsoff))
        p('s_add_u32 s3, s%d, %d' % (sTA + gb, goff))
        for i in range(n):
            p('buffer_load_dword%s v%d, %s, s3 offen offset:%d sc1 lds' % (w, vo, WS, i * 1024))
    for j in range(2):
        dma(6, QA_OFF + j * 4096, 3, j * 2048)
    dma(6, QA_OFF + 8192, 4, 0)
    for j in range(2):
        dma(5, KA_OFF + j * 8192, 1, (80 + j) * 2048, n=2)
    for i in range(4):
        dma(6, KA_OFF + 16384 + i * 256, 2, 80 * 2048 + i * 512, vo=27, w='')
    for j in range(3):
        dma(5, VA_OFF + j * VA_STR, 0, (160 + j) * 2048, n=2)
    stamp(p, 17)
    redo, back = p.newlabel('redo'), p.newlabel('redone')
    p('s_cmp_lg_u32 s%d, 0' % sNW)
    p('s_cbranch_scc1 %s' % redo)
    p.label(back)

    def rare():
        p.label(redo)
        wp_base(p)
        for f in range(CFG['nwa']):
            w_load(p, f)
        p('s_branch %s' % back)
    cold.append(rare)
    vb_masks(p)
    emit_all(p, p2_setup())
    p('s_waitcnt vmcnt(0) lgkmcnt(0)')
    stamp(p, 20)


def p1_grp1(p):
    VX, VWA, VWB = 8, 9, 10
    GG, GF, GA, GN = 18, 36, 44, 52
    sXB, sWBs, sLX, sLW, sKX, sKW, sGT, sL = 84, 85, 86, 87, 88, 89, 90, 91
    prio(p, 2)
    p('s_sub_u32 s%d, s%d, 4' % (sL, sW))
    rot_scalar(p)
    p('v_lshrrev_b32 v12, 3, v0')
    p('s_lshl_b32 s6, s%d, 3' % sL)
    p('v_add_u32 v12, s6, v12')
    p('v_mul_u32_u24 v12, 1280, v12')
    p('v_lshrrev_b32 v13, 4, v0')
    p('s_and_b32 s6, s%d, 1' % sL)
    p('s_lshl_b32 s6, s6, 2')
    p('v_add_u32 v7, s6, v13')
    p('v_and_b32 v11, 7, v0')
    p('v_xor_b32 v7, v7, v11')
    p('v_lshl_add_u32 v%d, v7, 4, v12' % VX)
    p('v_and_b32 v12, 32, v0')
    p('v_bfe_u32 v7, v0, 4, 1')
    p('v_lshl_add_u32 v12, v7, 2, v12')
    p('v_add_u32 v12, s%d, v12' % sL)
    p('v_mul_u32_u24 v12, 3840, v12')
    p('v_and_b32 v7, 15, v0')
    p('v_lshl_add_u32 v%d, v7, 4, v12' % VWA)
    p('s_mul_i32 s%d, s%d, %d' % (sXB, sRB, 128 * 1280))
    p('s_lshl_b32 s%d, s%d, 8' % (sWBs, sCB))
    p('s_lshl_b32 s%d, s%d, 10' % (sLX, sL))
    p('s_mul_i32 s%d, s%d, 2080' % (sLW, sL))
    d = Dma(p, sXB, sWBs, sLX, sLW, sKX, sKW, VX, VWA, VWB)
    d.kbase(0)
    p('s_waitcnt lgkmcnt(0)')
    srd(p, S_WA, KA_ + 2, WQ_BYTES)
    srd(p, S_X, KA_, X_BYTES)
    stamp(p, 1)
    d.chunk(0)
    srd(p, S_GW, KA_ + 12, 1280)
    srd(p, S_WB, KA_ + 8, WQ_BYTES)
    p('s_mul_i32 s3, s%d, 320' % sL)
    p('s_add_u32 m0, s3, %d' % GW_OFF)
    p('v_lshlrev_b32 v16, 4, v0')
    p('s_mov_b64 exec, 0xfffff')
    p('buffer_load_dwordx4 v16, %s, s3 offen lds' % sr(S_GW))
    p('s_mov_b64 exec, -1')
    d.other(0)
    d.chunk(1)
    late_scalars(p)
    p('s_mov_b32 s92, s%d' % sFL)
    wb_voffset(p, VWB, sL)
    gemm_addr(p, sL)
    gemm_scalars(p, sL, 1, sFL)
    p('s_xor_b32 s%d, s%d, s%d' % (sGT, sCB, sL))
    p('v_lshlrev_b32 v7, 4, v13')
    p('v_add_u32 v%d, %d, v7' % (GG, GW_OFF))
    todo = list(range(2, CFG['g1last'] + 1))
    for c in range(10):
        d.wait_chunks(c)
        if c:
            p('s_waitcnt lgkmcnt(0)')
        if c % 2 == 0 and c < 8:
            stamp(p, 2 + c // 2)
        p('s_barrier')
        for t, _ in x_reads(c):
            p(t)
        n = 1 if c < 8 else (CFG['n8'] if c == 8 else 9)
        while todo and n > 0:
            assert todo[0] < 10 or FREE_B[todo[0]] <= c
            d.chunk(todo.pop(0))
            n -= 1
        k = p.newlabel('nogate')
        p('s_cmp_lg_u32 s%d, 0' % sGT)
        p('s_cbranch_scc1 %s' % k)
        d.kchunk(c)
        p('s_lshl_b32 s3, s3, 7')
        p('v_add_u32 v%d, s3, v%d' % (GG + 1, GG))
        for st in range(2):
            p('ds_read_b128 %s, v%d offset:%d' % (v(GF + st * 4, 4), GG + 1, st * 64))
        p('s_waitcnt lgkmcnt(0)')
        for st in range(2):
            for t in range(2):
                p('v_mfma_f32_16x16x32_bf16 %s, %s, %s, %s' % (v(GA + t * 4, 4), v(GF + st * 4, 4), v(X + ((2 * c + st) * 2 + t) * 4, 4), '0' if (c == 0 and st == 0) else v(GA + t * 4, 4)))
        p.label(k)
        if c == 5:
            nonce_issue(p, GN)
            d.other('n')
        if c == 8:
            d.wait(lambda x: x == 'n')
            nonce_check(p, GN)
            ws_rot(p, GN)
            p('v_readfirstlane_b32 s30, v%d' % GN)
            p('v_readfirstlane_b32 s31, v%d' % (GN + 1))
    p('v_cmp_gt_u32 vcc, 16, v0')
    p('s_lshl_b32 s3, s%d, 2' % sRB)
    p('s_add_u32 s3, s3, s%d' % sL)
    p('s_lshl_b32 s3, s3, 9')
    p('s_add_u32 s3, s3, %d' % G_OFF)
    p('s_mov_b32 s7, %s' % f32(-1.4426950408889634))
    p('v_cndmask_b32 v7, v%d, v%d, vcc' % (GA + 4, GA))
    p('v_mul_f32 v7, s7, v7')
    p('v_exp_f32 v7, v7')
    p('v_mov_b32 v%d, 0' % (GN - 1))
    p('v_add_f32 v7, 1.0, v7')
    p('v_rcp_f32 v%d, v7' % (GN - 2))
    p('s_cmp_eq_u32 s%d, 0' % sGT)
    p('s_cselect_b32 s3, s3, s92')
    p('s_cselect_b32 exec_lo, -1, 0xff')
    p('s_mov_b32 exec_hi, 0')
    p('buffer_store_dwordx4 %s, v16, %s, s3 offen sc1' % (v(GN - 2, 4), WS))
    p('s_mov_b64 exec, -1')
    d.other()
    vb_masks(p)
    p('s_waitcnt lgkmcnt(0)')
    p('v_add_u32 v2, %d, v4' % (8 * WSLOT))
    prio(p, 0)
    side = {}
    L = epilogue(1, range(4))
    f = 242
    while L:
        side[f] = L[:CFG['b1rate']]
        del L[:CFG['b1rate']]
        f += 1
    gemm_stream(p, 160, 320, CFG['BB'], lambda c: d.wait_chunks(cert_limit(c)), side, (4, 5, 2), False)
    stamp(p, 18)
    prio(p, 2)
    fill = p2_setup() + ['v_mov_b32 v%d, s30' % VNON, 'v_mov_b32 v%d, s31' % (VNON + 1)]
    per = (len(fill) - 3) // 3
    for x in epilogue(1, range(4, 8), True):
        p(x)
        if 'buffer_store' in x:
            emit_all(p, fill[:per])
            del fill[:per]
    emit_all(p, fill)
    stamp(p, 19)


def p1_spare(p):
    S_WO = S_X
    p('s_and_b32 s3, s2, 7')
    p('s_lshl_b32 s5, s3, 1')
    p('s_add_u32 s5, s5, s4')
    p('s_sub_u32 s%d, s5, 30' % T0)
    p('s_waitcnt lgkmcnt(0)')
    p('s_cmp_lt_u32 s%d, 8' % T0)
    p('s_cselect_b32 s6, s%d, s%d' % (KA_ + 4, KA_ + 10))
    p('s_cselect_b32 s7, s%d, s%d' % (KA_ + 5, KA_ + 11))
    srd(p, S_WO, 6, WO_BYTES)
    srd(p, S_WB, KA_ + 8, WQ_BYTES)
    late_scalars(p)
    if CFG['cpf'] == 1:
        k = p.newlabel('pc')
        p('s_getpc_b64 s[4:5]')
        p.label(k)
        p('s_sub_u32 s4, s4, %s-%s_kernel' % (k, NAME))
        p('s_subb_u32 s5, s5, 0')
        p('s_and_b32 s3, s%d, 1' % T0)
        p('s_lshl_b32 s3, s3, 3')
        p('s_add_u32 s3, s3, s%d' % sW)
        p('v_lshl_add_u32 v4, v0, 4, s3')
        p('v_lshlrev_b32 v4, 7, v4')
        p('v_min_u32 v4, .Lhot_end-%s_kernel, v4' % NAME)
        p('s_mov_b32 exec_hi, 0')
        p('global_load_dword v35, v4, s[4:5]')
        p('s_mov_b32 exec_hi, -1')
    if CFG['wbwarm'] == 1:
        p('v_lshlrev_b32 v4, 7, v0')
        p('s_lshl_b32 s3, s%d, 3' % T0)
        p('s_add_u32 s3, s3, s%d' % sW)
        p('s_mul_i32 s6, s3, 19200')
        p('s_mov_b32 exec_hi, 0x3ffff')
        for i in range(3):
            p('s_add_u32 s7, s6, %d' % (i * 6400))
            p('buffer_load_dword v%d, v4, %s, s7 offen' % (32 + i, sr(S_WB)))
        p('s_mov_b32 exec_hi, -1')
    for i in range(5):
        p('v_add_u32 v7, %d, v0' % (64 * i))
        p('v_mul_u32_u24 v8, 1639, v7')
        p('v_lshrrev_b32 v8, 16, v8')
        p('v_mul_u32_u24 v8, 640, v8')
        p('v_lshl_add_u32 v%d, v7, 4, v8' % (16 + i))
    p('s_bfe_u32 s3, s%d, 0x20001' % T0)
    p('s_mul_i32 s3, s3, 160')
    p('s_mul_i32 s4, s%d, 20' % sW)
    p('s_add_u32 s3, s3, s4')
    p('s_mul_i32 s3, s3, 1280')
    p('s_and_b32 s4, s%d, 1' % T0)
    p('s_mul_i32 s4, s4, 640')
    p('s_add_u32 s5, s3, s4')
    p('s_mul_i32 s6, s%d, 12800' % sW)
    for i in range(13):
        p('s_add_u32 m0, s6, %d' % (i * 1024))
        p('s_add_u32 s3, s5, %d' % ((i // 5) * 8 * 1280))
        if i == 12:
            p('s_mov_b32 exec_hi, 0')
        p('buffer_load_dwordx4 v%d, %s, s3 offen %s lds' % (16 + i % 5, sr(S_WO), CFG['nto']))
        if i == 12:
            p('s_mov_b32 exec_hi, -1')
    nonce_issue(p)
    p('s_lshr_b32 s4, s%d, 1' % sW)
    p('s_mul_i32 s4, s4, 160')
    p('v_bfe_u32 v7, v0, 2, 3')
    p('v_lshrrev_b32 v8, 5, v0')
    p('v_mul_u32_u24 v8, 20, v8')
    p('v_add_u32 v8, v8, v7')
    p('v_mul_u32_u24 v8, 640, v8')
    p('v_and_b32 v9, 3, v0')
    p('v_lshl_add_u32 v9, v9, 3, s4')
    p('v_add_u32 v22, v8, v9')
    p('v_add_u32 v23, %d, v22' % (80 * 640))
    p('v_lshrrev_b32 v8, 4, v0')
    p('v_mul_u32_u24 v8, 20, v8')
    p('v_and_b32 v7, 3, v7')
    p('v_add3_u32 v8, v8, v7, 16')
    p('v_mul_u32_u24 v8, 640, v8')
    p('v_add_u32 v24, v8, v9')
    p('v_lshlrev_b32 v1, 4, v0')
    p('s_lshl_b32 s3, s%d, 2' % T0)
    p('s_lshr_b32 s4, s%d, 1' % sW)
    p('s_add_u32 s3, s3, s4')
    p('s_mul_i32 s5, s3, 25600')
    p('s_add_u32 s5, s5, %d' % WP_OFF)
    p('s_lshl_b32 s3, s%d, 3' % T0)
    p('s_add_u32 s3, s3, s%d' % sW)
    p('s_lshl_b32 s3, s3, 7')
    p('s_add_u32 s%d, s3, %d' % (T0 + 1, FW_OFF))
    p('s_waitcnt vmcnt(0)')
    stamp(p, 2)
    nonce_check(p)
    ws_rot(p, VNON)
    p('s_barrier')
    odd, done = p.newlabel('odd'), p.newlabel('packed')
    p('s_bitcmp1_b32 s%d, 0' % sW)
    p('s_cbranch_scc1 %s' % odd)
    for half, fr in ((0, range(0, 13)), (1, range(13, 25))):
        if half:
            p.label(odd)
        for n, f in enumerate(fr):
            st, u = f // 5, f % 5
            for j in range(2):
                d = v(32 + n * 4 + j * 2, 2)
                if st < 4:
                    p('ds_read_b64_tr_b16 %s, v%d offset:%d' % (d, 22 + st // 2, (st % 2) * 40 * 640 + j * 8 * 640 + u * 32))
                else:
                    p('ds_read_b64_tr_b16 %s, v24 offset:%d' % (d, j * 80 * 640 + u * 32))
            if n % 4 == 3:
                p('s_waitcnt lgkmcnt(4)')
        p('s_waitcnt lgkmcnt(0)')
        for n, f in enumerate(fr):
            p('s_add_u32 s3, s5, %d' % (f * 1024))
            p('buffer_store_dwordx4 %s, v1, %s, s3 offen sc1' % (v(32 + n * 4, 4), WS))
        if not half:
            p('s_branch %s' % done)
    p.label(done)
    p('s_waitcnt vmcnt(0)')
    flag_store(p, T0 + 1)
    p('s_barrier')
    stamp(p, 3)


VL16, VM, VHH = 1, 4, 5
AK1, AK2, AV, BV, VGO = 8, 9, 10, 11, 13
QB2, VG, Q1, Q2 = 18, 20, 24, 28
AQ1, AQ2 = 16, 17
MSK, KF, VF, PP, O, S, QB1 = 32, 40, 56, 72, 88, 104, 152
WF3 = 156


def p2_setup():
    return [
        'v_and_b32 v%d, 31, v0' % VM,
        'v_lshrrev_b32 v%d, 5, v0' % VHH,
        's_lshl_b32 s4, s%d, 5' % sW,
        'v_add_u32 v7, s4, v%d' % VM,
        'v_lshlrev_b32 v15, 13, v%d' % VHH,
        'v_lshl_add_u32 v15, v7, 4, v15',
        'v_add_u32 v%d, %d, v15' % (AK1, KA_OFF),
        'v_lshlrev_b32 v15, 3, v7',
        'v_add_u32 v%d, %d, v15' % (AK2, KA_OFF + 16384),
        'v_lshlrev_b32 v15, 12, v%d' % VHH,
        'v_lshl_add_u32 v15, v7, 4, v15',
        'v_add_u32 v%d, %d, v15' % (AQ1, QA_OFF),
        's_lshl_b32 s4, s%d, 3' % sODD,
        's_add_u32 s4, s4, %d' % (QA_OFF + 8192),
        'v_lshl_add_u32 v%d, v7, 4, s4' % AQ2,
        'v_mov_b32 v%d, 0' % Q2,
        'v_mov_b32 v%d, 0' % (Q2 + 1),
        'v_bfe_u32 v20, v0, 4, 1',
        'v_and_b32 v21, 3, v0',
        'v_lshl_add_u32 v20, v20, 2, v21',
        'v_add_u32 v21, s%d, v20' % sODD,
        'v_bfe_u32 v22, v0, 2, 2',
        'v_lshl_add_u32 v22, v%d, 2, v22' % VHH,
        'v_lshlrev_b32 v22, 4, v22',
        'v_and_b32 v23, 1, v21',
        'v_lshl_add_u32 v23, v23, 3, v22',
        'v_lshrrev_b32 v21, 1, v21',
        'v_cmp_lt_u32 vcc, 4, v20',
        's_lshl_b32 s4, s%d, 9' % sW,
        's_add_u32 s4, s4, %d' % VA_OFF,
        'v_mul_u32_u24 v7, %d, v21' % VA_STR,
        'v_add3_u32 v7, v7, v23, s4',
        'v_add_u32 v15, %d, v22' % ONES_OFF,
        'v_cndmask_b32 v%d, v7, v15, vcc' % AV,
        's_mul_i32 s4, s%d, %d' % (sW, VB_WAVE),
        'v_mul_u32_u24 v7, %d, v21' % VB_STR,
        'v_add3_u32 v7, v7, v23, s4',
        'v_cndmask_b32 v%d, v7, v15, vcc' % BV,
        'v_lshlrev_b32 v%d, 4, v0' % VL16,
    ]


def kread(t, st, kf=KF):
    return ['ds_read_b128 %s, v%d offset:%d' % (v(kf + st * 8, 4), AK1, t * 512),
            'ds_read_b64 %s, v%d offset:%d' % (v(kf + st * 8 + 4, 2), AK2, t * 256)]


def smf(dst, st, kf=KF, q1=Q1, q2=Q2):
    d = v(dst, 16)
    return ['v_mfma_f32_32x32x16_bf16 %s, %s, %s, 0' % (d, v(kf + st * 8, 4), v(q1, 4)),
            'v_mfma_f32_32x32x8_bf16 %s, %s, %s, %s' % (d, v(kf + st * 8 + 4, 2), v(q2, 2), d)]


def vread(av, t, st):
    return ['ds_read_b64_tr_b16 %s, v%d offset:%d' % (v(VF + st * 8 + m2 * 4 + j * 2, 2), av, t * 512 + m2 * 256 + j * 128) for m2 in range(2) for j in range(2)]


def pvm(st, pp, first=False):
    return ['v_mfma_f32_32x32x16_bf16 %s, %s, %s, %s' % (v(O, 16), v(VF + st * 8 + m2 * 4, 4), v(pp + m2 * 4, 4), '0' if (first and m2 == 0) else v(O, 16)) for m2 in range(2)]


def exps(t):
    return ['v_exp_f32 v%d, v%d' % (t + r, t + r) for r in range(16)]


def cvts(t, dst):
    return ['v_cvt_pk_bf16_f32 v%d, v%d, v%d' % (dst + i, t + 2 * i, t + 2 * i + 1) for i in range(8)]


def finish(p, br):
    p('v_rcp_f32 v7, v%d' % (O + 12))
    if br == 1:
        p('v_sub_f32 v%d, 1.0, v%d' % (VG, VG))
        p('s_add_u32 s30, s30, %d' % O_BR)
        p('s_add_u32 s31, s31, %d' % F2_BR)
    p('v_mul_f32 v16, v7, v%d' % VG)
    for r in range(0, 8):
        p('v_mul_f32 v%d, v16, v%d' % (O + r, O + r))
    for i in range(4):
        p('v_cvt_pk_bf16_f32 v%d, v%d, v%d' % (PP + i, O + 2 * i, O + 2 * i + 1))
    p('buffer_store_dwordx4 %s, v%d, %s, s30 offen sc1' % (v(PP, 4), VL16, WS))
    for r in range(8, 12):
        p('v_mul_f32 v%d, v16, v%d' % (O + r, O + r))
    p('v_lshlrev_b32 v7, 3, v0')
    for i in range(4, 6):
        p('v_cvt_pk_bf16_f32 v%d, v%d, v%d' % (PP + i, O + 2 * i, O + 2 * i + 1))
    p('s_mov_b32 exec_hi, 0')
    p('buffer_store_dwordx2 %s, v7, %s, s30 offen offset:1024 sc1' % (v(PP + 4, 2), WS))
    p('s_mov_b32 exec_hi, -1')


def half_max(p, M):
    p('v_mov_b32 v%d, v%d' % (M + 1, M))
    p('v_permlane32_swap_b32 v%d, v%d' % (M, M + 1))
    p('v_max_f32 v%d, v%d, v%d' % (M, M, M + 1))


def subm(t, M):
    return ['v_sub_f32 v%d, v%d, v%d' % (t + i, t + i, M) for i in range(16)]


sFV = 26


def safe_path(p, back):
    S0, S1, K2 = S, S + 16, S + 32
    M = 16
    p('v_mov_b32 v7, %s' % NEG_INF)
    emit_all(p, kread(0, 0, K2) + kread(8, 1, K2) + ['s_waitcnt lgkmcnt(0)'] + smf(S0, 0, K2) + smf(S1, 1, K2))
    k = p.newlabel('hasold')
    p('s_cmp_lg_u32 s%d, 0' % sR)
    p('s_cbranch_scc1 %s' % k)
    for r in range(16):
        p('v_mov_b32 v%d, v7' % (S0 + r))
    p.label(k)
    for r in range(16):
        p('v_cndmask_b32 v%d, v%d, v%d, %s' % (S1 + r, S0 + r, S1 + r, mask(r)))
    p('v_max_f32 v%d, v%d, v%d' % (M, S1, S1 + 1))
    for r in range(2, 16, 2):
        p('v_max3_f32 v%d, v%d, v%d, v%d' % (M, M, S1 + r, S1 + r + 1))
    for t in range(1, 8):
        k = p.newlabel('skip')
        p('s_cmp_gt_u32 s%d, %d' % (sFV, t))
        p('s_cbranch_scc1 %s' % k)
        emit_all(p, kread(t, 0, K2) + ['s_waitcnt lgkmcnt(0)'] + smf(S0, 0, K2))
        for r in range(0, 16, 2):
            p('v_max3_f32 v%d, v%d, v%d, v%d' % (M, M, S0 + r, S0 + r + 1))
        p.label(k)
    half_max(p, M)
    emit_all(p, vread(AV, 8, 0) + vread(AV, 0, 1) + subm(S1, M) + exps(S1) + cvts(S1, PP + 8))
    for i in range(8):
        p('v_and_b32 v%d, v%d, v%d' % (PP + i, PP + 8 + i, MSK + i))
    for i in range(8):
        p('v_xor_b32 v%d, v%d, v%d' % (PP + 8 + i, PP + 8 + i, PP + i))
    emit_all(p, ['s_waitcnt lgkmcnt(0)'] + pvm(0, PP, True) + pvm(1, PP + 8))
    for t in range(1, 8):
        k = p.newlabel('skip')
        p('s_cmp_gt_u32 s%d, %d' % (sFV, t))
        p('s_cbranch_scc1 %s' % k)
        emit_all(p, kread(t, 0, K2) + vread(AV, t, 0) + ['s_waitcnt lgkmcnt(0)'] + smf(S0, 0, K2) + subm(S0, M) + exps(S0) + cvts(S0, PP) + pvm(0, PP))
        p.label(k)
    p('s_branch %s' % back)


def zero_if(p, cmp_text, regs):
    k, L = p.newlabel('valid'), p.newlabel('zero')
    p(cmp_text)
    p('s_cbranch_scc1 %s' % L)
    p.label(k)

    def rare():
        p.label(L)
        for r in regs:
            p('v_mov_b32 v%d, 0' % r)
        p('s_branch %s' % k)
    cold.append(rare)


sWP = sCB


def wp_base(p):
    p('s_lshl_b32 s3, s%d, 3' % sW)
    p('s_add_u32 s3, s3, s%d' % sN)
    p('s_mul_i32 s3, s3, 25600')
    p('s_add_u32 s%d, s3, %d' % (sWP, WP_OFF))


def w_load(p, f, va=None):
    if f % 4 == 0 and f:
        p('s_add_u32 s%d, s%d, 4096' % (sWP, sWP))
    p('buffer_load_dwordx4 %s, v%d, %s, s%d offen offset:%d sc1' % (v(WF3 + f * 4, 4), va or VL16, WS, sWP, (f % 4) * 1024))


def phase2(p, grp):
    S0, S1, S2 = S, S + 16, S + 32
    safe, back = p.newlabel('safe'), p.newlabel('back')
    cold.append(lambda: (p.label(safe), safe_path(p, back)))
    sQB, sKP, sLATE = 28, 29, sROT
    p('s_barrier')
    stamp(p, 21)
    prio(p, 3)
    p('ds_read_b128 %s, v%d' % (v(Q1, 4), AQ1))
    p('s_mov_b32 exec_hi, 0')
    p('ds_read_b64 %s, v%d' % (v(Q2, 2), AQ2))
    p('s_mov_b32 exec_hi, -1')
    emit_all(p, kread(0, 0) + kread(8, 1))
    if grp == 1:
        wp_base(p)
    p('s_sub_u32 s%d, 8, s%d' % (sFV, sW))
    p('s_cmp_eq_u32 s%d, 0' % sR)
    p('s_cselect_b32 s%d, s%d, 0' % (sFV, sFV))
    p('v_mov_b32 v7, 0xffff')
    for i in range(8):
        p('v_cndmask_b32 v%d, 0, v7, %s' % (MSK + i, mask(2 * i)))
    p('s_waitcnt lgkmcnt(2)')
    a = smf(S0, 0)
    p(a[0])
    for i in range(4):
        p('v_cndmask_b32 v%d, v%d, -1, %s' % (MSK + i, MSK + i, mask(2 * i + 1)))
    p(a[1])
    emit_all(p, kread(1, 0))
    for i in range(4, 8):
        p('v_cndmask_b32 v%d, v%d, -1, %s' % (MSK + i, MSK + i, mask(2 * i + 1)))
    p('s_waitcnt lgkmcnt(2)')
    nvm = [0]
    wq = list(range(0 if grp else CFG['nwa'], 25))
    site = [0]

    def wl():
        site[0] += 1
        if wq and (grp == 0 or site[0] <= CFG['nwb1']):
            w_load(p, wq.pop(0))
            nvm[0] += 1
    pb = [
        'v_and_b32 v20, 1, v0',
        's_sub_u32 s3, s%d, 1' % sRB32,
        'v_add_u32 v21, s3, v20',
        'v_max_i32 v21, 0, v21',
        'v_lshrrev_b32 v23, 2, v0',
        'v_min_u32 v23, 2, v23',
        'v_cmp_eq_u32 vcc, 0, v23',
        'v_mul_u32_u24 v22, 5, v23',
        'v_mov_b32 v23, s%d' % sRB32,
        'v_and_b32 v20, 2, v0',
        'v_cndmask_b32 v21, v21, v23, vcc',
        'v_add_u32 v20, s%d, v20' % sC0,
        'v_lshrrev_b32 v20, 4, v20',
        'v_add_u32 v20, v20, v22',
        'v_lshl_add_u32 v20, v21, 4, v20',
        'v_lshlrev_b32 v20, 7, v20',
        'v_add_u32 v%d, %d, v20' % (VPOLL, F1B_OFF),
        'v_lshlrev_b32 v%d, 4, v%d' % (VGO, VM),
        'v_mov_b32 v%d, 0' % QB2,
        'v_mov_b32 v%d, 0' % (QB2 + 1),
    ]
    b = smf(S1, 1)
    emit_all(p, [b[0]] + pb[:6] + [b[1]] + kread(2, 1) + vread(AV, 8, 0) + vread(AV, 0, 1) + ['s_waitcnt lgkmcnt(10)'])
    c2 = smf(S2, 0)
    emit_all(p, [c2[0]] + pb[6:13] + [c2[1]] + pb[13:] + [wl])
    for r in range(16):
        p('v_cndmask_b32 v%d, v%d, v%d, %s' % (S1 + r, S0 + r, S1 + r, mask(r)))
    e = exps(S1)
    emit_all(p, [wl] + e[:8] + [wl] + e[8:] + [wl] + cvts(S1, PP + 8))
    for i in range(8):
        p('v_and_b32 v%d, v%d, v%d' % (PP + i, PP + 8 + i, MSK + i))
    wl()
    for i in range(8):
        p('v_xor_b32 v%d, v%d, v%d' % (PP + 8 + i, PP + 8 + i, PP + i))
    zero_if(p, 's_cmp_eq_u32 s%d, 0' % sR, range(PP + 8, PP + 16))
    stamp(p, 22)

    def b_loads():
        p('v_add_u32 v16, s%d, v%d' % (sODD, VHH))
        p('v_lshl_add_u32 v16, v16, 11, v%d' % VGO)
        p('s_cmp_eq_u32 s%d, 0' % sODD)
        p('s_cselect_b32 s4, 4096, 8')
        p('v_add_u32 v17, s4, v%d' % VGO)
        p('s_add_u32 s5, s%d, %d' % (sQB, 80 * 2048))
        p('s_add_u32 s6, s%d, %d' % (sKP, 80 * 2048))
        p('buffer_load_dwordx4 %s, v16, %s, s%d offen sc1' % (v(QB1, 4), WS, sQB))
        p('s_mov_b32 exec_hi, 0')
        p('buffer_load_dwordx2 %s, v17, %s, s%d offen sc1' % (v(QB2, 2), WS, sQB))
        p('s_mov_b32 exec_hi, -1')
        for st, so in ((0, 6), (1, 5)):
            p('buffer_load_dwordx4 %s, v16, %s, s%d offen sc1' % (v(KF + st * 8, 4), WS, so))
            p('buffer_load_dwordx2 %s, v17, %s, s%d offen sc1' % (v(KF + st * 8 + 4, 2), WS, so))
        p('s_sub_u32 s4, s%d, s%d' % (sQB, sKP))
        p('v_mul_lo_u32 v16, s4, v%d' % VHH)
        p('v_add_u32 v16, v16, v%d' % VGO)
        p('s_mul_i32 s4, s%d, %d' % (sW, VB_WAVE))
        for j in range(3):
            p('s_add_u32 m0, s4, %d' % (j * VB_STR))
            p('s_add_u32 s3, s%d, %d' % (sKP, (160 + j) * 2048))
            p('buffer_load_dwordx4 v16, %s, s3 offen sc1 lds' % WS)

    sc_b = [
        's_lshr_b32 s3, s%d, 2' % sRB32,
        's_mul_i32 s3, s3, %d' % QKV_RB,
        's_and_b32 s4, s%d, 3' % sRB32,
        's_lshl_b32 s4, s4, 9',
        's_add_u32 s3, s3, s4',
        's_lshl_b32 s5, s%d, 11' % sC0,
        's_add_u32 s5, s5, %d' % QKV_BR,
        's_add_u32 s%d, s3, s5' % sQB,
        's_sub_u32 s3, s%d, 1' % sRB32,
        's_max_i32 s4, s3, 0',
        's_lshr_b32 s3, s4, 2',
        's_mul_i32 s3, s3, %d' % QKV_RB,
        's_and_b32 s4, s4, 3',
        's_lshl_b32 s4, s4, 9',
        's_add_u32 s3, s3, s4',
        's_add_u32 s%d, s3, s5' % sKP,
        's_lshl_b32 s3, s%d, 5' % sRB32,
        's_add_u32 s3, s3, s%d' % sH,
        's_mul_i32 s4, s3, 1280',
        's_add_u32 s30, s4, %d' % O_OFF,
        's_lshl_b32 s4, s3, 7',
        's_add_u32 s31, s4, %d' % F2_OFF,
        's_lshl_b32 s3, s%d, 9' % sRB32,
        's_add_u32 s%d, s3, %d' % (sRB, G_OFF),
    ]
    gload = lambda: p('buffer_load_dwordx4 %s, v%d, %s, s%d offen sc1' % (v(VG, 4), VGO, WS, sRB))
    sb = lambda t: S + 16 * ((t + 1) % 3)
    for t in range(1, 8):
        cur = sb(t)
        e, c = exps(cur), cvts(cur, PP + 8 * (t & 1))
        sn = smf(sb(t + 1), t & 1) if t < 7 else []
        kr = kread(t + 2, (t + 1) & 1) if t < 6 else []
        vr = vread(AV, t, t & 1)
        if t in (1, 3, 5):
            prio(p, {1: 2, 3: 1, 5: 0}[t])
        p('s_waitcnt lgkmcnt(0)')
        if t == 1:
            po, pd = pvm(1, PP + 8, True), pvm(0, PP)
            L = ([po[0]] + kr + e[0:3] + [po[1], wl] + vr + e[3:6] + [sn[0], wl] + e[6:9] + [sn[1], wl] + e[9:12] + [pd[0], wl] + e[12:16]
                 + [pd[1]] + c)
        else:
            pv = pvm((t - 1) & 1, PP + 8 * ((t - 1) & 1))
            if t < 7:
                L = ([sn[0]] + kr + vr + e[0:4] + [pv[0], wl] + e[4:8] + c[0:2] + [sn[1], wl] + e[8:12] + c[2:4] + [pv[1], wl] + e[12:16] + [wl] + c[4:8])
            else:
                L = [pv[0]] + vr + e[0:4] + [pv[1]] + e[4:16] + c
        if t == 2:
            L2 = []
            for x in L:
                L2.append(x)
                if sc_b and isinstance(x, str) and x.startswith('v_exp'):
                    L2 += sc_b[:2]
                    del sc_b[:2]
            L = L2
        emit_all(p, L)
        zero_if(p, 's_cmp_gt_u32 s%d, %d' % (sFV, t), range(PP + 8 * (t & 1), PP + 8 * (t & 1) + 8))
        if t == CFG['flagblk'] and grp == 1:
            p('s_waitcnt vmcnt(%d)' % nvm[0])
            flag_store(p, sFL)
            nvm[0] += 1
            stamp(p, 23)
        if t == 5:
            gload()
            poll_issue(p, VPD, VPOLL)
        if t == 6:
            nb = p.newlabel('notyet')
            p('s_waitcnt vmcnt(0)')
            p('v_cmp_ne_u64 vcc, %s, %s' % (v(VPD, 2), v(VNON, 2)))
            p('s_mov_b32 s%d, 1' % sLATE)
            if CFG['force_late']:
                p('s_branch %s' % nb)
            else:
                p('s_cbranch_vccnz %s' % nb)
            p('s_mov_b32 s%d, 0' % sLATE)
            b_loads()
            if CFG['poll2']:
                j2 = p.newlabel('j2')
                p.label(j2)
                cold.append(lambda: (p.label(nb), poll_issue(p, VPD, VPOLL), p('s_branch %s' % j2)))
            else:
                p.label(nb)
            stamp(p, 24)
    p('s_waitcnt lgkmcnt(0)')
    emit_all(p, pvm(1, PP + 8))
    if CFG['poll2']:
        c2l, j3 = p.newlabel('chance2'), p.newlabel('j3')
        p('s_cmp_lg_u32 s%d, 0' % sLATE)
        p('s_cbranch_scc1 %s' % c2l)
        p.label(j3)

        def chance2():
            p.label(c2l)
            p('s_waitcnt vmcnt(0)')
            p('v_cmp_ne_u64 vcc, %s, %s' % (v(VPD, 2), v(VNON, 2)))
            if CFG['force_late'] == 2:
                p('s_branch %s' % j3)
            else:
                p('s_cbranch_vccnz %s' % j3)
            p('s_mov_b32 s%d, 0' % sLATE)
            b_loads()
            p('s_branch %s' % j3)
        cold.append(chance2)
    prio(p, 2)
    poll_check(p, VG + 2, gload)
    p('s_mov_b32 s3, %s' % f32(2.0 ** 60))
    p('v_cmp_gt_f32 s[6:7], s3, v%d' % (O + 12))
    p('v_add_f32 v16, v%d, v%d' % (O, O + 2))
    p('v_add_f32 v17, v%d, v%d' % (O + 1, O + 3))
    for r in range(4, 12):
        p('v_add_f32 v%d, v%d, v%d' % (16 + r % 2, 16 + r % 2, O + r))
    p('v_cmp_lt_f32 vcc, %s, v%d' % (f32(2.0 ** -60), O + 12))
    p('v_add_f32 v7, v16, v17')
    p('s_mov_b32 s3, 0x7f800000')
    p('v_cmp_gt_f32 s[4:5], s3, abs(v7)')
    p('s_and_b64 s[6:7], s[6:7], vcc')
    p('s_and_b64 s[4:5], s[4:5], s[6:7]')
    p('s_cmp_eq_u64 s[4:5], -1')
    if CFG['force_safe']:
        p('s_branch %s' % safe)
    else:
        p('s_cbranch_scc0 %s' % safe)
    p.label(back)
    finish(p, 0)
    stamp(p, 25)
    late, lateb = p.newlabel('late'), p.newlabel('lateb')
    p('s_cmp_lg_u32 s%d, 0' % sLATE)
    p('s_cbranch_scc1 %s' % late)
    p.label(lateb)

    def late_path():
        p.label(late)
        poll_issue(p, VPD, VPOLL)
        p('s_waitcnt vmcnt(0)')
        flag_store(p, 31)
        poll_check(p, VPD, lambda: poll_issue(p, VPD, VPOLL))
        b_loads()
        p('s_waitcnt vmcnt(0)')
        p('s_branch %s' % lateb)
    cold.append(late_path)
    prio(p, 1)
    p('s_waitcnt vmcnt(2)')
    stamp(p, 26)
    M = 16
    a, b = smf(S0, 0, KF, QB1, QB2), smf(S1, 1, KF, QB1, QB2)
    po = p3_setup()
    emit_all(p, [a[0]] + vread(BV, 0, 1) + [a[1]] + vread(BV, 1, 0) + [b[0]] + po[:8] + [b[1]] + po[8:] + ['v_mov_b32 v7, %s' % NEG_INF])
    for r in range(16):
        p('v_cndmask_b32 v%d, v%d, v%d, %s' % (S1 + r, S0 + r, S1 + r, mask(r)))
    for r in range(16):
        p('v_cndmask_b32 v%d, v7, v%d, %s' % (S1 + r, S1 + r, vbm(r)))
    p('v_max_f32 v%d, v%d, v%d' % (M, S1, S1 + 1))
    p('v_max_f32 v%d, v%d, v%d' % (M + 1, S1 + 2, S1 + 3))
    for r in range(4, 16, 2):
        p('v_max3_f32 v%d, v%d, v%d, v%d' % (M + (r // 2) % 2, M + (r // 2) % 2, S1 + r, S1 + r + 1))
    p('v_max_f32 v%d, v%d, v%d' % (M, M, M + 1))
    half_max(p, M)
    emit_all(p, subm(S1, M) + exps(S1) + cvts(S1, PP + 8))
    for i in range(8):
        p('v_and_b32 v%d, v%d, v%d' % (PP + i, PP + 8 + i, MSK + i))
    p('s_waitcnt lgkmcnt(0)')
    pd = pvm(0, PP, True)
    p(pd[0])
    for i in range(8):
        p('v_xor_b32 v%d, v%d, v%d' % (PP + 8 + i, PP + 8 + i, PP + i))
    emit_all(p, [pd[1]] + pvm(1, PP + 8))
    p('s_waitcnt vmcnt(0)')
    flag_store(p, 31)
    stamp(p, 27)
    finish(p, 1)
    stamp(p, 28)
    if not wq:
        poll_issue(p, VPD, VPOLL)
        p('s_waitcnt vmcnt(1)')
        flag_store(p, 31)
        stamp(p, 29)
        if grp == 1:
            p('s_barrier')
        pend3[0] = 1
    else:
        n = min(len(wq), CFG['nwb2'])
        for _ in range(n):
            w_load(p, wq.pop(0))
        p('s_waitcnt vmcnt(%d)' % n)
        flag_store(p, 31)
        stamp(p, 29)
        p('s_barrier')
        while wq:
            w_load(p, wq.pop(0))
        poll_issue(p, VPD, VPOLL)
        pend3[0] = 0


pend3 = [0]
VO1, VO2, VPW = 8, 9, 10
OF, ACC3 = 32, 112


def p3_setup():
    return [
        'v_and_b32 v15, 15, v0',
        'v_mul_u32_u24 v16, 1280, v%d' % VHH,
        'v_bfe_u32 v17, v0, 4, 1',
        'v_lshl_add_u32 v16, v17, 9, v16',
        'v_lshl_add_u32 v%d, v15, 4, v16' % VO1,
        'v_lshrrev_b32 v16, 4, v0',
        'v_mul_u32_u24 v16, 1280, v16',
        'v_lshl_add_u32 v%d, v15, 3, v16' % VO2,
        'v_mul_u32_u24 v15, 160, v15',
        'v_mul_u32_u24 v17, 10240, v17',
        'v_lshl_add_u32 v15, v%d, 4, v15' % VHH,
        's_mul_i32 s3, s%d, 20480' % sW,
        'v_add3_u32 v%d, v15, v17, s3' % VPW,
        's_lshr_b32 s4, s%d, 2' % sW,
        's_and_b32 s5, s%d, 3' % sW,
        's_lshl_b32 s3, s%d, 3' % sM,
        's_add_u32 s3, s3, s5',
        's_mul_i32 s6, s3, %d' % (8 * 1280),
        's_mul_i32 s7, s4, %d' % O_BR,
        's_add_u32 s6, s6, s7',
        's_add_u32 s27, s6, %d' % O_OFF,
        's_lshl_b32 s3, s3, 10',
        's_mul_i32 s7, s4, %d' % F2_BR,
        's_add_u32 s3, s3, s7',
        's_add_u32 s3, s3, %d' % F2_OFF,
        'v_and_b32 v16, 7, v0',
        'v_lshl_add_u32 v16, v16, 7, s3',
        'v_bfe_u32 v17, v0, 3, 1',
        'v_lshl_add_u32 v%d, v17, 12, v16' % VPOLL,
    ]


def phase3(p, grp):
    def tile_scalars(j):
        if CFG['orot']:
            p('s_add_u32 s3, s%d, %d' % (sN, j))
            p('s_and_b32 s3, s3, 3')
        else:
            p('s_mov_b32 s3, %d' % j)
        p('s_mul_i32 s%d, s3, 2560' % (68 + j))
        p('s_lshr_b32 s4, s3, 1')
        p('s_mul_i32 s4, s4, 40960')
        p('s_add_u32 s4, s4, s27')
        p('s_and_b32 s3, s3, 1')
        p('s_lshl_b32 s3, s3, 7')
        b = 72 + j * 4
        p('s_add_u32 s%d, s4, s3' % (b + 2))
        p('s_add_u32 s%d, s%d, 5120' % (b + 3, b + 2))
        p('s_add_u32 s%d, s%d, s3' % (b, b + 2))
        p('s_add_u32 s%d, s%d, 5120' % (b + 1, b))

    def loads(tt):
        b = 72 + tt * 4
        L = ['buffer_load_dwordx4 %s, v%d, %s, s%d offen offset:%d sc1' % (v(OF + (tt * 5 + st) * 4, 4), VO1, WS, b + st // 2, (st % 2) * 2560) for st in range(4)]
        L += ['buffer_load_dwordx2 %s, v%d, %s, s%d offen offset:1024 sc1' % (v(OF + (tt * 5 + 4) * 4 + j * 2, 2), VO2, WS, b + 2 + j) for j in range(2)]
        return L
    for j in range(4):
        tile_scalars(j)
    p('s_waitcnt vmcnt(%d)' % pend3[0])
    poll_check(p, VPD, lambda: poll_issue(p, VPD, VPOLL))
    stamp(p, 30)
    lq = sum([loads(tt) for tt in range(4)], [])
    nis = [0]

    def ld(n):
        for _ in range(n):
            if lq:
                p(lq.pop(0))
                nis[0] += 1
    ld(CFG['oup'])
    stamp(p, 31)

    def wr(tt, u):
        return 'ds_write_b128 v%d, %s offset:%d' % (16 + tt, v(ACC3 + (tt & 1) * 20 + u * 4, 4), u * 32)

    def mm(y1):
        for tt in range(4):
            p('v_add_u32 v%d, s%d, v%d' % (16 + tt, 68 + tt, VPW))
        for tt in range(4):
            if tt == y1 or (grp == 0 and tt == 1):
                p('s_barrier')
            for st in range(5):
                done = tt * 6 + (st + 1 if st < 4 else 6)
                assert nis[0] >= done
                p('s_waitcnt vmcnt(%d)' % (nis[0] - done))
                for u in range(5):
                    acc = v(ACC3 + (tt & 1) * 20 + u * 4, 4)
                    p('v_mfma_f32_16x16x32_bf16 %s, %s, %s, %s' % (acc, v(WF3 + (st * 5 + u) * 4, 4), v(OF + (tt * 5 + st) * 4, 4), '0' if st == 0 else acc))
                    if tt > 0 and u == 2:
                        p(wr(tt - 1, st))
                    if u in (0, 4):
                        ld(1)
        for u in range(5):
            p(wr(3, u))

    if grp == 1:
        mm(CFG['y1'])
        stamp(p, 32)
        p('s_waitcnt lgkmcnt(0)')
        p('s_barrier')
        stamp_out(p)
        p('s_endpgm')
        return
    prio(p, 3)
    mm(-1)
    stamp(p, 32)
    p('s_mul_i32 s6, s%d, %d' % (sM, 64 * 1280))
    p('s_mul_i32 s7, s%d, 160' % sN)
    p('s_add_u32 s6, s6, s7')
    p('s_lshl_b32 s3, s%d, 6' % sW)
    p('v_add_u32 v7, s3, v0')
    p('v_lshlrev_b32 v8, 4, v7')
    p('v_add_u32 v9, 40960, v8')
    for rnd in range(3):
        p('v_add_u32 v15, %d, v7' % (rnd * 256))
        p('v_mul_u32_u24 v20, 6554, v15')
        p('v_lshrrev_b32 v20, 16, v20')
        p('v_mul_u32_u24 v20, %d, v20' % (1280 - 160))
        p('v_lshl_add_u32 v%d, v15, 4, v20' % (12 + rnd))
    p('v_add_u32 v10, 81920, v8')
    p('v_add_u32 v11, 81920, v9')
    p('s_waitcnt lgkmcnt(0)')
    p('s_barrier')
    prio(p, 0)
    SUM, TMP = 32, 56

    def rd(rnd, areg, buf):
        for k in range(4):
            for hf in range(2):
                p('ds_read_b128 %s, v%d offset:%d' % (v(TMP + buf * 32 + k * 8 + hf * 4, 4), areg + k // 2, (k % 2) * 20480 + hf * 10240 + rnd * 4096))

    def add4(rnd, buf, first):
        T = TMP + buf * 32
        if first:
            for i in range(8):
                p('v_add_f32 v%d, v%d, v%d' % (T + i, T + i, T + 8 + i))
            for i in range(8):
                p('v_add_f32 v%d, v%d, v%d' % (T + 16 + i, T + 16 + i, T + 24 + i))
            for i in range(8):
                p('v_add_f32 v%d, v%d, v%d' % (SUM + rnd * 8 + i, T + i, T + 16 + i))
            return
        for i in range(4):
            p('v_pk_add_f32 %s, %s, %s' % (v(T + 2 * i, 2), v(T + 2 * i, 2), v(T + 8 + 2 * i, 2)))
        for i in range(4):
            p('v_pk_add_f32 %s, %s, %s' % (v(T + 16 + 2 * i, 2), v(T + 16 + 2 * i, 2), v(T + 24 + 2 * i, 2)))
        if not first:
            for i in range(4):
                p('v_pk_add_f32 %s, %s, %s' % (v(T + 2 * i, 2), v(T + 2 * i, 2), v(SUM + rnd * 8 + 2 * i, 2)))
        for i in range(4):
            p('v_pk_add_f32 %s, %s, %s' % (v(SUM + rnd * 8 + 2 * i, 2), v(T + 2 * i, 2), v(T + 16 + 2 * i, 2)))

    def out(rnd):
        for i in range(4):
            p('v_cvt_pk_bf16_f32 v%d, v%d, v%d' % (20 + rnd * 4 + i, SUM + rnd * 8 + 2 * i, SUM + rnd * 8 + 2 * i + 1))
        p('buffer_store_dwordx4 %s, v%d, %s, s6 offen' % (v(20 + rnd * 4, 4), 12 + rnd, sr(S_OUT)))
    for rnd in range(3):
        rd(rnd, 8, 0)
        p('s_waitcnt lgkmcnt(0)')
        add4(rnd, 0, True)
    stamp(p, 33)
    prio(p, 3)
    p('s_barrier')
    stamp(p, 34)
    fin = p.newlabel('fin')
    rd(0, 10, 0)
    p('s_waitcnt lgkmcnt(7)')
    rd(1, 10, 1)
    p('s_waitcnt lgkmcnt(8)')
    two = p.newlabel('two')
    p('s_cmp_ge_u32 s%d, 2' % sW)
    p('s_cbranch_scc1 %s' % two)
    p('s_waitcnt lgkmcnt(7)')
    rd(2, 10, 2)
    add4(0, 0, False)
    out(0)
    p('s_waitcnt lgkmcnt(8)')
    add4(1, 1, False)
    out(1)
    p('s_waitcnt lgkmcnt(0)')
    add4(2, 2, False)
    out(2)
    p('s_branch %s' % fin)
    p.label(two)
    add4(0, 0, False)
    out(0)
    p('s_waitcnt lgkmcnt(0)')
    add4(1, 1, False)
    out(1)
    p.label(fin)
    stamp(p, 35)
    stamp_out(p)
    p('s_endpgm')


def kernel(p):
    del cold[:]
    end, spare, ktail, p2b, g0 = [p.newlabel(x) for x in ('end', 'spare', 'ktail', 'p2b', 'g0')]
    prologue(p, end)
    p('s_cmp_ge_u32 s4, 30')
    p('s_cbranch_scc1 %s' % spare)
    p('s_cmp_lt_u32 s%d, 4' % sW)
    p('s_cbranch_scc1 %s' % g0)
    p1_grp1(p)
    p.label(p2b)
    phase2(p, 1)
    phase3(p, 1)
    p.label(spare)
    p1_spare(p)
    k = p.newlabel('sp03')
    p('s_cmp_lt_u32 s%d, 4' % sW)
    p('s_cbranch_scc1 %s' % k)
    vb_masks(p)
    emit_all(p, p2_setup())
    p('s_branch %s' % p2b)
    p.label(k)
    tail_scalars(p)
    tail_vectors(p)
    p('s_mov_b32 s%d, 1' % sNW)
    poll_issue(p, VPD, VPOLL)
    p('s_branch %s' % ktail)
    p.label(end)
    p('s_endpgm')
    p.label(g0)
    p1_grp0(p)
    p.label(ktail)
    kv_tail(p)
    phase2(p, 0)
    phase3(p, 0)
    p.label('.Lhot_end')
    i = 0
    while i < len(cold):
        cold[i]()
        i += 1


HEADER = open('cdna_kernels/%s.s.ref' % NAME).read().split('; Override launch')[0]


def build(extra=None, **cfg):
    CFG.update(cfg)
    n = NAME + '_kernel'
    out = HEADER
    if extra:
        out += '; @launch kernel=%s grid=(256,1,1) block=(512,1,1) lds=%d\n' % (n, LDS_BYTES)
        out += '; @launch kernel=diag_kernel grid=(1,1,1) block=(64,1,1) lds=0\n'
    else:
        out += '; @launch grid=(256,1,1) block=(512,1,1) lds=%d\n' % LDS_BYTES
    out += '.amdgcn_target "amdgcn-amd-amdhsa--gfx950"\n.text\n'
    ks = [(n, kernel)] + ([('diag_kernel', extra)] if extra else [])
    desc = ''
    uid = 0
    for kn, f in ks:
        p = Prog()
        p.uid = uid
        p.label(kn)
        f(p)
        uid = p.uid
        nn = p.fix_hazards()
        ne = p.check_waits([kn])
        mx = p.max_regs()
        print(kn[-12:], 'instrs', len(p.ins), 'nops', nn, 'wait errors', ne, 'max regs', mx, file=sys.stderr)
        assert ne == 0
        out += '.globl %s\n.p2align 8\n.type %s,@function\n' % (kn, kn) + p.text()
        desc += '.p2align 6\n' + kernel_desc(kn, max(mx['v'] + 1, 8), 102)
    out += '.section .rodata,"a"\n' + desc
    return out


if __name__ == '__main__':
    cfg = {}
    args = []
    for a_ in sys.argv[1:]:
        if '=' in a_:
            k, val = a_.split('=')
            cfg[k] = eval(val)
        else:
            args.append(a_)
    path = args[0] if args else 'cdna_kernels/%s.s' % NAME
    open(path, 'w').write(build(**cfg))
```

```python
import sys, struct
sys.path.insert(0, 'gen')
from asm import *

NAME = 'gated_mix__sliding_block__sliding_local_dilated__prompt'

QKV_RB = 240 * 2048
QKV_BR = 16 * QKV_RB
O_OFF = 2 * QKV_BR
O_BR = 64 * 32 * 1280
G_OFF = O_OFF + 2 * O_BR
F1A_OFF = G_OFF + 32768
F1B_OFF = F1A_OFF + 64 * 16 * 128
F2_OFF = F1B_OFF + 64 * 16 * 128
F2_BR = 64 * 32 * 128
FW_OFF = F2_OFF + 2 * F2_BR
DUMMY_OFF = FW_OFF + 128 * 128
WP_OFF = DUMMY_OFF + 2048 * 128
WS_END = WP_OFF + 64 * 25600
ST_OFF = 28 << 20
WS_BYTES = 32 << 20
assert WS_END <= ST_OFF

X_BYTES = 2048 * 1280
WQ_BYTES = 640 * 3840
WO_BYTES = 640 * 1280
OUT_BYTES = 2048 * 1280

WSLOT = 8 * 2080
NWS = 6
XR_OFF = NWS * WSLOT
KA_OFF = XR_OFF
VA_OFF = KA_OFF + 20480
VA_STR = 8192 + 64
ONES_OFF = VA_OFF + 3 * VA_STR
ONES_LEN = 4608
QA_OFF = 149760
GW_OFF = QA_OFF + 12288
VB_WAVE = 3328
VB_STR = 1024 + 64
LDS_BYTES = 163840
assert ONES_OFF + ONES_LEN <= QA_OFF and GW_OFF + 1280 <= LDS_BYTES and VA_OFF % 256 == 0 and XR_OFF % 256 == 0
assert XR_OFF + 3 * WSLOT <= GW_OFF

S_WS, S_OUT = 8, 12
sW, sFL, sH, sR, sC0, sODD, sRB32, sRB, sCB, sROT = 16, 17, 18, 19, 20, 21, 22, 23, 24, 25
sM, sN = sH, sR
T0 = 26
S_DBG = 32
sMASK = 36
sVB = 68
S_X, S_WA, S_WB, S_GW = 68, 72, 76, 80
KA_ = 36
WS = 's[%d:%d]' % (S_WS, S_WS + 3)

VNON = 2
VSTAMP = 6

CFG = dict(stamp=False, light=False, force_safe=False, force_late=False, preflag=True,
           D=5, rot=(32, 1, 0, 0), cpf=2, wbwarm=40, prio=True, fullflag=16,
           ntx='', nta='', ntb='', nto='nt',
           BB=[10, 12, 14, 17], g1last=15, n8=3, nwa=0, b1rate=1,
           sched='S I WWWW SSS B SSSS WWWWWWWW B WWWW N F B',
           flagblk=-1, CH=[5, 6, 7], wa=[4, 5, 4, 4, 4, 4], wb=[3, 3, 3, 3, 3, 3], pr={2: 2, 5: 1}, f2a=1, nwb2=8, orot=True, oup=12, y1=3)
SPIN = 1 << 15


def f32(x):
    return '0x%08x' % struct.unpack('<I', struct.pack('<f', x))[0]


QSCALE = (20 ** -0.5) * 1.4426950408889634
NEG_INF = '0xff800000'


def srd(p, d, ptr, nbytes):
    p('s_mov_b32 s%d, s%d' % (d, ptr))
    p('s_and_b32 s%d, s%d, 0xffff' % (d + 1, ptr + 1))
    p('s_mov_b32 s%d, 0x%x' % (d + 2, nbytes))
    p('s_mov_b32 s%d, 0x20000' % (d + 3))


def sr(d):
    return 's[%d:%d]' % (d, d + 3)


def prio(p, n):
    if CFG['prio']:
        p('s_setprio %d' % n)


def stamp(p, i):
    if CFG['stamp'] and not (CFG['light'] and i not in (0, 61)):
        p('%s s[100:101]' % ('s_memtime' if CFG['stamp'] == 'clk' else 's_memrealtime'))
        p('s_waitcnt lgkmcnt(0)')
        p('v_writelane_b32 v%d, s100, %d' % (VSTAMP, i))


def stamp_clk(p, i):
    if CFG['stamp']:
        p('s_memtime s[100:101]')
        p('s_waitcnt lgkmcnt(0)')
        p('v_writelane_b32 v%d, s100, %d' % (VSTAMP, i))


def stamp_out(p):
    if CFG['stamp']:
        p('s_waitcnt vmcnt(0)')
        stamp(p, 61)
        stamp_clk(p, 63)
        p('s_lshl_b32 s3, s2, 3')
        p('s_add_u32 s3, s3, s%d' % sW)
        p('s_lshl_b32 s3, s3, 8')
        p('s_add_u32 s3, s3, %d' % ST_OFF)
        p('v_lshlrev_b32 v7, 2, v0')
        p('buffer_store_dword v%d, v7, %s, s3 offen' % (VSTAMP, WS))
        p('s_waitcnt vmcnt(0)')


def nonce_issue(p, r=VNON):
    p('buffer_load_dwordx2 %s, off, %s, 0 sc1' % (v(r, 2), sr(S_DBG)))


cold = []


def nonce_check(p, r=VNON):
    ok, L = p.newlabel('nok'), p.newlabel('nsp')
    p('v_cmp_eq_u32 vcc, 0, v%d' % r)
    p('s_cbranch_vccnz %s' % L)
    p.label(ok)

    def rare():
        L2 = p.newlabel('nsp')
        p.label(L)
        p('s_mov_b32 s3, %d' % SPIN)
        p.label(L2)
        p('s_sleep 2')
        nonce_issue(p, r)
        p('s_sub_u32 s3, s3, 1')
        p('s_waitcnt vmcnt(0)')
        p('s_cbranch_scc1 %s' % ok)
        p('v_cmp_eq_u32 vcc, 0, v%d' % r)
        p('s_cbranch_vccnz %s' % L2)
        p('s_branch %s' % ok)
    cold.append(rare)


def preflag(p, f1):
    if not CFG['preflag']:
        return
    for r in range(8, 12):
        p('v_mov_b32 v%d, 0' % r)
    p('v_and_b32 v12, 7, v0')
    p('v_lshlrev_b32 v12, 4, v12')
    p('v_bfe_u32 v13, v0, 3, 1')
    if f1:
        p('v_mul_u32_u24 v14, %d, v13' % (F1B_OFF - F1A_OFF))
        p('v_add_u32 v14, v14, v12')
        p('s_mov_b64 exec, 0xffff')
        p('buffer_store_dwordx4 v[8:11], v14, %s, s%d offen sc1' % (WS, sFA))
        p('s_mov_b64 exec, -1')
    p('v_mul_u32_u24 v13, %d, v13' % F2_BR)
    p('v_bfe_u32 v15, v0, 4, 1')
    p('v_lshl_add_u32 v13, v15, 14, v13')
    p('v_add_u32 v13, v13, v12')
    p('s_lshl_b32 s3, s%d, 5' % sRB32)
    p('s_add_u32 s3, s3, s%d' % sH)
    p('s_lshl_b32 s3, s3, 7')
    p('s_add_u32 s3, s3, %d' % F2_OFF)
    p('s_mov_b32 exec_hi, 0')
    p('buffer_store_dwordx4 v[8:11], v13, %s, s3 offen sc1' % WS)
    p('s_mov_b32 exec_hi, -1')


def flag_store(p, soff):
    if CFG['fullflag']:
        p('v_lshlrev_b32 v7, 3, v0')
        p('s_mov_b64 exec, 0x%x' % ((1 << CFG['fullflag']) - 1))
        p('buffer_store_dwordx2 %s, v7, %s, s%d offen sc1' % (v(VNON, 2), WS, soff))
        p('s_mov_b64 exec, -1')
        return
    p('s_mov_b64 exec, 1')
    p('buffer_store_dwordx2 %s, off, %s, s%d sc1' % (v(VNON, 2), WS, soff))
    p('s_mov_b64 exec, -1')


def poll_issue(p, vdat, voff):
    p('buffer_load_dwordx2 %s, v%d, %s, 0 offen sc1' % (v(vdat, 2), voff, WS))


def poll_check(p, vcmp, reissue):
    ok, L = p.newlabel('pok'), p.newlabel('psp')
    p('v_cmp_ne_u64 vcc, %s, %s' % (v(vcmp, 2), v(VNON, 2)))
    p('s_cbranch_vccz %s' % ok)
    p('s_mov_b32 s3, %d' % SPIN)
    p.label(L)
    reissue()
    p('s_sub_u32 s3, s3, 1')
    p('s_waitcnt vmcnt(0)')
    p('s_cbranch_scc1 %s' % ok)
    p('v_cmp_ne_u64 vcc, %s, %s' % (v(vcmp, 2), v(VNON, 2)))
    p('s_cbranch_vccnz %s' % L)
    p.label(ok)


def emit_all(p, L):
    for x in L:
        if callable(x):
            x()
        else:
            p(x)


def prologue(p, end):
    p('s_load_dwordx16 s[%d:%d], s[0:1], 0' % (KA_, KA_ + 15))
    p('s_load_dwordx4 s[%d:%d], s[0:1], 64' % (KA_ + 16, KA_ + 19))
    p('s_cmp_ge_u32 s2, 256')
    p('s_cbranch_scc1 %s' % end)
    if CFG['cpf'] == 2:
        k = p.newlabel('pc')
        p('s_getpc_b64 s[4:5]')
        p.label(k)
        p('s_lshr_b32 s3, s2, 3')
        p('v_lshl_add_u32 v4, v0, 5, s3')
        p('v_lshlrev_b32 v4, 7, v4')
        p('v_cmp_gt_u32 vcc, .Lhot_end-%s, v4' % k)
        p('s_and_saveexec_b64 s[6:7], vcc')
        k2 = p.newlabel('nopf')
        p('s_cbranch_execz %s' % k2)
        p('global_load_dword v253, v4, s[4:5]')
        p.label(k2)
        p('s_mov_b64 exec, -1')
    p('v_lshrrev_b32 v1, 6, v0')
    p('v_readfirstlane_b32 s%d, v1' % sW)
    p('v_and_b32 v0, 63, v0')
    if CFG['stamp']:
        p('v_mov_b32 v%d, 0' % VSTAMP)
        stamp(p, 0)
        if not CFG['light']:
            stamp_clk(p, 62)
    p('s_and_b32 s3, s2, 7')
    p('s_lshr_b32 s4, s2, 3')
    p('s_lshr_b32 s5, s3, 1')
    p('s_mul_i32 s5, s5, 30')
    p('s_add_u32 s5, s5, s4')
    p('s_lshr_b32 s%d, s5, 3' % sCB)
    p('s_and_b32 s5, s5, 7')
    p('s_and_b32 s6, s3, 1')
    p('s_lshl_b32 s6, s6, 3')
    p('s_add_u32 s%d, s5, s6' % sRB)


def late_scalars(p):
    srd(p, S_WS, KA_ + 18, WS_BYTES)
    srd(p, S_OUT, KA_ + 14, OUT_BYTES)
    srd(p, S_DBG, KA_ + 16, 256)
    p('s_and_b32 s3, s2, 7')
    p('s_lshr_b32 s4, s2, 3')
    p('s_and_b32 s7, s4, 3')
    p('s_lshl_b32 s3, s3, 2')
    p('s_add_u32 s%d, s3, s7' % sH)
    p('s_lshr_b32 s%d, s4, 2' % sR)
    p('s_and_b32 s%d, s%d, 1' % (sODD, sH))
    p('s_lshr_b32 s3, s%d, 1' % sH)
    p('s_mul_i32 s3, s3, 5')
    p('s_lshl_b32 s6, s%d, 1' % sODD)
    p('s_add_u32 s%d, s3, s6' % sC0)
    p('s_lshl_b32 s3, s%d, 3' % sR)
    p('s_add_u32 s%d, s3, s%d' % (sRB32, sW))
    p('s_lshl_b32 s3, s2, 3')
    p('s_add_u32 s3, s3, s%d' % sW)
    p('s_lshl_b32 s3, s3, 7')
    p('s_add_u32 s%d, s3, %d' % (sFL, DUMMY_OFF))
    for r in range(16):
        kl = 8 * (r // 4) + r % 4
        p('s_mov_b32 s%d, 0x%x' % (sMASK + 2 * r, (0xffffffff << kl) & 0xffffffff))
        p('s_mov_b32 s%d, 0x%x' % (sMASK + 2 * r + 1, (0xffffffff << (kl + 4)) & 0xffffffff))


def vb_masks(p):
    rotl = lambda x, n: ((x << n) | (x >> (32 - n))) & 0xffffffff
    for r in range(16):
        kl = 8 * (r // 4) + r % 4
        p('s_mov_b32 s%d, 0x%x' % (sVB + 2 * r, rotl(0x5555, kl)))
        p('s_mov_b32 s%d, 0x%x' % (sVB + 2 * r + 1, rotl(0x5555, kl + 4)))
    k, L = p.newlabel('vbok'), p.newlabel('vbfirst')
    p('s_cmp_eq_u32 s%d, 0' % sRB32)
    p('s_cbranch_scc1 %s' % L)
    p.label(k)

    def rare():
        p.label(L)
        for r in range(16):
            p('s_and_b64 %s, %s, %s' % (vbm(r), vbm(r), mask(r)))
        p('s_branch %s' % k)
    cold.append(rare)


def mask(r):
    return 's[%d:%d]' % (sMASK + 2 * r, sMASK + 2 * r + 1)


def vbm(r):
    return 's[%d:%d]' % (sVB + 2 * r, sVB + 2 * r + 1)


WF, ACC, X = 8, 32, 96
VST, AX = 1, 2
sQ, sFA, sSC = T0, T0 + 1, T0 + 2
SLOT_B = {10: 4, 11: 5, 12: 7, 13: 8, 14: 0, 15: 1, 16: 2, 17: 3, 18: 4, 19: 5}
FREE_B = {10: 6, 11: 7, 12: 8, 13: 9, 14: 8, 15: 9, 16: 10, 17: 11, 18: 12, 19: 13}


def slot_of(c):
    return c % NWS if c < 10 else SLOT_B[c]


def frag_list():
    frs = []
    for c in range(20):
        for i in range(16):
            if c < 10:
                st, u = i // 8, i % 8
                off = [(st * 2 + j) * 256 + u * 32 for j in range(2)]
                frs.append(dict(c=c, off=off, acc=u, xs=2 * c + st, first=(c == 0 and st == 0)))
            else:
                slab, cc = (c - 10) // 5, (c - 10) % 5
                st, u = i // 4, i % 4
                off = [(st * 2 + j) * 128 + u * 32 for j in range(2)]
                frs.append(dict(c=c, off=off, acc=slab * 4 + u, xs=4 * cc + st, first=(cc == 0 and st == 0)))
    return frs


def x_reads(c):
    return [('ds_read_b128 %s, v%d offset:%d' % (v(X + ((2 * c + st) * 2 + t) * 4, 4), AX + st, (c % 3) * WSLOT + t * 2048), ('x', 2 * c + st))
            for st in range(2) for t in range(2)]


def gemm_addr(p, sl):
    p('v_and_b32 v24, 15, v0')
    p('v_lshrrev_b32 v25, 4, v0')
    p('v_lshrrev_b32 v26, 1, v24')
    p('v_xor_b32 v26, v26, v25')
    p('v_lshlrev_b32 v26, 4, v26')
    p('v_lshl_add_u32 v26, v24, 7, v26')
    p('s_lshl_b32 s3, s%d, 12' % sl)
    p('s_add_u32 s3, s3, %d' % XR_OFF)
    p('v_add_u32 v%d, s3, v26' % AX)
    p('v_xor_b32 v%d, 64, v%d' % (AX + 1, AX))
    p('v_bfe_u32 v26, v0, 2, 3')
    p('v_mul_u32_u24 v26, 2080, v26')
    p('v_lshrrev_b32 v27, 5, v0')
    p('v_lshl_add_u32 v26, v27, 10, v26')
    p('v_and_b32 v28, 3, v0')
    p('v_lshl_add_u32 v4, v28, 3, v26')
    p('v_add_u32 v5, %d, v4' % (4 * WSLOT))
    p('v_and_b32 v26, 31, v0')
    p('v_lshlrev_b32 v26, 4, v26')
    p('v_lshl_add_u32 v26, v27, 11, v26')
    p('s_lshl_b32 s3, s%d, 9' % sl)
    p('v_add_u32 v%d, s3, v26' % VST)


def gemm_scalars(p, sl, br, sflag):
    p('s_mul_i32 s%d, s%d, %d' % (sQ, sRB, QKV_RB))
    p('s_lshl_b32 s3, s%d, 15' % sCB)
    p('s_add_u32 s%d, s%d, s3' % (sQ, sQ))
    p('s_cmp_lt_u32 s%d, 5' % sCB)
    p('s_cselect_b32 s%d, %s, 1.0' % (sSC, f32(QSCALE)))
    p('s_mov_b32 s%d, s%d' % (sSC + 1, sSC))
    p('s_lshl_b32 s3, s%d, 2' % sRB)
    p('s_add_u32 s3, s3, s%d' % sl)
    p('s_lshl_b32 s4, s3, 4')
    p('s_add_u32 s4, s4, s%d' % sCB)
    p('s_lshl_b32 s5, s4, 7')
    p('s_add_u32 s%d, s5, %d' % (sflag, F1B_OFF if br else F1A_OFF))


def rot_scalar(p):
    G, m1, m2, m3 = CFG['rot']
    p('s_add_u32 s6, s%d, s%d' % (sRB, sCB))
    p('s_and_b32 s6, s6, %d' % (G - 1))
    if m1 != 1:
        p('s_mul_i32 s6, s6, %d' % m1)
    if m2:
        p('s_bfe_u32 s7, s2, 0x20001')
        p('s_mul_i32 s7, s7, %d' % m2)
        p('s_add_u32 s6, s6, s7')
    if m3:
        p('s_and_b32 s7, s2, 1')
        p('s_mul_i32 s7, s7, %d' % m3)
        p('s_add_u32 s6, s6, s7')
    if (G - 1) * m1 + 3 * m2 + m3 >= 5:
        p('s_mul_i32 s7, s6, 52')
        p('s_lshr_b32 s7, s7, 8')
        p('s_mul_i32 s7, s7, 5')
        p('s_sub_u32 s6, s6, s7')
    p('s_lshl_b32 s%d, s6, 1' % sROT)


def conv(u, pk=False):
    a0 = ACC + u * 8
    if pk:
        L = ['v_pk_mul_f32 %s, %s, s[%d:%d]' % (v(a0 + 2 * i, 2), v(a0 + 2 * i, 2), sSC, sSC + 1) for i in range(4)]
    else:
        L = ['v_mul_f32 v%d, s%d, v%d\nv_mul_f32 v%d, s%d, v%d' % (a0 + 2 * i, sSC, a0 + 2 * i, a0 + 2 * i + 1, sSC, a0 + 2 * i + 1) for i in range(4)]
    L += ['v_cvt_pk_bf16_f32 v%d, v%d, v%d' % (a0 + i, a0 + 2 * i, a0 + 2 * i + 1) for i in range(4)]
    return L


def swaps(u):
    d = ACC + u * 8
    return ['v_permlane16_swap_b32 v%d, v%d' % (d, d + 2), 'v_permlane16_swap_b32 v%d, v%d' % (d + 1, d + 3)]


def qstore(br, u):
    return ['s_add_u32 s3, s%d, %d' % (sQ, br * QKV_BR + u * 4096) + '\n' +
            'buffer_store_dwordx4 %s, v%d, %s, s3 offen sc1' % (v(ACC + u * 8, 4), VST, WS)]


def epilogue(br, us, pk=False):
    L = []
    prev = None
    for u in us:
        c = conv(u, pk)
        L += c[:4]
        if prev is not None:
            L += swaps(prev) + c[4:6] + qstore(br, prev) + c[6:]
        else:
            L += c[4:]
        prev = u
    return L + swaps(prev) + qstore(br, prev)


def gemm_stream(p, f0, f1, barriers, pre_barrier, side, aw, with_x):
    D = CFG['D']
    NB = D + 1
    frs = frag_list()
    pend = []

    def lds(text, tag):
        p(text)
        pend.append(tag)

    def need(tags):
        idx = [i for i, t in enumerate(pend) if t in tags]
        if idx:
            n = len(pend) - 1 - max(idx)
            assert n <= 15
            p('s_waitcnt lgkmcnt(%d)' % n)
            del pend[:max(idx) + 1]

    def pre_read(f):
        if f % 16 == 0:
            c = f // 16
            if c in barriers:
                pre_barrier(c)
                p('s_barrier')
                if CFG['stamp'] and not CFG['light'] and c in (0, 2, 6, 10, 14):
                    stamp(p, 2 + c // 2)
                    del pend[:]
            if with_x and c < 10:
                for t, tag in x_reads(c):
                    lds(t, tag)

    def w_read(f, j):
        fr = frs[f]
        slot = slot_of(fr['c'])
        lds('ds_read_b64_tr_b16 %s, v%d offset:%d' % (v(WF + (f % NB) * 4 + j * 2, 2), aw[slot // 4], (slot % 4) * WSLOT + fr['off'][j]), ('w', f))

    def mf(f, t):
        fr = frs[f]
        acc = v(ACC + (fr['acc'] * 2 + t) * 4, 4)
        p('v_mfma_f32_16x16x32_bf16 %s, %s, %s, %s' % (acc, v(WF + (f % NB) * 4, 4), v(X + (fr['xs'] * 2 + t) * 4, 4), '0' if fr['first'] else acc))

    for f in range(f0, f0 + D):
        pre_read(f)
        w_read(f, 0)
        w_read(f, 1)
    for f in range(f0, f1):
        g = f + D
        need({('w', f), ('x', frs[f]['xs'])})
        mf(f, 0)
        if g <= f1 and g < 320:
            pre_read(g)
        if g < f1:
            w_read(g, 0)
        mf(f, 1)
        if g < f1:
            w_read(g, 1)
        emit_all(p, side.get(f, []))


class Dma:
    def __init__(self, p, sXB, sWBs, sLX, sLW, sKX, sKW, VX, VWA, VWB):
        self.p, self.r, self.v = p, (sXB, sWBs, sLX, sLW, sKX, sKW), (VX, VWA, VWB)
        self.cur = None
        self.issued = []

    def kchunk(self, kk):
        p = self.p
        p('s_add_u32 s3, s%d, %d' % (sROT, kk))
        p('s_cmp_ge_u32 s3, 10')
        p('s_cselect_b32 s4, 10, 0')
        p('s_sub_u32 s3, s3, s4')

    def kbase(self, c):
        if self.cur == c:
            return
        self.cur = c
        p = self.p
        sXB, sWBs, sLX, sLW, sKX, sKW = self.r
        self.kchunk(c if c < 10 else 2 * ((c - 10) % 5))
        if c < 10:
            p('s_lshl_b32 s4, s3, 7')
            p('s_add_u32 s%d, s4, s%d' % (sKX, sXB))
        p('s_mul_i32 s4, s3, %d' % (64 * 3840))
        p('s_add_u32 s%d, s4, s%d' % (sKW, sWBs))

    def emit(self, kind, c, t):
        p = self.p
        sXB, sWBs, sLX, sLW, sKX, sKW = self.r
        VX, VWA, VWB = self.v
        self.kbase(c)
        if kind == 'x':
            p('s_add_u32 m0, s%d, %d' % (sLX, XR_OFF + (c % 3) * WSLOT + t * 4096))
            p('s_add_u32 s3, s%d, %d' % (sKX, t * 32 * 1280))
            p('buffer_load_dwordx4 v%d, %s, s3 offen %s lds' % (VX, sr(S_X), CFG['ntx']))
        else:
            kb, kh = t & 1, t >> 1
            p('s_add_u32 m0, s%d, %d' % (sLW, slot_of(c) * WSLOT + kb * 4 * 2080 + kh * 1024))
            p('s_add_u32 s3, s%d, %d' % (sKW, (16 * kh + 8 * kb) * 3840 + (128 * ((c - 10) // 5) if c >= 10 else 0)))
            p('buffer_load_dwordx4 v%d, %s, s3 offen %s lds' % (VWA if c < 10 else VWB, sr(S_WA if c < 10 else S_WB), CFG['nta'] if c < 10 else CFG['ntb']))
        self.issued.append(c)

    def chunk(self, c):
        for t in range(4):
            self.emit('w', c, t)
            if c < 10:
                self.emit('x', c, t)

    def other(self, tag=None):
        self.issued.append(tag)

    def wait(self, pred):
        idx = [i for i, x in enumerate(self.issued) if pred(x)]
        if idx:
            self.p('s_waitcnt vmcnt(%d)' % (len(self.issued) - 1 - max(idx)))
            del self.issued[:max(idx) + 1]

    def wait_chunks(self, lim):
        self.wait(lambda x: isinstance(x, int) and x <= lim)


def wb_voffset(p, d, sl):
    p('v_lshrrev_b32 v20, 4, v0')
    p('v_lshlrev_b32 v20, 5, v20')
    p('v_bfe_u32 v21, v0, 3, 1')
    p('v_lshl_add_u32 v20, v21, 2, v20')
    p('v_add_u32 v20, s%d, v20' % sl)
    p('v_mul_u32_u24 v20, 3840, v20')
    p('v_and_b32 v21, 7, v0')
    p('v_lshl_add_u32 v%d, v21, 4, v20' % d)


def cert_limit(c):
    BB = CFG['BB']
    if c < 10:
        return c
    nxt = [b for b in BB if b > c]
    return nxt[0] - 1 if nxt else 19


VPOLL, VPD = 12, 14
sRBQ = 85
sTA = 86
sNW = 69


def tail_scalars(p):
    p('s_lshl_b32 s3, s%d, 1' % sR)
    p('s_add_u32 s3, s3, s%d' % sW)
    p('s_sub_u32 s3, s3, 2')
    p('s_max_i32 s%d, s3, 0' % sRBQ)
    p('s_mul_i32 s%d, s%d, %d' % (sTA, sRBQ, QKV_RB))
    p('s_lshl_b32 s4, s%d, 11' % sC0)
    p('s_add_u32 s%d, s%d, s4' % (sTA, sTA))
    p('s_lshl_b32 s5, s%d, 11' % sODD)
    p('s_add_u32 s%d, s%d, s5' % (sTA + 1, sTA))
    p('s_cmp_eq_u32 s%d, 0' % sODD)
    p('s_cselect_b32 s6, 4096, 8')
    p('s_cselect_b32 s7, 4096, 0')
    p('s_add_u32 s%d, s%d, s6' % (sTA + 2, sTA))
    p('s_lshl_b32 s3, s%d, 1' % sR)
    p('s_lshr_b32 s6, s%d, 1' % sW)
    p('s_add_u32 s3, s3, s6')
    p('s_mul_i32 s3, s3, %d' % QKV_RB)
    p('s_and_b32 s6, s%d, 1' % sW)
    p('s_lshl_b32 s6, s6, 10')
    p('s_add_u32 s3, s3, s6')
    p('s_add_u32 s3, s3, s4')
    p('s_add_u32 s%d, s3, s5' % (sTA + 3))
    p('s_add_u32 s%d, s3, s7' % (sTA + 4))
    p('s_lshl_b32 s%d, s%d, 11' % (sTA + 5, sW))
    p('s_lshl_b32 s%d, s%d, 10' % (sTA + 6, sW))
    p('s_lshl_b32 s3, s%d, 3' % sW)
    p('s_add_u32 s3, s3, s%d' % sN)
    p('s_lshl_b32 s3, s3, 8')
    p('s_add_u32 s84, s3, %d' % FW_OFF)


def tail_vectors(p):
    p('v_and_b32 v20, 3, v0')
    p('s_lshl_b32 s3, s%d, 2' % sRBQ)
    p('v_add_u32 v21, s3, v20')
    p('v_and_b32 v23, 1, v0')
    p('s_lshl_b32 s3, s%d, 3' % sR)
    p('s_lshl_b32 s4, s%d, 1' % sW)
    p('s_add_u32 s3, s3, s4')
    p('v_add_u32 v20, s3, v23')
    p('v_cmp_gt_u32 vcc, 16, v0')
    p('v_lshrrev_b32 v22, 1, v0')
    p('v_and_b32 v22, 2, v22')
    p('v_cndmask_b32 v21, v20, v21, vcc')
    p('v_bfe_u32 v20, v0, 3, 1')
    p('v_mul_u32_u24 v20, 5, v20')
    p('v_add_u32 v20, 5, v20')
    p('v_cndmask_b32 v20, 0, v20, vcc')
    p('v_add_u32 v22, s%d, v22' % sC0)
    p('v_lshrrev_b32 v22, 4, v22')
    p('v_add_u32 v20, v20, v22')
    p('v_lshl_add_u32 v20, v21, 4, v20')
    p('v_lshlrev_b32 v20, 7, v20')
    p('v_add_u32 v20, %d, v20' % F1A_OFF)
    p('v_cmp_gt_u32 vcc, 24, v0')
    p('v_and_b32 v22, 2, v0')
    p('v_lshlrev_b32 v22, 12, v22')
    p('v_lshl_add_u32 v22, v23, 7, v22')
    p('v_add_u32 v22, s84, v22')
    p('v_cndmask_b32 v%d, v22, v20, vcc' % VPOLL)
    p('v_lshrrev_b32 v7, 1, v0')
    p('v_lshlrev_b32 v7, 4, v7')
    p('v_lshl_add_u32 v27, v23, 2, v7')


def ones_fill(p):
    for r in range(4):
        p('v_mov_b32 v%d, 0x3f803f80' % (28 + r))
    p('v_add_u32 v7, s%d, v1' % (sTA + 6))
    p('v_add_u32 v7, %d, v7' % ONES_OFF)
    p('ds_write_b128 v7, v[28:31]')
    p('v_lshlrev_b32 v7, 3, v0')
    p('v_add_u32 v7, %d, v7' % (ONES_OFF + 4096))
    p('ds_write_b64 v7, v[28:29]')


def p1_grp0(p):
    BB = CFG['BB']
    gemm_addr(p, sW)
    rot_scalar(p)
    p('s_waitcnt lgkmcnt(0)')
    srd(p, S_WB, KA_ + 8, WQ_BYTES)

    def warm():
        k = p.newlabel('nowarm')
        p('s_cmp_gt_u32 s%d, 1' % sW)
        p('s_cbranch_scc1 %s' % k)
        p('s_lshl_b32 s3, s2, 1')
        p('s_add_u32 s3, s3, s%d' % sW)
        p('s_mul_i32 s3, s3, 5120')
        p('v_lshlrev_b32 v7, 7, v0')
        p('s_mov_b32 exec_hi, 0xff')
        p('buffer_load_dword v%d, v7, %s, s3 offen' % (X + 156, sr(S_WB)))
        p('s_mov_b32 exec_hi, -1')
        p.label(k)
    if CFG['wbwarm'] == 2:
        warm()
    late_scalars(p)
    nn = p.newlabel('nononce')
    p('s_or_b32 s3, s2, s%d' % sW)
    p('s_cbranch_scc1 %s' % nn)
    p('s_memrealtime s[4:5]')
    p('s_waitcnt lgkmcnt(0)')
    p('s_or_b32 s4, s4, 1')
    p('v_mov_b32 v8, s4')
    p('v_mov_b32 v9, s5')
    p('v_mov_b32 v10, 0')
    p('v_mov_b32 v11, 0')
    p('s_mov_b64 exec, 1')
    p('buffer_atomic_cmpswap_x2 v[8:11], off, %s, 0 sc1' % sr(S_DBG))
    p('s_mov_b64 exec, -1')
    p.label(nn)
    gemm_scalars(p, sW, 0, sFA)
    preflag(p, True)
    tail_scalars(p)
    sWBs, sKW, sLW = T0 + 4, T0 + 5, 68
    p('s_lshl_b32 s%d, s%d, 8' % (sWBs, sCB))
    p('s_mul_i32 s%d, s%d, 2080' % (sLW, sW))
    wp_base(p)
    stamp(p, 1)
    side = {130: ['s_waitcnt vmcnt(0)']}
    if CFG['wbwarm'] > 2:
        side[CFG['wbwarm']] = [warm]
    gemm_stream(p, 0, 160, range(11), lambda c: None, side, (4, 5), True)
    stamp(p, 12)
    prio(p, 2)
    VWB = 10
    d = Dma(p, None, sWBs, None, sLW, None, sKW, None, None, VWB)
    todo = [(c, t) for c in range(CFG['g1last'] + 1, 20) for t in range(4)]
    wq = list(range(CFG['nwa']))
    bq = list(BB[1:])
    ep = epilogue(0, range(8))
    passed = 10
    seen = set()
    nt_ = [0]
    for ch in CFG['sched']:
        if ch == 'S':
            while True:
                x = ep.pop(0)
                p(x)
                if 'buffer_store' in x:
                    d.other('s')
                    break
            if not ep:
                stamp(p, 13)
        elif ch == 'I':
            nonce_issue(p)
            d.other('n')
            if CFG['nwa']:
                p('v_and_b32 v7, 1, v0')
                p('v_lshlrev_b32 v7, 7, v7')
                p('buffer_load_dwordx2 %s, v7, %s, s84 offen sc1' % (v(VPD, 2), WS))
                d.other('n')
                p('v_lshlrev_b32 v11, 4, v0')
            wb_voffset(p, VWB, sW)
        elif ch == 't':
            stamp(p, 44 + nt_[0])
            nt_[0] += 1
        elif ch == 'W':
            c, t = todo.pop(0)
            assert FREE_B[c] <= passed and 'I' in seen, (c, passed)
            d.emit('w', c, t)
        elif ch == 'P':
            assert 'N' in seen
            if wq:
                w_load(p, wq.pop(0), 11)
                d.other()
        elif ch == 'B':
            c = bq.pop(0)
            lim = cert_limit(c)
            assert not (todo and todo[0][0] <= lim), (c, todo[0])
            d.wait_chunks(lim)
            stamp(p, 36 + 2 * BB.index(c))
            p('s_barrier')
            stamp(p, 37 + 2 * BB.index(c))
            passed = c
        elif ch == 'N':
            d.wait(lambda x: x == 'n')
            nonce_check(p)
            if CFG['nwa']:
                p('v_cmp_ne_u64 vcc, %s, %s' % (v(VPD, 2), v(VNON, 2)))
                p('s_or_b32 s%d, vcc_lo, vcc_hi' % sNW)
            else:
                p('s_mov_b32 s%d, 0' % sNW)
            if CFG['force_late']:
                p('s_mov_b32 s%d, 1' % sNW)
            tail_vectors(p)
        elif ch == 'F':
            assert not ep and 'N' in seen
            d.wait(lambda x: x == 's')
            flag_store(p, sFA)
            d.other()
            stamp(p, 16)
        seen.add(ch)
    assert not todo and not wq and not bq and not ep and 'F' in seen and BB[-1] >= 15
    p('v_lshlrev_b32 v1, 4, v0')
    poll_issue(p, VPD, VPOLL)


def kv_tail(p):
    ones_fill(p)
    p('s_waitcnt vmcnt(0)')
    stamp(p, 14)
    poll_check(p, VPD, lambda: poll_issue(p, VPD, VPOLL))
    stamp(p, 15)

    def dma(ldsb, ldsoff, gb, goff, vo=1, w='x4', n=1):
        p('s_add_u32 m0, s%d, %d' % (sTA + ldsb, ldsoff))
        p('s_add_u32 s3, s%d, %d' % (sTA + gb, goff))
        for i in range(n):
            p('buffer_load_dword%s v%d, %s, s3 offen offset:%d sc1 lds' % (w, vo, WS, i * 1024))
    for j in range(2):
        dma(6, QA_OFF + j * 4096, 3, j * 2048)
    dma(6, QA_OFF + 8192, 4, 0)
    for j in range(2):
        dma(5, KA_OFF + j * 8192, 1, (80 + j) * 2048, n=2)
    for i in range(4):
        dma(6, KA_OFF + 16384 + i * 256, 2, 80 * 2048 + i * 512, vo=27, w='')
    for j in range(3):
        dma(5, VA_OFF + j * VA_STR, 0, (160 + j) * 2048, n=2)
    stamp(p, 17)
    redo, back = p.newlabel('redo'), p.newlabel('redone')
    p('s_cmp_lg_u32 s%d, 0' % sNW)
    p('s_cbranch_scc1 %s' % redo)
    p.label(back)

    def rare():
        p.label(redo)
        wp_base(p)
        for f in range(CFG['nwa']):
            w_load(p, f)
        p('s_branch %s' % back)
    cold.append(rare)
    vb_masks(p)
    emit_all(p, p2_setup() + p2_setup2(0))
    p('s_waitcnt vmcnt(0) lgkmcnt(0)')
    stamp(p, 20)


def p1_grp1(p):
    VX, VWA, VWB = 8, 9, 10
    GG, GF, GA, GN = 18, 36, 44, 52
    sXB, sWBs, sLX, sLW, sKX, sKW, sGT, sL = 84, 85, 86, 87, 88, 89, 90, 91
    prio(p, 2)
    p('s_sub_u32 s%d, s%d, 4' % (sL, sW))
    rot_scalar(p)
    p('v_lshrrev_b32 v12, 3, v0')
    p('s_lshl_b32 s6, s%d, 3' % sL)
    p('v_add_u32 v12, s6, v12')
    p('v_mul_u32_u24 v12, 1280, v12')
    p('v_lshrrev_b32 v13, 4, v0')
    p('s_and_b32 s6, s%d, 1' % sL)
    p('s_lshl_b32 s6, s6, 2')
    p('v_add_u32 v7, s6, v13')
    p('v_and_b32 v11, 7, v0')
    p('v_xor_b32 v7, v7, v11')
    p('v_lshl_add_u32 v%d, v7, 4, v12' % VX)
    p('v_and_b32 v12, 32, v0')
    p('v_bfe_u32 v7, v0, 4, 1')
    p('v_lshl_add_u32 v12, v7, 2, v12')
    p('v_add_u32 v12, s%d, v12' % sL)
    p('v_mul_u32_u24 v12, 3840, v12')
    p('v_and_b32 v7, 15, v0')
    p('v_lshl_add_u32 v%d, v7, 4, v12' % VWA)
    p('s_mul_i32 s%d, s%d, %d' % (sXB, sRB, 128 * 1280))
    p('s_lshl_b32 s%d, s%d, 8' % (sWBs, sCB))
    p('s_lshl_b32 s%d, s%d, 10' % (sLX, sL))
    p('s_mul_i32 s%d, s%d, 2080' % (sLW, sL))
    d = Dma(p, sXB, sWBs, sLX, sLW, sKX, sKW, VX, VWA, VWB)
    d.kbase(0)
    p('s_waitcnt lgkmcnt(0)')
    srd(p, S_WA, KA_ + 2, WQ_BYTES)
    srd(p, S_X, KA_, X_BYTES)
    stamp(p, 1)
    d.chunk(0)
    srd(p, S_GW, KA_ + 12, 1280)
    srd(p, S_WB, KA_ + 8, WQ_BYTES)
    p('s_mul_i32 s3, s%d, 320' % sL)
    p('s_add_u32 m0, s3, %d' % GW_OFF)
    p('v_lshlrev_b32 v16, 4, v0')
    p('s_mov_b64 exec, 0xfffff')
    p('buffer_load_dwordx4 v16, %s, s3 offen lds' % sr(S_GW))
    p('s_mov_b64 exec, -1')
    d.other(0)
    d.chunk(1)
    late_scalars(p)
    p('s_mov_b32 s92, s%d' % sFL)
    wb_voffset(p, VWB, sL)
    gemm_addr(p, sL)
    gemm_scalars(p, sL, 1, sFL)
    p('s_xor_b32 s%d, s%d, s%d' % (sGT, sCB, sL))
    p('v_lshlrev_b32 v7, 4, v13')
    p('v_add_u32 v%d, %d, v7' % (GG, GW_OFF))
    todo = list(range(2, CFG['g1last'] + 1))
    for c in range(10):
        d.wait_chunks(c)
        if c:
            p('s_waitcnt lgkmcnt(0)')
        if c % 2 == 0 and c < 8:
            stamp(p, 2 + c // 2)
        p('s_barrier')
        for t, _ in x_reads(c):
            p(t)
        n = 1 if c < 8 else (CFG['n8'] if c == 8 else 9)
        while todo and n > 0:
            assert todo[0] < 10 or FREE_B[todo[0]] <= c
            d.chunk(todo.pop(0))
            n -= 1
        k = p.newlabel('nogate')
        p('s_cmp_lg_u32 s%d, 0' % sGT)
        p('s_cbranch_scc1 %s' % k)
        d.kchunk(c)
        p('s_lshl_b32 s3, s3, 7')
        p('v_add_u32 v%d, s3, v%d' % (GG + 1, GG))
        for st in range(2):
            p('ds_read_b128 %s, v%d offset:%d' % (v(GF + st * 4, 4), GG + 1, st * 64))
        p('s_waitcnt lgkmcnt(0)')
        for st in range(2):
            for t in range(2):
                p('v_mfma_f32_16x16x32_bf16 %s, %s, %s, %s' % (v(GA + t * 4, 4), v(GF + st * 4, 4), v(X + ((2 * c + st) * 2 + t) * 4, 4), '0' if (c == 0 and st == 0) else v(GA + t * 4, 4)))
        p.label(k)
        if c == 5:
            nonce_issue(p, GN)
            d.other('n')
        if c == 8:
            d.wait(lambda x: x == 'n')
            nonce_check(p, GN)
            p('v_readfirstlane_b32 s30, v%d' % GN)
            p('v_readfirstlane_b32 s31, v%d' % (GN + 1))
    p('v_cmp_gt_u32 vcc, 16, v0')
    p('s_lshl_b32 s3, s%d, 2' % sRB)
    p('s_add_u32 s3, s3, s%d' % sL)
    p('s_lshl_b32 s3, s3, 9')
    p('s_add_u32 s3, s3, %d' % G_OFF)
    p('s_mov_b32 s7, %s' % f32(-1.4426950408889634))
    p('v_cndmask_b32 v7, v%d, v%d, vcc' % (GA + 4, GA))
    p('v_mul_f32 v7, s7, v7')
    p('v_exp_f32 v7, v7')
    p('v_mov_b32 v%d, 0' % (GN - 1))
    p('v_add_f32 v7, 1.0, v7')
    p('v_rcp_f32 v%d, v7' % (GN - 2))
    p('s_cmp_eq_u32 s%d, 0' % sGT)
    p('s_cselect_b32 s3, s3, s92')
    p('s_cselect_b32 exec_lo, -1, 0xff')
    p('s_mov_b32 exec_hi, 0')
    p('buffer_store_dwordx4 %s, v16, %s, s3 offen sc1' % (v(GN - 2, 4), WS))
    p('s_mov_b64 exec, -1')
    d.other()
    vb_masks(p)
    p('s_waitcnt lgkmcnt(0)')
    p('v_add_u32 v2, %d, v4' % (8 * WSLOT))
    prio(p, 0)
    side = {}
    L = epilogue(1, range(4))
    f = 242
    while L:
        side[f] = L[:CFG['b1rate']]
        del L[:CFG['b1rate']]
        f += 1
    gemm_stream(p, 160, 320, CFG['BB'], lambda c: d.wait_chunks(cert_limit(c)), side, (4, 5, 2), False)
    stamp(p, 18)
    prio(p, 2)
    fill = p2_setup() + ['v_mov_b32 v%d, s30' % VNON, 'v_mov_b32 v%d, s31' % (VNON + 1)]
    per = (len(fill) - 3) // 3
    for x in epilogue(1, range(4, 8), True):
        p(x)
        if 'buffer_store' in x:
            emit_all(p, fill[:per])
            del fill[:per]
    emit_all(p, fill + p2_setup2(1))
    stamp(p, 19)


def p1_spare(p):
    S_WO = S_X
    p('s_and_b32 s3, s2, 7')
    p('s_lshl_b32 s5, s3, 1')
    p('s_add_u32 s5, s5, s4')
    p('s_sub_u32 s%d, s5, 30' % T0)
    p('s_waitcnt lgkmcnt(0)')
    p('s_cmp_lt_u32 s%d, 8' % T0)
    p('s_cselect_b32 s6, s%d, s%d' % (KA_ + 4, KA_ + 10))
    p('s_cselect_b32 s7, s%d, s%d' % (KA_ + 5, KA_ + 11))
    srd(p, S_WO, 6, WO_BYTES)
    srd(p, S_WB, KA_ + 8, WQ_BYTES)
    late_scalars(p)
    if CFG['cpf'] == 1:
        k = p.newlabel('pc')
        p('s_getpc_b64 s[4:5]')
        p.label(k)
        p('s_sub_u32 s4, s4, %s-%s_kernel' % (k, NAME))
        p('s_subb_u32 s5, s5, 0')
        p('s_and_b32 s3, s%d, 1' % T0)
        p('s_lshl_b32 s3, s3, 3')
        p('s_add_u32 s3, s3, s%d' % sW)
        p('v_lshl_add_u32 v4, v0, 4, s3')
        p('v_lshlrev_b32 v4, 7, v4')
        p('v_min_u32 v4, .Lhot_end-%s_kernel, v4' % NAME)
        p('s_mov_b32 exec_hi, 0')
        p('global_load_dword v35, v4, s[4:5]')
        p('s_mov_b32 exec_hi, -1')
    if CFG['wbwarm'] == 1:
        p('v_lshlrev_b32 v4, 7, v0')
        p('s_lshl_b32 s3, s%d, 3' % T0)
        p('s_add_u32 s3, s3, s%d' % sW)
        p('s_mul_i32 s6, s3, 19200')
        p('s_mov_b32 exec_hi, 0x3ffff')
        for i in range(3):
            p('s_add_u32 s7, s6, %d' % (i * 6400))
            p('buffer_load_dword v%d, v4, %s, s7 offen' % (32 + i, sr(S_WB)))
        p('s_mov_b32 exec_hi, -1')
    for i in range(5):
        p('v_add_u32 v7, %d, v0' % (64 * i))
        p('v_mul_u32_u24 v8, 1639, v7')
        p('v_lshrrev_b32 v8, 16, v8')
        p('v_mul_u32_u24 v8, 640, v8')
        p('v_lshl_add_u32 v%d, v7, 4, v8' % (16 + i))
    p('s_bfe_u32 s3, s%d, 0x20001' % T0)
    p('s_mul_i32 s3, s3, 160')
    p('s_mul_i32 s4, s%d, 20' % sW)
    p('s_add_u32 s3, s3, s4')
    p('s_mul_i32 s3, s3, 1280')
    p('s_and_b32 s4, s%d, 1' % T0)
    p('s_mul_i32 s4, s4, 640')
    p('s_add_u32 s5, s3, s4')
    p('s_mul_i32 s6, s%d, 12800' % sW)
    for i in range(13):
        p('s_add_u32 m0, s6, %d' % (i * 1024))
        p('s_add_u32 s3, s5, %d' % ((i // 5) * 8 * 1280))
        if i == 12:
            p('s_mov_b32 exec_hi, 0')
        p('buffer_load_dwordx4 v%d, %s, s3 offen %s lds' % (16 + i % 5, sr(S_WO), CFG['nto']))
        if i == 12:
            p('s_mov_b32 exec_hi, -1')
    nonce_issue(p)
    p('s_lshr_b32 s4, s%d, 1' % sW)
    p('s_mul_i32 s4, s4, 160')
    p('v_bfe_u32 v7, v0, 2, 3')
    p('v_lshrrev_b32 v8, 5, v0')
    p('v_mul_u32_u24 v8, 20, v8')
    p('v_add_u32 v8, v8, v7')
    p('v_mul_u32_u24 v8, 640, v8')
    p('v_and_b32 v9, 3, v0')
    p('v_lshl_add_u32 v9, v9, 3, s4')
    p('v_add_u32 v22, v8, v9')
    p('v_add_u32 v23, %d, v22' % (80 * 640))
    p('v_lshrrev_b32 v8, 4, v0')
    p('v_mul_u32_u24 v8, 20, v8')
    p('v_and_b32 v7, 3, v7')
    p('v_add3_u32 v8, v8, v7, 16')
    p('v_mul_u32_u24 v8, 640, v8')
    p('v_add_u32 v24, v8, v9')
    p('v_lshlrev_b32 v1, 4, v0')
    p('s_lshl_b32 s3, s%d, 2' % T0)
    p('s_lshr_b32 s4, s%d, 1' % sW)
    p('s_add_u32 s3, s3, s4')
    p('s_mul_i32 s5, s3, 25600')
    p('s_add_u32 s5, s5, %d' % WP_OFF)
    p('s_lshl_b32 s3, s%d, 3' % T0)
    p('s_add_u32 s3, s3, s%d' % sW)
    p('s_lshl_b32 s3, s3, 7')
    p('s_add_u32 s%d, s3, %d' % (T0 + 1, FW_OFF))
    p('s_waitcnt vmcnt(0)')
    stamp(p, 2)
    nonce_check(p)
    p('s_barrier')
    odd, done = p.newlabel('odd'), p.newlabel('packed')
    p('s_bitcmp1_b32 s%d, 0' % sW)
    p('s_cbranch_scc1 %s' % odd)
    for half, fr in ((0, range(0, 13)), (1, range(13, 25))):
        if half:
            p.label(odd)
        for n, f in enumerate(fr):
            st, u = f // 5, f % 5
            for j in range(2):
                d = v(32 + n * 4 + j * 2, 2)
                if st < 4:
                    p('ds_read_b64_tr_b16 %s, v%d offset:%d' % (d, 22 + st // 2, (st % 2) * 40 * 640 + j * 8 * 640 + u * 32))
                else:
                    p('ds_read_b64_tr_b16 %s, v24 offset:%d' % (d, j * 80 * 640 + u * 32))
            if n % 4 == 3:
                p('s_waitcnt lgkmcnt(4)')
        p('s_waitcnt lgkmcnt(0)')
        for n, f in enumerate(fr):
            p('s_add_u32 s3, s5, %d' % (f * 1024))
            p('buffer_store_dwordx4 %s, v1, %s, s3 offen sc1' % (v(32 + n * 4, 4), WS))
        if not half:
            p('s_branch %s' % done)
    p.label(done)
    p('s_waitcnt vmcnt(0)')
    flag_store(p, T0 + 1)
    p('s_barrier')
    stamp(p, 3)


VL16, VM, VHH = 1, 4, 5
AK1, AK2, AV, BV, VGO = 8, 9, 10, 11, 13
QB2, VG, Q1, Q2 = 18, 20, 24, 28
AQ1, AQ2 = 16, 17
MSK, KF, VF, PP, O, S, QB1 = 32, 40, 56, 72, 88, 104, 152
WF3 = 156


def p2_setup():
    return [
        'v_and_b32 v%d, 31, v0' % VM,
        'v_lshrrev_b32 v%d, 5, v0' % VHH,
        's_lshl_b32 s4, s%d, 5' % sW,
        'v_add_u32 v7, s4, v%d' % VM,
        'v_lshlrev_b32 v15, 13, v%d' % VHH,
        'v_lshl_add_u32 v15, v7, 4, v15',
        'v_add_u32 v%d, %d, v15' % (AK1, KA_OFF),
        'v_lshlrev_b32 v15, 3, v7',
        'v_add_u32 v%d, %d, v15' % (AK2, KA_OFF + 16384),
        'v_lshlrev_b32 v15, 12, v%d' % VHH,
        'v_lshl_add_u32 v15, v7, 4, v15',
        'v_add_u32 v%d, %d, v15' % (AQ1, QA_OFF),
        's_lshl_b32 s4, s%d, 3' % sODD,
        's_add_u32 s4, s4, %d' % (QA_OFF + 8192),
        'v_lshl_add_u32 v%d, v7, 4, s4' % AQ2,
        'v_mov_b32 v%d, 0' % Q2,
        'v_mov_b32 v%d, 0' % (Q2 + 1),
        'v_bfe_u32 v20, v0, 4, 1',
        'v_and_b32 v21, 3, v0',
        'v_lshl_add_u32 v20, v20, 2, v21',
        'v_add_u32 v21, s%d, v20' % sODD,
        'v_bfe_u32 v22, v0, 2, 2',
        'v_lshl_add_u32 v22, v%d, 2, v22' % VHH,
        'v_lshlrev_b32 v22, 4, v22',
        'v_and_b32 v23, 1, v21',
        'v_lshl_add_u32 v23, v23, 3, v22',
        'v_lshrrev_b32 v21, 1, v21',
        'v_cmp_lt_u32 vcc, 4, v20',
        's_lshl_b32 s4, s%d, 9' % sW,
        's_add_u32 s4, s4, %d' % VA_OFF,
        'v_mul_u32_u24 v7, %d, v21' % VA_STR,
        'v_add3_u32 v7, v7, v23, s4',
        'v_add_u32 v15, %d, v22' % ONES_OFF,
        'v_cndmask_b32 v%d, v7, v15, vcc' % AV,
        's_mul_i32 s4, s%d, %d' % (sW, VB_WAVE),
        'v_mul_u32_u24 v7, %d, v21' % VB_STR,
        'v_add3_u32 v7, v7, v23, s4',
        'v_cndmask_b32 v%d, v7, v15, vcc' % BV,
        'v_lshlrev_b32 v%d, 4, v0' % VL16,
    ]


def kread(t, st, kf=KF):
    return ['ds_read_b128 %s, v%d offset:%d' % (v(kf + st * 8, 4), AK1, t * 512),
            'ds_read_b64 %s, v%d offset:%d' % (v(kf + st * 8 + 4, 2), AK2, t * 256)]


def smf(dst, st, kf=KF, q1=Q1, q2=Q2):
    d = v(dst, 16)
    return ['v_mfma_f32_32x32x16_bf16 %s, %s, %s, 0' % (d, v(kf + st * 8, 4), v(q1, 4)),
            'v_mfma_f32_32x32x8_bf16 %s, %s, %s, %s' % (d, v(kf + st * 8 + 4, 2), v(q2, 2), d)]


def vread(av, t, st):
    return ['ds_read_b64_tr_b16 %s, v%d offset:%d' % (v(VF + st * 8 + m2 * 4 + j * 2, 2), av, t * 512 + m2 * 256 + j * 128) for m2 in range(2) for j in range(2)]


def pvm(st, pp, first=False):
    return ['v_mfma_f32_32x32x16_bf16 %s, %s, %s, %s' % (v(O, 16), v(VF + st * 8 + m2 * 4, 4), v(pp + m2 * 4, 4), '0' if (first and m2 == 0) else v(O, 16)) for m2 in range(2)]


def exps(t):
    return ['v_exp_f32 v%d, v%d' % (t + r, t + r) for r in range(16)]


def cvts(t, dst):
    return ['v_cvt_pk_bf16_f32 v%d, v%d, v%d' % (dst + i, t + 2 * i, t + 2 * i + 1) for i in range(8)]


def finish(p, br):
    p('v_rcp_f32 v7, v%d' % (O + 12))
    if br == 1:
        p('v_sub_f32 v%d, 1.0, v%d' % (VG, VG))
        p('s_add_u32 s30, s30, %d' % O_BR)
        p('s_add_u32 s31, s31, %d' % F2_BR)
    p('v_mul_f32 v16, v7, v%d' % VG)
    for r in range(0, 8):
        p('v_mul_f32 v%d, v16, v%d' % (O + r, O + r))
    for i in range(4):
        p('v_cvt_pk_bf16_f32 v%d, v%d, v%d' % (PP + i, O + 2 * i, O + 2 * i + 1))
    p('buffer_store_dwordx4 %s, v%d, %s, s30 offen sc1' % (v(PP, 4), VL16, WS))
    for r in range(8, 12):
        p('v_mul_f32 v%d, v16, v%d' % (O + r, O + r))
    p('v_lshlrev_b32 v7, 3, v0')
    for i in range(4, 6):
        p('v_cvt_pk_bf16_f32 v%d, v%d, v%d' % (PP + i, O + 2 * i, O + 2 * i + 1))
    p('s_mov_b32 exec_hi, 0')
    p('buffer_store_dwordx2 %s, v7, %s, s30 offen offset:1024 sc1' % (v(PP + 4, 2), WS))
    p('s_mov_b32 exec_hi, -1')


def half_max(p, M):
    p('v_mov_b32 v%d, v%d' % (M + 1, M))
    p('v_permlane32_swap_b32 v%d, v%d' % (M, M + 1))
    p('v_max_f32 v%d, v%d, v%d' % (M, M, M + 1))


def subm(t, M):
    return ['v_sub_f32 v%d, v%d, v%d' % (t + i, t + i, M) for i in range(16)]


sFV = 26


def safe_path(p, back):
    S0, S1, K2 = S, S + 16, KF
    M = 16
    p('v_mov_b32 v7, %s' % NEG_INF)
    emit_all(p, kread(0, 0, K2) + kread(8, 1, K2) + ['s_waitcnt lgkmcnt(0)'] + smf(S0, 0, K2) + smf(S1, 1, K2))
    k = p.newlabel('hasold')
    p('s_cmp_lg_u32 s%d, 0' % sR)
    p('s_cbranch_scc1 %s' % k)
    for r in range(16):
        p('v_mov_b32 v%d, v7' % (S0 + r))
    p.label(k)
    for r in range(16):
        p('v_cndmask_b32 v%d, v%d, v%d, %s' % (S1 + r, S0 + r, S1 + r, mask(r)))
    p('v_max_f32 v%d, v%d, v%d' % (M, S1, S1 + 1))
    for r in range(2, 16, 2):
        p('v_max3_f32 v%d, v%d, v%d, v%d' % (M, M, S1 + r, S1 + r + 1))
    for t in range(1, 8):
        k = p.newlabel('skip')
        p('s_cmp_gt_u32 s%d, %d' % (sFV, t))
        p('s_cbranch_scc1 %s' % k)
        emit_all(p, kread(t, 0, K2) + ['s_waitcnt lgkmcnt(0)'] + smf(S0, 0, K2))
        for r in range(0, 16, 2):
            p('v_max3_f32 v%d, v%d, v%d, v%d' % (M, M, S0 + r, S0 + r + 1))
        p.label(k)
    half_max(p, M)
    emit_all(p, vread(AV, 8, 0) + vread(AV, 0, 1) + subm(S1, M) + exps(S1) + cvts(S1, PP + 8))
    for i in range(8):
        p('v_and_b32 v%d, v%d, v%d' % (PP + i, PP + 8 + i, MSK + i))
    for i in range(8):
        p('v_xor_b32 v%d, v%d, v%d' % (PP + 8 + i, PP + 8 + i, PP + i))
    emit_all(p, ['s_waitcnt lgkmcnt(0)'] + pvm(0, PP, True) + pvm(1, PP + 8))
    for t in range(1, 8):
        k = p.newlabel('skip')
        p('s_cmp_gt_u32 s%d, %d' % (sFV, t))
        p('s_cbranch_scc1 %s' % k)
        emit_all(p, kread(t, 0, K2) + vread(AV, t, 0) + ['s_waitcnt lgkmcnt(0)'] + smf(S0, 0, K2) + subm(S0, M) + exps(S0) + cvts(S0, PP) + pvm(0, PP))
        p.label(k)
    p('s_branch %s' % back)


def zero_if(p, cmp_text, regs):
    k, L = p.newlabel('valid'), p.newlabel('zero')
    p(cmp_text)
    p('s_cbranch_scc1 %s' % L)
    p.label(k)

    def rare():
        p.label(L)
        for r in regs:
            p('v_mov_b32 v%d, 0' % r)
        p('s_branch %s' % k)
    cold.append(rare)


sWP = sCB


def wp_base(p):
    p('s_lshl_b32 s3, s%d, 3' % sW)
    p('s_add_u32 s3, s3, s%d' % sN)
    p('s_mul_i32 s3, s3, 25600')
    p('s_add_u32 s%d, s3, %d' % (sWP, WP_OFF))


def w_load(p, f, va=None):
    if f % 4 == 0 and f:
        p('s_add_u32 s%d, s%d, 4096' % (sWP, sWP))
    p('buffer_load_dwordx4 %s, v%d, %s, s%d offen offset:%d sc1' % (v(WF3 + f * 4, 4), va or VL16, WS, sWP, (f % 4) * 1024))


sQB, sKP, sLATE = 28, 29, sROT
VBF, VBH, VBV = 30, 31, 46
KB = S + 32
warm = []


def p2_setup2(grp):
    L = ['v_mov_b32 v7, 0xffff']
    L += ['v_cndmask_b32 v%d, 0, v7, %s' % (MSK + i, mask(2 * i)) for i in range(8)]
    L += ['v_cndmask_b32 v%d, v%d, -1, %s' % (MSK + i, MSK + i, mask(2 * i + 1)) for i in range(8)]
    L += [
        's_sub_u32 s%d, 8, s%d' % (sFV, sW),
        's_cmp_eq_u32 s%d, 0' % sR,
        's_cselect_b32 s%d, s%d, 0' % (sFV, sFV),
        's_lshr_b32 s3, s%d, 2' % sRB32,
        's_mul_i32 s3, s3, %d' % QKV_RB,
        's_and_b32 s4, s%d, 3' % sRB32,
        's_lshl_b32 s4, s4, 9',
        's_add_u32 s3, s3, s4',
        's_lshl_b32 s5, s%d, 11' % sC0,
        's_add_u32 s5, s5, %d' % QKV_BR,
        's_add_u32 s%d, s3, s5' % sQB,
        's_sub_u32 s3, s%d, 1' % sRB32,
        'v_and_b32 v20, 1, v0',
        'v_add_u32 v21, s3, v20',
        'v_max_i32 v21, 0, v21',
        's_max_i32 s4, s3, 0',
        's_lshr_b32 s3, s4, 2',
        's_mul_i32 s3, s3, %d' % QKV_RB,
        's_and_b32 s4, s4, 3',
        's_lshl_b32 s4, s4, 9',
        's_add_u32 s3, s3, s4',
        's_add_u32 s%d, s3, s5' % sKP,
        's_lshl_b32 s3, s%d, 5' % sRB32,
        's_add_u32 s3, s3, s%d' % sH,
        's_mul_i32 s4, s3, 1280',
        's_add_u32 s30, s4, %d' % O_OFF,
        's_lshl_b32 s4, s3, 7',
        's_add_u32 s31, s4, %d' % F2_OFF,
        's_lshl_b32 s3, s%d, 9' % sRB32,
        's_add_u32 s%d, s3, %d' % (sRB, G_OFF),
        's_mov_b32 s%d, 1' % sLATE,
        'v_lshrrev_b32 v23, 2, v0',
        'v_min_u32 v23, 2, v23',
        'v_cmp_eq_u32 vcc, 0, v23',
        'v_mul_u32_u24 v22, 5, v23',
        'v_mov_b32 v23, s%d' % sRB32,
        'v_and_b32 v20, 2, v0',
        'v_cndmask_b32 v21, v21, v23, vcc',
        'v_add_u32 v20, s%d, v20' % sC0,
        'v_lshrrev_b32 v20, 4, v20',
        'v_add_u32 v20, v20, v22',
        'v_lshl_add_u32 v20, v21, 4, v20',
        'v_lshlrev_b32 v20, 7, v20',
        'v_add_u32 v%d, %d, v20' % (VPOLL, F1B_OFF),
        'v_lshlrev_b32 v%d, 4, v%d' % (VGO, VM),
        'v_mov_b32 v%d, 0' % QB2,
        'v_mov_b32 v%d, 0' % (QB2 + 1),
        'v_add_u32 v7, s%d, v%d' % (sODD, VHH),
        'v_lshl_add_u32 v%d, v7, 11, v%d' % (VBF, VGO),
        's_cmp_eq_u32 s%d, 0' % sODD,
        's_cselect_b32 s4, 4096, 8',
        'v_add_u32 v%d, s4, v%d' % (VBH, VGO),
        's_sub_u32 s4, s%d, s%d' % (sQB, sKP),
        'v_mul_lo_u32 v7, s4, v%d' % VHH,
        'v_add_u32 v%d, v7, v%d' % (VBV, VGO),
    ]
    return L


def weave(valu, mf, after):
    cost = [8 if x.startswith('v_exp') else 4 for x in valu]
    tot = sum(cost)
    out, acc, k = [], 0, 0
    for x, c in zip(valu, cost):
        while k < len(mf) and acc >= k * mf[k][1]:
            out.append(mf[k][0])
            out += after.get(k, [])
            k += 1
        out.append(x)
        acc += c
    assert k == len(mf)
    return out


def phase2(p, grp):
    SA, SB, SC = S, S + 16, S + 32
    safe, back = p.newlabel('safe'), p.newlabel('back')
    cold.append(lambda: (p.label(safe), safe_path(p, back)))
    if grp == 1:
        wp_base(p)
        if CFG['flagblk'] < 0:
            p('s_waitcnt vmcnt(0)')
            flag_store(p, sFL)
            stamp(p, 23)
    p('s_barrier')
    stamp(p, 21)
    prio(p, 3)
    p('ds_read_b128 %s, v%d' % (v(Q1, 4), AQ1))
    p(kread(1, 0)[0])
    p('s_mov_b32 exec_hi, 0')
    p('ds_read_b64 %s, v%d' % (v(Q2, 2), AQ2))
    p('s_mov_b32 exec_hi, -1')
    emit_all(p, kread(1, 0)[1:] + kread(0, 1) + kread(8, 0, O))
    nvm = [0]
    sincepoll = [0]
    wq = list(range(0 if grp else CFG['nwa'], 25))
    wplan = list(CFG['wb'] if grp else CFG['wa'])

    def wl():
        if wq:
            w_load(p, wq.pop(0))
            nvm[0] += 1
            sincepoll[0] += 1

    def b_loads():
        p('s_add_u32 s5, s%d, %d' % (sQB, 80 * 2048))
        p('s_add_u32 s6, s%d, %d' % (sKP, 80 * 2048))
        p('buffer_load_dwordx4 %s, v%d, %s, s%d offen sc1' % (v(QB1, 4), VBF, WS, sQB))
        p('s_mov_b32 exec_hi, 0')
        p('buffer_load_dwordx2 %s, v%d, %s, s%d offen sc1' % (v(QB2, 2), VBH, WS, sQB))
        p('s_mov_b32 exec_hi, -1')
        for st, so in ((0, 6), (1, 5)):
            p('buffer_load_dwordx4 %s, v%d, %s, s%d offen sc1' % (v(KB + st * 8, 4), VBF, WS, so))
            p('buffer_load_dwordx2 %s, v%d, %s, s%d offen sc1' % (v(KB + st * 8 + 4, 2), VBH, WS, so))
        p('s_mul_i32 s4, s%d, %d' % (sW, VB_WAVE))
        for j in range(3):
            p('s_add_u32 m0, s4, %d' % (j * VB_STR))
            p('s_add_u32 s3, s%d, %d' % (sKP, (160 + j) * 2048))
            p('buffer_load_dwordx4 v%d, %s, s3 offen sc1 lds' % (VBV, WS))

    def chance(last, first=False):
        L, j = p.newlabel('chance'), p.newlabel('chback')
        n = sincepoll[0]
        sincepoll[0] = 0
        if first:
            p('s_waitcnt vmcnt(%d)' % n)
            p('v_cmp_ne_u64 vcc, %s, %s' % (v(VPD, 2), v(VNON, 2)))
            p(('s_branch %s' if CFG['force_late'] else 's_cbranch_vccnz %s') % L)
            p('s_mov_b32 s%d, 0' % sLATE)
            b_loads()
            stamp(p, 24)
            p.label(j)
            warm.append(lambda: (p.label(L), None if last else poll_issue(p, VPD, VPOLL), p('s_branch %s' % j)))
            return
        p('s_cmp_lg_u32 s%d, 0' % sLATE)
        p('s_cbranch_scc1 %s' % L)
        p.label(j)

        def f():
            no = p.newlabel('notyet')
            p.label(L)
            p('s_waitcnt vmcnt(%d)' % n)
            p('v_cmp_ne_u64 vcc, %s, %s' % (v(VPD, 2), v(VNON, 2)))
            if CFG['force_late']:
                p('s_branch %s' % no)
            else:
                p('s_cbranch_vccnz %s' % no)
            p('s_mov_b32 s%d, 0' % sLATE)
            b_loads()
            stamp(p, 24)
            p('s_branch %s' % j)
            p.label(no)
            if not last:
                poll_issue(p, VPD, VPOLL)
            p('s_branch %s' % j)
        warm.append(f)

    gload = lambda: p('buffer_load_dwordx4 %s, v%d, %s, s%d offen sc1' % (v(VG, 4), VGO, WS, sRB))
    a = smf(SA, 0)
    p('s_waitcnt lgkmcnt(6)')
    p(a[0])
    p('s_waitcnt lgkmcnt(4)')
    p(a[1])
    sb = lambda t: SA if t % 2 == 0 else SB
    CH = CFG['CH']
    for bi, t in enumerate([1, 0, 2, 3, 4, 5, 6, 7]):
        if bi in CFG['pr']:
            prio(p, CFG['pr'][bi])
        nw = wplan.pop(0) if wplan else 0
        if t == 1:
            e, c = exps(SA), cvts(SA, PP + 8)
            so, sd = smf(SB, 1), smf(SC, 0, O)
            emit_all(p, kread(2, 0) + vread(AV, 1, 1) + ['s_waitcnt lgkmcnt(6)', so[0], so[1]] + vread(AV, 8, 0))
            valu = e[0:8] + c[0:2] + e[8:12] + c[2:4] + e[12:16] + c[4:8]
            mf, after = [(sd[0], 0), (sd[1], 32)], {}
        elif t == 0:
            e, c = exps(SC), cvts(SC, PP + 8)
            mg = ['v_cndmask_b32 v%d, v%d, v%d, %s' % (SC + r, SB + r, SC + r, mask(r)) for r in range(16)]
            an = ['v_and_b32 v%d, v%d, v%d' % (PP + i, PP + 8 + i, MSK + i) for i in range(8)]
            xo = ['v_xor_b32 v%d, v%d, v%d' % (PP + 8 + i, PP + 8 + i, PP + i) for i in range(8)]
            valu = mg + e + c + an + xo
            pv, sn = pvm(1, PP + 8, True), smf(SA, 0)
            mf = [(pv[0], 0), (pv[1], 40), (sn[0], 48), (sn[1], 52)]
            after = {0: kread(3, 1), 1: vread(AV, 0, 1)}
            p('s_waitcnt lgkmcnt(0)')
        else:
            cur = sb(t)
            e, c = exps(cur), cvts(cur, PP + 8 * (t & 1))
            sn = smf(sb(t + 1), (t + 1) & 1) if t < 7 else []
            kr = kread(t + 2, t & 1) if t < 6 else []
            vr = vread(AV, t, t & 1)
            if t == 2:
                pd, po = pvm(0, PP), pvm(1, PP + 8)
                valu = e + c
                mf = [(pd[0], 0), (pd[1], 24), (sn[0], 24), (sn[1], 24), (po[0], 24), (po[1], 25)]
                after = {0: kr, 1: vr}
            else:
                pv = pvm((t - 1) & 1, PP + 8 * ((t - 1) & 1))
                valu = e[0:8] + c[0:2] + e[8:12] + c[2:4] + e[12:16] + c[4:8]
                if t < 7:
                    mf = [(sn[0], 0), (pv[0], 32), (sn[1], 36), (pv[1], 37)]
                    after = {0: kr + vr}
                else:
                    mf = [(pv[0], 0), (pv[1], 32)]
                    after = {0: vr}
            p('s_waitcnt lgkmcnt(0)')
        L = weave(valu, mf, after)
        if nw:
            step = len(L) // nw
            L2 = []
            for i, x in enumerate(L):
                L2.append(x)
                if i % step == step - 1 and nw > 0:
                    L2.append(wl)
                    nw -= 1
            L = L2
        emit_all(p, L)
        if t == 0:
            zero_if(p, 's_cmp_eq_u32 s%d, 0' % sR, range(PP + 8, PP + 16))
            stamp(p, 22)
        else:
            zero_if(p, 's_cmp_gt_u32 s%d, %d' % (sFV, t), range(PP + 8 * (t & 1), PP + 8 * (t & 1) + 8))
        if bi == CFG['flagblk'] and grp == 1:
            assert bi < CH[0]
            p('s_waitcnt vmcnt(%d)' % nvm[0])
            flag_store(p, sFL)
            stamp(p, 23)
        if bi == CH[0] - 1:
            gload()
            poll_issue(p, VPD, VPOLL)
            sincepoll[0] = 0
        if bi in CH and bi < 7:
            assert bi >= 1
            chance(bi == CH[-1], bi == CH[0])
    p('s_waitcnt lgkmcnt(0)')
    emit_all(p, pvm(1, PP + 8))
    if 7 in CH:
        chance(True, CH[0] == 7)
    poll_check(p, VG + 2, gload)
    p('v_fma_f32 v7, v%d, v%d, v%d' % (O + 12, O + 12, O))
    p('v_fma_f32 v16, v%d, v%d, v%d' % (O + 1, O + 2, O + 3))
    p('v_cmp_lt_f32 vcc, %s, v%d' % (f32(2.0 ** -60), O + 12))
    p('v_fma_f32 v7, v%d, v%d, v7' % (O + 4, O + 5))
    p('v_fma_f32 v16, v%d, v%d, v16' % (O + 6, O + 7))
    p('v_fma_f32 v7, v%d, v%d, v7' % (O + 8, O + 9))
    p('v_fma_f32 v16, v%d, v%d, v16' % (O + 10, O + 11))
    p('s_mov_b32 s3, 0x7f800000')
    p('v_add_f32 v7, v7, v16')
    p('v_cmp_gt_f32 s[4:5], s3, abs(v7)')
    p('s_and_b64 s[4:5], s[4:5], vcc')
    p('s_cmp_eq_u64 s[4:5], -1')
    if CFG['force_safe']:
        p('s_branch %s' % safe)
    else:
        p('s_cbranch_scc0 %s' % safe)
    p.label(back)
    finish(p, 0)
    stamp(p, 25)
    late, lateb = p.newlabel('late'), p.newlabel('lateb')
    p('s_cmp_lg_u32 s%d, 0' % sLATE)
    p('s_cbranch_scc1 %s' % late)
    p.label(lateb)

    def late_path():
        p.label(late)
        poll_issue(p, VPD, VPOLL)
        p('s_waitcnt vmcnt(0)')
        flag_store(p, 31)
        poll_check(p, VPD, lambda: poll_issue(p, VPD, VPOLL))
        b_loads()
        p('s_waitcnt vmcnt(0)')
        p('s_branch %s' % lateb)
    warm.append(late_path)
    prio(p, 0)
    p('s_waitcnt vmcnt(2)')
    stamp(p, 26)
    M = 16
    S0, S1 = SA, SB
    a, b = smf(S0, 0, KB, QB1, QB2), smf(S1, 1, KB, QB1, QB2)
    po = p3_setup()
    emit_all(p, [a[0]] + vread(BV, 0, 1) + [a[1]] + vread(BV, 1, 0) + [b[0]] + po[:8] + [b[1]] + po[8:] + ['v_mov_b32 v7, %s' % NEG_INF])
    for r in range(16):
        p('v_cndmask_b32 v%d, v%d, v%d, %s' % (S1 + r, S0 + r, S1 + r, mask(r)))
    for r in range(16):
        p('v_cndmask_b32 v%d, v7, v%d, %s' % (S1 + r, S1 + r, vbm(r)))
    p('v_max_f32 v%d, v%d, v%d' % (M, S1, S1 + 1))
    p('v_max_f32 v%d, v%d, v%d' % (M + 1, S1 + 2, S1 + 3))
    for r in range(4, 16, 2):
        p('v_max3_f32 v%d, v%d, v%d, v%d' % (M + (r // 2) % 2, M + (r // 2) % 2, S1 + r, S1 + r + 1))
    p('v_max_f32 v%d, v%d, v%d' % (M, M, M + 1))
    half_max(p, M)

    def flagA():
        p('s_waitcnt vmcnt(0)')
        flag_store(p, 31)
        stamp(p, 27)
    emit_all(p, subm(S1, M))
    if CFG['f2a'] == 0:
        flagA()
    emit_all(p, exps(S1) + cvts(S1, PP + 8))
    for i in range(8):
        p('v_and_b32 v%d, v%d, v%d' % (PP + i, PP + 8 + i, MSK + i))
    p('s_waitcnt lgkmcnt(0)')
    pd = pvm(0, PP, True)
    p(pd[0])
    for i in range(8):
        p('v_xor_b32 v%d, v%d, v%d' % (PP + 8 + i, PP + 8 + i, PP + i))
    emit_all(p, [pd[1]] + pvm(1, PP + 8))
    if CFG['f2a'] == 1:
        flagA()
    if CFG['f2a'] == 2:
        p('s_mov_b32 s%d, s31' % sLATE)
    finish(p, 1)
    stamp(p, 28)
    if CFG['f2a'] == 2:
        p('s_waitcnt vmcnt(2)')
        flag_store(p, sLATE)
        stamp(p, 27)
    x = 1 if CFG['f2a'] == 2 else 0
    if not wq:
        poll_issue(p, VPD, VPOLL)
        p('s_waitcnt vmcnt(%d)' % (1 + x))
        flag_store(p, 31)
        stamp(p, 29)
        if grp == 1:
            p('s_barrier')
        pend3[0] = 1
    else:
        n = min(len(wq), CFG['nwb2'])
        for _ in range(n):
            w_load(p, wq.pop(0))
        p('s_waitcnt vmcnt(%d)' % (n + x))
        flag_store(p, 31)
        stamp(p, 29)
        if grp == 1:
            p('s_barrier')
        while wq:
            w_load(p, wq.pop(0))
        poll_issue(p, VPD, VPOLL)
        pend3[0] = 0


pend3 = [0]
VO1, VO2, VPW = 8, 9, 10
OF, ACC3 = 32, 112


def p3_setup():
    return [
        'v_and_b32 v15, 15, v0',
        'v_mul_u32_u24 v16, 1280, v%d' % VHH,
        'v_bfe_u32 v17, v0, 4, 1',
        'v_lshl_add_u32 v16, v17, 9, v16',
        'v_lshl_add_u32 v%d, v15, 4, v16' % VO1,
        'v_lshrrev_b32 v16, 4, v0',
        'v_mul_u32_u24 v16, 1280, v16',
        'v_lshl_add_u32 v%d, v15, 3, v16' % VO2,
        'v_mul_u32_u24 v15, 160, v15',
        'v_mul_u32_u24 v17, 10240, v17',
        'v_lshl_add_u32 v15, v%d, 4, v15' % VHH,
        's_mul_i32 s3, s%d, 20480' % sW,
        'v_add3_u32 v%d, v15, v17, s3' % VPW,
        's_lshr_b32 s4, s%d, 2' % sW,
        's_and_b32 s5, s%d, 3' % sW,
        's_lshl_b32 s3, s%d, 3' % sM,
        's_add_u32 s3, s3, s5',
        's_mul_i32 s6, s3, %d' % (8 * 1280),
        's_mul_i32 s7, s4, %d' % O_BR,
        's_add_u32 s6, s6, s7',
        's_add_u32 s27, s6, %d' % O_OFF,
        's_lshl_b32 s3, s3, 10',
        's_mul_i32 s7, s4, %d' % F2_BR,
        's_add_u32 s3, s3, s7',
        's_add_u32 s3, s3, %d' % F2_OFF,
        'v_and_b32 v16, 7, v0',
        'v_lshl_add_u32 v16, v16, 7, s3',
        'v_bfe_u32 v17, v0, 3, 1',
        'v_lshl_add_u32 v%d, v17, 12, v16' % VPOLL,
    ]


def phase3(p, grp):
    def tile_scalars(j):
        if CFG['orot']:
            p('s_add_u32 s3, s%d, %d' % (sN, j))
            p('s_and_b32 s3, s3, 3')
        else:
            p('s_mov_b32 s3, %d' % j)
        p('s_mul_i32 s%d, s3, 2560' % (68 + j))
        p('s_lshr_b32 s4, s3, 1')
        p('s_mul_i32 s4, s4, 40960')
        p('s_add_u32 s4, s4, s27')
        p('s_and_b32 s3, s3, 1')
        p('s_lshl_b32 s3, s3, 7')
        b = 72 + j * 4
        p('s_add_u32 s%d, s4, s3' % (b + 2))
        p('s_add_u32 s%d, s%d, 5120' % (b + 3, b + 2))
        p('s_add_u32 s%d, s%d, s3' % (b, b + 2))
        p('s_add_u32 s%d, s%d, 5120' % (b + 1, b))

    def loads(tt):
        b = 72 + tt * 4
        L = ['buffer_load_dwordx4 %s, v%d, %s, s%d offen offset:%d sc1' % (v(OF + (tt * 5 + st) * 4, 4), VO1, WS, b + st // 2, (st % 2) * 2560) for st in range(4)]
        L += ['buffer_load_dwordx2 %s, v%d, %s, s%d offen offset:1024 sc1' % (v(OF + (tt * 5 + 4) * 4 + j * 2, 2), VO2, WS, b + 2 + j) for j in range(2)]
        return L
    for j in range(4):
        tile_scalars(j)
    p('s_waitcnt vmcnt(%d)' % pend3[0])
    poll_check(p, VPD, lambda: poll_issue(p, VPD, VPOLL))
    stamp(p, 30)
    lq = sum([loads(tt) for tt in range(4)], [])
    nis = [0]

    def ld(n):
        for _ in range(n):
            if lq:
                p(lq.pop(0))
                nis[0] += 1
    ld(CFG['oup'])
    stamp(p, 31)

    def wr(tt, u):
        return 'ds_write_b128 v%d, %s offset:%d' % (16 + tt, v(ACC3 + (tt & 1) * 20 + u * 4, 4), u * 32)

    def mm(y1):
        for tt in range(4):
            p('v_add_u32 v%d, s%d, v%d' % (16 + tt, 68 + tt, VPW))
        for tt in range(4):
            if tt == y1 or (grp == 0 and tt == 1):
                p('s_barrier')
            for st in range(5):
                done = tt * 6 + (st + 1 if st < 4 else 6)
                assert nis[0] >= done
                p('s_waitcnt vmcnt(%d)' % (nis[0] - done))
                for u in range(5):
                    acc = v(ACC3 + (tt & 1) * 20 + u * 4, 4)
                    p('v_mfma_f32_16x16x32_bf16 %s, %s, %s, %s' % (acc, v(WF3 + (st * 5 + u) * 4, 4), v(OF + (tt * 5 + st) * 4, 4), '0' if st == 0 else acc))
                    if tt > 0 and u == 2:
                        p(wr(tt - 1, st))
                    if u in (0, 4):
                        ld(1)
        for u in range(5):
            p(wr(3, u))

    if grp == 1:
        mm(CFG['y1'])
        stamp(p, 32)
        p('s_waitcnt lgkmcnt(0)')
        p('s_barrier')
        stamp_out(p)
        p('s_endpgm')
        return
    prio(p, 3)
    mm(-1)
    stamp(p, 32)
    p('s_mul_i32 s6, s%d, %d' % (sM, 64 * 1280))
    p('s_mul_i32 s7, s%d, 160' % sN)
    p('s_add_u32 s6, s6, s7')
    p('s_lshl_b32 s3, s%d, 6' % sW)
    p('v_add_u32 v7, s3, v0')
    p('v_lshlrev_b32 v8, 4, v7')
    p('v_add_u32 v9, 40960, v8')
    for rnd in range(3):
        p('v_add_u32 v15, %d, v7' % (rnd * 256))
        p('v_mul_u32_u24 v20, 6554, v15')
        p('v_lshrrev_b32 v20, 16, v20')
        p('v_mul_u32_u24 v20, %d, v20' % (1280 - 160))
        p('v_lshl_add_u32 v%d, v15, 4, v20' % (12 + rnd))
    p('v_add_u32 v10, 81920, v8')
    p('v_add_u32 v11, 81920, v9')
    p('s_waitcnt lgkmcnt(0)')
    p('s_barrier')
    prio(p, 0)
    SUM, TMP = 32, 56

    def rd(rnd, areg, buf):
        for k in range(4):
            for hf in range(2):
                p('ds_read_b128 %s, v%d offset:%d' % (v(TMP + buf * 32 + k * 8 + hf * 4, 4), areg + k // 2, (k % 2) * 20480 + hf * 10240 + rnd * 4096))

    def add4(rnd, buf, first):
        T = TMP + buf * 32
        if first:
            for i in range(8):
                p('v_add_f32 v%d, v%d, v%d' % (T + i, T + i, T + 8 + i))
            for i in range(8):
                p('v_add_f32 v%d, v%d, v%d' % (T + 16 + i, T + 16 + i, T + 24 + i))
            for i in range(8):
                p('v_add_f32 v%d, v%d, v%d' % (SUM + rnd * 8 + i, T + i, T + 16 + i))
            return
        for i in range(4):
            p('v_pk_add_f32 %s, %s, %s' % (v(T + 2 * i, 2), v(T + 2 * i, 2), v(T + 8 + 2 * i, 2)))
        for i in range(4):
            p('v_pk_add_f32 %s, %s, %s' % (v(T + 16 + 2 * i, 2), v(T + 16 + 2 * i, 2), v(T + 24 + 2 * i, 2)))
        if not first:
            for i in range(4):
                p('v_pk_add_f32 %s, %s, %s' % (v(T + 2 * i, 2), v(T + 2 * i, 2), v(SUM + rnd * 8 + 2 * i, 2)))
        for i in range(4):
            p('v_pk_add_f32 %s, %s, %s' % (v(SUM + rnd * 8 + 2 * i, 2), v(T + 2 * i, 2), v(T + 16 + 2 * i, 2)))

    def out(rnd):
        for i in range(4):
            p('v_cvt_pk_bf16_f32 v%d, v%d, v%d' % (20 + rnd * 4 + i, SUM + rnd * 8 + 2 * i, SUM + rnd * 8 + 2 * i + 1))
        p('buffer_store_dwordx4 %s, v%d, %s, s6 offen' % (v(20 + rnd * 4, 4), 12 + rnd, sr(S_OUT)))
    for rnd in range(3):
        rd(rnd, 8, 0)
        p('s_waitcnt lgkmcnt(0)')
        add4(rnd, 0, True)
    stamp(p, 33)
    prio(p, 3)
    p('s_barrier')
    stamp(p, 34)
    fin = p.newlabel('fin')
    rd(0, 10, 0)
    p('s_waitcnt lgkmcnt(7)')
    rd(1, 10, 1)
    p('s_waitcnt lgkmcnt(8)')
    two = p.newlabel('two')
    p('s_cmp_ge_u32 s%d, 2' % sW)
    p('s_cbranch_scc1 %s' % two)
    p('s_waitcnt lgkmcnt(7)')
    rd(2, 10, 2)
    add4(0, 0, False)
    out(0)
    p('s_waitcnt lgkmcnt(8)')
    add4(1, 1, False)
    out(1)
    p('s_waitcnt lgkmcnt(0)')
    add4(2, 2, False)
    out(2)
    p('s_branch %s' % fin)
    p.label(two)
    add4(0, 0, False)
    out(0)
    p('s_waitcnt lgkmcnt(0)')
    add4(1, 1, False)
    out(1)
    p.label(fin)
    stamp(p, 35)
    stamp_out(p)
    p('s_endpgm')


def kernel(p):
    del cold[:]
    del warm[:]
    end, spare, ktail, p2b, g0 = [p.newlabel(x) for x in ('end', 'spare', 'ktail', 'p2b', 'g0')]
    prologue(p, end)
    p('s_cmp_ge_u32 s4, 30')
    p('s_cbranch_scc1 %s' % spare)
    p('s_cmp_lt_u32 s%d, 4' % sW)
    p('s_cbranch_scc1 %s' % g0)
    p1_grp1(p)
    p.label(p2b)
    phase2(p, 1)
    phase3(p, 1)
    p.label(spare)
    p1_spare(p)
    k = p.newlabel('sp03')
    p('s_cmp_lt_u32 s%d, 4' % sW)
    p('s_cbranch_scc1 %s' % k)
    vb_masks(p)
    emit_all(p, p2_setup() + p2_setup2(1))
    p('s_branch %s' % p2b)
    p.label(k)
    preflag(p, False)
    tail_scalars(p)
    tail_vectors(p)
    p('s_mov_b32 s%d, 1' % sNW)
    poll_issue(p, VPD, VPOLL)
    p('s_branch %s' % ktail)
    p.label(end)
    p('s_endpgm')
    p.label(g0)
    p1_grp0(p)
    p.label(ktail)
    kv_tail(p)
    phase2(p, 0)
    phase3(p, 0)
    for f in warm:
        f()
    p.label('.Lhot_end')
    i = 0
    while i < len(cold):
        cold[i]()
        i += 1


HEADER = open('cdna_kernels/%s.s.ref' % NAME).read().split('; Override launch')[0]


def build(extra=None, **cfg):
    CFG.update(cfg)
    n = NAME + '_kernel'
    out = HEADER
    if extra:
        out += '; @launch kernel=%s grid=(256,1,1) block=(512,1,1) lds=%d\n' % (n, LDS_BYTES)
        out += '; @launch kernel=diag_kernel grid=(1,1,1) block=(64,1,1) lds=0\n'
    else:
        out += '; @launch grid=(256,1,1) block=(512,1,1) lds=%d\n' % LDS_BYTES
    out += '.amdgcn_target "amdgcn-amd-amdhsa--gfx950"\n.text\n'
    ks = [(n, kernel)] + ([('diag_kernel', extra)] if extra else [])
    desc = ''
    uid = 0
    for kn, f in ks:
        p = Prog()
        p.uid = uid
        p.label(kn)
        f(p)
        uid = p.uid
        nn = p.fix_hazards()
        ne = p.check_waits([kn])
        mx = p.max_regs()
        print(kn[-12:], 'instrs', len(p.ins), 'nops', nn, 'wait errors', ne, 'max regs', mx, file=sys.stderr)
        assert ne == 0
        out += '.globl %s\n.p2align 8\n.type %s,@function\n' % (kn, kn) + p.text()
        desc += '.p2align 6\n' + kernel_desc(kn, max(mx['v'] + 1, 8), 102)
    out += '.section .rodata,"a"\n' + desc
    return out


if __name__ == '__main__':
    cfg = {}
    args = []
    for a_ in sys.argv[1:]:
        if '=' in a_:
            k, val = a_.split('=')
            cfg[k] = eval(val)
        else:
            args.append(a_)
    path = args[0] if args else 'cdna_kernels/%s.s' % NAME
    open(path, 'w').write(build(**cfg))
```

```python
import sys, struct, re
sys.path.insert(0, 'gen')
from asm import *

NAME = 'gated_mix__sliding_block__sliding_local_dilated__prompt'

QKV_RB = 240 * 2048
QKV_BR = 16 * QKV_RB
O_OFF = 2 * QKV_BR
O_BR = 64 * 32 * 1280
G_OFF = O_OFF + 2 * O_BR
F1A_OFF = G_OFF + 32768
F1B_OFF = F1A_OFF + 64 * 16 * 128
F2_OFF = F1B_OFF + 64 * 16 * 128
F2_BR = 64 * 32 * 128
FW_OFF = F2_OFF + 2 * F2_BR
DUMMY_OFF = FW_OFF + 128 * 128
WP_OFF = DUMMY_OFF + 2048 * 128
WS_END = WP_OFF + 64 * 25600
ST_OFF = 28 << 20
WS_BYTES = 32 << 20
assert WS_END <= ST_OFF

X_BYTES = 2048 * 1280
WQ_BYTES = 640 * 3840
WO_BYTES = 640 * 1280
OUT_BYTES = 2048 * 1280

WSLOT = 8 * 2080
NWS = 6
XR_OFF = NWS * WSLOT
KA_OFF = XR_OFF
VA_OFF = KA_OFF + 20480
VA_STR = 8192 + 64
ONES_OFF = VA_OFF + 3 * VA_STR
ONES_LEN = 4608
QA_OFF = 149760
GW_OFF = QA_OFF + 12288
VB_WAVE = 3328
VB_STR = 1024 + 64
LDS_BYTES = 163840
assert ONES_OFF + ONES_LEN <= QA_OFF and GW_OFF + 1280 <= LDS_BYTES and VA_OFF % 256 == 0 and XR_OFF % 256 == 0
assert XR_OFF + 3 * WSLOT <= GW_OFF

S_WS, S_OUT = 8, 12
sW, sFL, sH, sR, sC0, sODD, sRB32, sRB, sCB, sROT = 16, 17, 18, 19, 20, 21, 22, 23, 24, 25
sM, sN = sH, sR
T0 = 26
S_DBG = 32
sMASK = 36
sVB = 68
S_X, S_WA, S_WB, S_GW = 68, 72, 76, 80
KA_ = 36
WS = 's[%d:%d]' % (S_WS, S_WS + 3)

VNON = 2
VSTAMP = 6

CFG = dict(stamp=False, light=False, force_safe=False, force_late=False, preflag=True,
           D=5, rot=(32, 1, 0, 0), cpf=2, wbwarm=70, prio=True, noprio='', lp={}, snake=False, psleep=0, pmask=True, apoll='2', fullflag=16,
           ntx='', nta='', ntb='', nto='nt',
           BB=[10, 12, 14, 17], g1last=15, n8=3, nwa=0, b1rate=1,
           sched='S I WWWW SSS B SSSS WWWWWWWW B WWWW N F B',
           flagblk=-1, CH=[5, 6, 7], wa=[5, 5, 5, 5, 5], wb=[2, 2, 2, 2, 2], pr={2: 2, 5: 1}, pr1={2: 2, 5: 1}, f2a=0, abl='', nwb2=4, orot=True, oup=24, oin=(0, 4), g2p=(2, 1), y1=3)
SPIN = 1 << 15


def f32(x):
    return '0x%08x' % struct.unpack('<I', struct.pack('<f', x))[0]


QSCALE = (20 ** -0.5) * 1.4426950408889634
NEG_INF = '0xff800000'


def srd(p, d, ptr, nbytes):
    p('s_mov_b32 s%d, s%d' % (d, ptr))
    p('s_and_b32 s%d, s%d, 0xffff' % (d + 1, ptr + 1))
    p('s_mov_b32 s%d, 0x%x' % (d + 2, nbytes))
    p('s_mov_b32 s%d, 0x20000' % (d + 3))


def sr(d):
    return 's[%d:%d]' % (d, d + 3)


def prio(p, n, tag='x'):
    if CFG['prio'] and tag not in CFG['noprio']:
        p('s_setprio %d' % n)


def stamp(p, i):
    if CFG['stamp'] and not (CFG['light'] and i not in (0, 61) + tuple(CFG.get('keep', ()))):
        p('%s s[100:101]' % ('s_memtime' if CFG['stamp'] == 'clk' else 's_memrealtime'))
        p('s_waitcnt lgkmcnt(0)')
        p('v_writelane_b32 v%d, s100, %d' % (VSTAMP, i))


def stamp_clk(p, i):
    if CFG['stamp']:
        p('s_memtime s[100:101]')
        p('s_waitcnt lgkmcnt(0)')
        p('v_writelane_b32 v%d, s100, %d' % (VSTAMP, i))


def stamp_out(p):
    if CFG['stamp']:
        p('s_waitcnt vmcnt(0)')
        stamp(p, 61)
        p('s_getreg_b32 s100, hwreg(HW_REG_XCC_ID)')
        p('s_add_u32 s100, s100, 1')
        p('v_writelane_b32 v%d, s100, 60' % VSTAMP)
        stamp_clk(p, 63)
        p('s_lshl_b32 s3, s2, 3')
        p('s_add_u32 s3, s3, s%d' % sW)
        p('s_lshl_b32 s3, s3, 8')
        p('s_add_u32 s3, s3, %d' % ST_OFF)
        p('v_lshlrev_b32 v7, 2, v0')
        p('buffer_store_dword v%d, v7, %s, s3 offen' % (VSTAMP, WS))
        p('s_waitcnt vmcnt(0)')


def nonce_issue(p, r=VNON):
    p('buffer_load_dwordx2 %s, off, %s, 0 sc1' % (v(r, 2), sr(S_DBG)))


cold = []


def nonce_check(p, r=VNON):
    ok, L = p.newlabel('nok'), p.newlabel('nsp')
    p('v_cmp_eq_u32 vcc, 0, v%d' % r)
    p('s_cbranch_vccnz %s' % L)
    p.label(ok)

    def rare():
        L2 = p.newlabel('nsp')
        p.label(L)
        p('s_mov_b32 s3, %d' % SPIN)
        p.label(L2)
        p('s_sleep 2')
        nonce_issue(p, r)
        p('s_sub_u32 s3, s3, 1')
        p('s_waitcnt vmcnt(0)')
        p('s_cbranch_scc1 %s' % ok)
        p('v_cmp_eq_u32 vcc, 0, v%d' % r)
        p('s_cbranch_vccnz %s' % L2)
        p('s_branch %s' % ok)
    cold.append(rare)


def preflag(p, f1):
    if not CFG['preflag']:
        return
    for r in range(8, 12):
        p('v_mov_b32 v%d, 0' % r)
    p('v_and_b32 v12, 7, v0')
    p('v_lshlrev_b32 v12, 4, v12')
    p('v_bfe_u32 v13, v0, 3, 1')
    if f1:
        p('v_mul_u32_u24 v14, %d, v13' % (F1B_OFF - F1A_OFF))
        p('v_add_u32 v14, v14, v12')
        p('s_mov_b64 exec, 0xffff')
        p('buffer_store_dwordx4 v[8:11], v14, %s, s%d offen sc1' % (WS, sFA))
        p('s_mov_b64 exec, -1')
    p('v_mul_u32_u24 v13, %d, v13' % F2_BR)
    p('v_bfe_u32 v15, v0, 4, 1')
    p('v_lshl_add_u32 v13, v15, 14, v13')
    p('v_add_u32 v13, v13, v12')
    p('s_lshl_b32 s3, s%d, 5' % sRB32)
    p('s_add_u32 s3, s3, s%d' % sH)
    p('s_lshl_b32 s3, s3, 7')
    p('s_add_u32 s3, s3, %d' % F2_OFF)
    p('s_mov_b32 exec_hi, 0')
    p('buffer_store_dwordx4 v[8:11], v13, %s, s3 offen sc1' % WS)
    p('s_mov_b32 exec_hi, -1')


def flag_store(p, soff):
    if CFG['fullflag']:
        p('v_lshlrev_b32 v7, 3, v0')
        p('s_mov_b64 exec, 0x%x' % ((1 << CFG['fullflag']) - 1))
        p('buffer_store_dwordx2 %s, v7, %s, s%d offen sc1' % (v(VNON, 2), WS, soff))
        p('s_mov_b64 exec, -1')
        return
    p('s_mov_b64 exec, 1')
    p('buffer_store_dwordx2 %s, off, %s, s%d sc1' % (v(VNON, 2), WS, soff))
    p('s_mov_b64 exec, -1')


cur_poll = ['a']


def poll_new(p, m, fill=True):
    cur_poll[0] = {0xffff: '2', 0xff5: 'b'}.get(m, 'a')
    if CFG['pmask']:
        if fill:
            p('v_mov_b32 v%d, v%d' % (VPD, VNON))
            p('v_mov_b32 v%d, v%d' % (VPD + 1, VNON + 1))
        p('s_mov_b64 exec, 0x%x' % m)
    poll_issue(p, VPD, VPOLL)
    if CFG['pmask']:
        p('s_mov_b64 exec, -1')


def poll_again(p, k):
    cur_poll[0] = k
    if CFG['pmask']:
        p('s_mov_b64 exec, vcc')
    poll_issue(p, VPD, VPOLL)
    if CFG['pmask']:
        p('s_mov_b64 exec, -1')


def poll_issue(p, vdat, voff):
    if cur_poll[0] in CFG['apoll']:
        p('v_mov_b32 v%d, 0' % vdat)
        p('v_mov_b32 v%d, 0' % (vdat + 1))
        p('buffer_atomic_or_x2 %s, v%d, %s, 0 offen sc0 sc1' % (v(vdat, 2), voff, WS))
        return
    p('buffer_load_dwordx2 %s, v%d, %s, 0 offen sc1' % (v(vdat, 2), voff, WS))


def poll_check(p, vcmp, reissue):
    ok, L = p.newlabel('pok'), p.newlabel('psp')
    p('v_cmp_ne_u64 vcc, %s, %s' % (v(vcmp, 2), v(VNON, 2)))
    p('s_cbranch_vccz %s' % ok)
    p('s_mov_b32 s3, %d' % SPIN)
    p.label(L)
    if CFG['psleep']:
        p('s_sleep %d' % CFG['psleep'])
    reissue()
    p('s_sub_u32 s3, s3, 1')
    p('s_waitcnt vmcnt(0)')
    p('s_cbranch_scc1 %s' % ok)
    p('v_cmp_ne_u64 vcc, %s, %s' % (v(vcmp, 2), v(VNON, 2)))
    p('s_cbranch_vccnz %s' % L)
    p.label(ok)


def emit_all(p, L):
    for x in L:
        if callable(x):
            x()
        else:
            p(x)


def prologue(p, end):
    p('s_load_dwordx16 s[%d:%d], s[0:1], 0' % (KA_, KA_ + 15))
    p('s_load_dwordx4 s[%d:%d], s[0:1], 64' % (KA_ + 16, KA_ + 19))
    p('s_cmp_ge_u32 s2, 256')
    p('s_cbranch_scc1 %s' % end)
    if CFG['cpf'] == 2:
        k = p.newlabel('pc')
        p('s_getpc_b64 s[4:5]')
        p.label(k)
        p('s_lshr_b32 s3, s2, 3')
        p('v_lshl_add_u32 v4, v0, 5, s3')
        p('v_lshlrev_b32 v4, 7, v4')
        p('v_cmp_gt_u32 vcc, .Lhot_end-%s, v4' % k)
        p('s_and_saveexec_b64 s[6:7], vcc')
        k2 = p.newlabel('nopf')
        p('s_cbranch_execz %s' % k2)
        p('global_load_dword v253, v4, s[4:5]')
        p.label(k2)
        p('s_mov_b64 exec, -1')
    p('v_lshrrev_b32 v1, 6, v0')
    p('v_readfirstlane_b32 s%d, v1' % sW)
    p('v_and_b32 v0, 63, v0')
    if CFG['stamp']:
        p('v_mov_b32 v%d, 0' % VSTAMP)
        stamp(p, 0)
        stamp_clk(p, 62)
    p('s_and_b32 s3, s2, 7')
    p('s_lshr_b32 s4, s2, 3')
    p('s_lshr_b32 s5, s3, 1')
    p('s_mul_i32 s5, s5, 30')
    p('s_add_u32 s5, s5, s4')
    p('s_lshr_b32 s%d, s5, 3' % sCB)
    p('s_and_b32 s5, s5, 7')
    p('s_and_b32 s6, s3, 1')
    p('s_lshl_b32 s6, s6, 3')
    p('s_add_u32 s%d, s5, s6' % sRB)


def late_scalars(p):
    srd(p, S_WS, KA_ + 18, WS_BYTES)
    srd(p, S_OUT, KA_ + 14, OUT_BYTES)
    srd(p, S_DBG, KA_ + 16, 256)
    p('s_and_b32 s3, s2, 7')
    p('s_lshr_b32 s4, s2, 3')
    p('s_and_b32 s7, s4, 3')
    p('s_lshl_b32 s3, s3, 2')
    p('s_add_u32 s%d, s3, s7' % sH)
    p('s_lshr_b32 s%d, s4, 2' % sR)
    p('s_and_b32 s%d, s%d, 1' % (sODD, sH))
    p('s_lshr_b32 s3, s%d, 1' % sH)
    p('s_mul_i32 s3, s3, 5')
    p('s_lshl_b32 s6, s%d, 1' % sODD)
    p('s_add_u32 s%d, s3, s6' % sC0)
    p('s_lshl_b32 s3, s%d, 3' % sR)
    p('s_add_u32 s%d, s3, s%d' % (sRB32, sW))
    p('s_lshl_b32 s3, s2, 3')
    p('s_add_u32 s3, s3, s%d' % sW)
    p('s_lshl_b32 s3, s3, 7')
    p('s_add_u32 s%d, s3, %d' % (sFL, DUMMY_OFF))
    for r in range(16):
        kl = 8 * (r // 4) + r % 4
        p('s_mov_b32 s%d, 0x%x' % (sMASK + 2 * r, (0xffffffff << kl) & 0xffffffff))
        p('s_mov_b32 s%d, 0x%x' % (sMASK + 2 * r + 1, (0xffffffff << (kl + 4)) & 0xffffffff))


def vb_masks(p):
    rotl = lambda x, n: ((x << n) | (x >> (32 - n))) & 0xffffffff
    for r in range(16):
        kl = 8 * (r // 4) + r % 4
        p('s_mov_b32 s%d, 0x%x' % (sVB + 2 * r, rotl(0x5555, kl)))
        p('s_mov_b32 s%d, 0x%x' % (sVB + 2 * r + 1, rotl(0x5555, kl + 4)))
    k, L = p.newlabel('vbok'), p.newlabel('vbfirst')
    p('s_cmp_eq_u32 s%d, 0' % sRB32)
    p('s_cbranch_scc1 %s' % L)
    p.label(k)

    def rare():
        p.label(L)
        for r in range(16):
            p('s_and_b64 %s, %s, %s' % (vbm(r), vbm(r), mask(r)))
        p('s_branch %s' % k)
    cold.append(rare)


def mask(r):
    return 's[%d:%d]' % (sMASK + 2 * r, sMASK + 2 * r + 1)


def vbm(r):
    return 's[%d:%d]' % (sVB + 2 * r, sVB + 2 * r + 1)


WF, ACC, X = 8, 32, 96
VST, AX = 1, 2
sQ, sFA, sSC = T0, T0 + 1, T0 + 2
SLOT_B = {10: 4, 11: 5, 12: 7, 13: 8, 14: 0, 15: 1, 16: 2, 17: 3, 18: 4, 19: 5}
FREE_B = {10: 6, 11: 7, 12: 8, 13: 9, 14: 8, 15: 9, 16: 10, 17: 11, 18: 12, 19: 13}


def slot_of(c):
    return c % NWS if c < 10 else SLOT_B[c]


def frag_list():
    frs = []
    for c in range(20):
        for i in range(16):
            if c < 10:
                st, u = i // 8, i % 8
                off = [(st * 2 + j) * 256 + u * 32 for j in range(2)]
                frs.append(dict(c=c, off=off, acc=u, xs=2 * c + st, first=(c == 0 and st == 0)))
            else:
                slab, cc = (c - 10) // 5, (c - 10) % 5
                st, u = i // 4, i % 4
                off = [(st * 2 + j) * 128 + u * 32 for j in range(2)]
                frs.append(dict(c=c, off=off, acc=slab * 4 + u, xs=4 * cc + st, first=(cc == 0 and st == 0)))
    return frs


def x_reads(c):
    return [('ds_read_b128 %s, v%d offset:%d' % (v(X + ((2 * c + st) * 2 + t) * 4, 4), AX + st, (c % 3) * WSLOT + t * 2048), ('x', 2 * c + st))
            for st in range(2) for t in range(2)]


def gemm_addr(p, sl):
    p('v_and_b32 v24, 15, v0')
    p('v_lshrrev_b32 v25, 4, v0')
    p('v_lshrrev_b32 v26, 1, v24')
    p('v_xor_b32 v26, v26, v25')
    p('v_lshlrev_b32 v26, 4, v26')
    p('v_lshl_add_u32 v26, v24, 7, v26')
    p('s_lshl_b32 s3, s%d, 12' % sl)
    p('s_add_u32 s3, s3, %d' % XR_OFF)
    p('v_add_u32 v%d, s3, v26' % AX)
    p('v_xor_b32 v%d, 64, v%d' % (AX + 1, AX))
    p('v_bfe_u32 v26, v0, 2, 3')
    p('v_mul_u32_u24 v26, 2080, v26')
    p('v_lshrrev_b32 v27, 5, v0')
    p('v_lshl_add_u32 v26, v27, 10, v26')
    p('v_and_b32 v28, 3, v0')
    p('v_lshl_add_u32 v4, v28, 3, v26')
    p('v_add_u32 v5, %d, v4' % (4 * WSLOT))
    p('v_and_b32 v26, 31, v0')
    p('v_lshlrev_b32 v26, 4, v26')
    p('v_lshl_add_u32 v26, v27, 11, v26')
    p('s_lshl_b32 s3, s%d, 9' % sl)
    p('v_add_u32 v%d, s3, v26' % VST)


def gemm_scalars(p, sl, br, sflag):
    p('s_mul_i32 s%d, s%d, %d' % (sQ, sRB, QKV_RB))
    p('s_lshl_b32 s3, s%d, 15' % sCB)
    p('s_add_u32 s%d, s%d, s3' % (sQ, sQ))
    p('s_cmp_lt_u32 s%d, 5' % sCB)
    p('s_cselect_b32 s%d, %s, 1.0' % (sSC, f32(QSCALE)))
    p('s_mov_b32 s%d, s%d' % (sSC + 1, sSC))
    p('s_lshl_b32 s3, s%d, 2' % sRB)
    p('s_add_u32 s3, s3, s%d' % sl)
    p('s_lshl_b32 s4, s3, 4')
    p('s_add_u32 s4, s4, s%d' % sCB)
    p('s_lshl_b32 s5, s4, 7')
    p('s_add_u32 s%d, s5, %d' % (sflag, F1B_OFF if br else F1A_OFF))


def rot_scalar(p):
    G, m1, m2, m3 = CFG['rot']
    p('s_add_u32 s6, s%d, s%d' % (sRB, sCB))
    p('s_and_b32 s6, s6, %d' % (G - 1))
    if m1 != 1:
        p('s_mul_i32 s6, s6, %d' % m1)
    if m2:
        p('s_bfe_u32 s7, s2, 0x20001')
        p('s_mul_i32 s7, s7, %d' % m2)
        p('s_add_u32 s6, s6, s7')
    if m3:
        p('s_and_b32 s7, s2, 1')
        p('s_mul_i32 s7, s7, %d' % m3)
        p('s_add_u32 s6, s6, s7')
    if (G - 1) * m1 + 3 * m2 + m3 >= 5:
        p('s_mul_i32 s7, s6, 52')
        p('s_lshr_b32 s7, s7, 8')
        p('s_mul_i32 s7, s7, 5')
        p('s_sub_u32 s6, s6, s7')
    p('s_lshl_b32 s%d, s6, 1' % sROT)


def conv(u, pk=False):
    a0 = ACC + u * 8
    if pk:
        L = ['v_pk_mul_f32 %s, %s, s[%d:%d]' % (v(a0 + 2 * i, 2), v(a0 + 2 * i, 2), sSC, sSC + 1) for i in range(4)]
    else:
        L = ['v_mul_f32 v%d, s%d, v%d\nv_mul_f32 v%d, s%d, v%d' % (a0 + 2 * i, sSC, a0 + 2 * i, a0 + 2 * i + 1, sSC, a0 + 2 * i + 1) for i in range(4)]
    L += ['v_cvt_pk_bf16_f32 v%d, v%d, v%d' % (a0 + i, a0 + 2 * i, a0 + 2 * i + 1) for i in range(4)]
    return L


def swaps(u):
    d = ACC + u * 8
    return ['v_permlane16_swap_b32 v%d, v%d' % (d, d + 2), 'v_permlane16_swap_b32 v%d, v%d' % (d + 1, d + 3)]


def qstore(br, u):
    return ['s_add_u32 s3, s%d, %d' % (sQ, br * QKV_BR + u * 4096) + '\n' +
            'buffer_store_dwordx4 %s, v%d, %s, s3 offen sc1' % (v(ACC + u * 8, 4), VST, WS)]


def epilogue(br, us, pk=False):
    L = []
    prev = None
    for u in us:
        c = conv(u, pk)
        L += c[:4]
        if prev is not None:
            L += swaps(prev) + c[4:6] + qstore(br, prev) + c[6:]
        else:
            L += c[4:]
        prev = u
    return L + swaps(prev) + qstore(br, prev)


def gemm_stream(p, f0, f1, barriers, pre_barrier, side, aw, with_x):
    D = CFG['D']
    NB = D + 1
    frs = frag_list()
    pend = []

    def lds(text, tag):
        p(text)
        pend.append(tag)

    def need(tags):
        idx = [i for i, t in enumerate(pend) if t in tags]
        if idx:
            n = len(pend) - 1 - max(idx)
            assert n <= 15
            p('s_waitcnt lgkmcnt(%d)' % n)
            del pend[:max(idx) + 1]

    def pre_read(f):
        if f % 16 == 0:
            c = f // 16
            if c in barriers:
                pre_barrier(c)
                p('s_barrier')
                if CFG['stamp'] and not CFG['light'] and c in (0, 2, 6, 10, 14):
                    stamp(p, 2 + c // 2)
                    del pend[:]
            if with_x and c < 10:
                for t, tag in x_reads(c):
                    lds(t, tag)

    def w_read(f, j):
        fr = frs[f]
        slot = slot_of(fr['c'])
        lds('ds_read_b64_tr_b16 %s, v%d offset:%d' % (v(WF + (f % NB) * 4 + j * 2, 2), aw[slot // 4], (slot % 4) * WSLOT + fr['off'][j]), ('w', f))

    def mf(f, t):
        fr = frs[f]
        acc = v(ACC + (fr['acc'] * 2 + t) * 4, 4)
        p('v_mfma_f32_16x16x32_bf16 %s, %s, %s, %s' % (acc, v(WF + (f % NB) * 4, 4), v(X + (fr['xs'] * 2 + t) * 4, 4), '0' if fr['first'] else acc))

    for f in range(f0, f0 + D):
        pre_read(f)
        w_read(f, 0)
        w_read(f, 1)
    for f in range(f0, f1):
        g = f + D
        need({('w', f), ('x', frs[f]['xs'])})
        t0 = f & 1 if CFG['snake'] else 0
        mf(f, t0)
        if g <= f1 and g < 320:
            pre_read(g)
        if g < f1:
            w_read(g, 0)
        mf(f, 1 - t0)
        if g < f1:
            w_read(g, 1)
        emit_all(p, side.get(f, []))


class Dma:
    def __init__(self, p, sXB, sWBs, sLX, sLW, sKX, sKW, VX, VWA, VWB):
        self.p, self.r, self.v = p, (sXB, sWBs, sLX, sLW, sKX, sKW), (VX, VWA, VWB)
        self.cur = None
        self.issued = []

    def kchunk(self, kk):
        p = self.p
        p('s_add_u32 s3, s%d, %d' % (sROT, kk))
        p('s_cmp_ge_u32 s3, 10')
        p('s_cselect_b32 s4, 10, 0')
        p('s_sub_u32 s3, s3, s4')

    def kbase(self, c):
        if self.cur == c:
            return
        self.cur = c
        p = self.p
        sXB, sWBs, sLX, sLW, sKX, sKW = self.r
        self.kchunk(c if c < 10 else 2 * ((c - 10) % 5))
        if c < 10:
            p('s_lshl_b32 s4, s3, 7')
            p('s_add_u32 s%d, s4, s%d' % (sKX, sXB))
        p('s_mul_i32 s4, s3, %d' % (64 * 3840))
        p('s_add_u32 s%d, s4, s%d' % (sKW, sWBs))

    def emit(self, kind, c, t):
        p = self.p
        sXB, sWBs, sLX, sLW, sKX, sKW = self.r
        VX, VWA, VWB = self.v
        self.kbase(c)
        if kind == 'x':
            p('s_add_u32 m0, s%d, %d' % (sLX, XR_OFF + (c % 3) * WSLOT + t * 4096))
            p('s_add_u32 s3, s%d, %d' % (sKX, t * 32 * 1280))
            p('buffer_load_dwordx4 v%d, %s, s3 offen %s lds' % (VX, sr(S_X), CFG['ntx']))
        else:
            kb, kh = t & 1, t >> 1
            p('s_add_u32 m0, s%d, %d' % (sLW, slot_of(c) * WSLOT + kb * 4 * 2080 + kh * 1024))
            p('s_add_u32 s3, s%d, %d' % (sKW, (16 * kh + 8 * kb) * 3840 + (128 * ((c - 10) // 5) if c >= 10 else 0)))
            p('buffer_load_dwordx4 v%d, %s, s3 offen %s lds' % (VWA if c < 10 else VWB, sr(S_WA if c < 10 else S_WB), CFG['nta'] if c < 10 else CFG['ntb']))
        self.issued.append(c)

    def chunk(self, c):
        for t in range(4):
            self.emit('w', c, t)
            if c < 10:
                self.emit('x', c, t)

    def other(self, tag=None):
        self.issued.append(tag)

    def wait(self, pred):
        idx = [i for i, x in enumerate(self.issued) if pred(x)]
        if idx:
            self.p('s_waitcnt vmcnt(%d)' % (len(self.issued) - 1 - max(idx)))
            del self.issued[:max(idx) + 1]

    def wait_chunks(self, lim):
        self.wait(lambda x: isinstance(x, int) and x <= lim)


def wb_voffset(p, d, sl):
    p('v_lshrrev_b32 v20, 4, v0')
    p('v_lshlrev_b32 v20, 5, v20')
    p('v_bfe_u32 v21, v0, 3, 1')
    p('v_lshl_add_u32 v20, v21, 2, v20')
    p('v_add_u32 v20, s%d, v20' % sl)
    p('v_mul_u32_u24 v20, 3840, v20')
    p('v_and_b32 v21, 7, v0')
    p('v_lshl_add_u32 v%d, v21, 4, v20' % d)


def cert_limit(c):
    BB = CFG['BB']
    if c < 10:
        return c
    nxt = [b for b in BB if b > c]
    return nxt[0] - 1 if nxt else 19


VPOLL, VPD = 12, 14
sRBQ = 85
sTA = 86
sNW = 69


def tail_scalars(p):
    p('s_lshl_b32 s3, s%d, 1' % sR)
    p('s_add_u32 s3, s3, s%d' % sW)
    p('s_sub_u32 s3, s3, 2')
    p('s_max_i32 s%d, s3, 0' % sRBQ)
    p('s_mul_i32 s%d, s%d, %d' % (sTA, sRBQ, QKV_RB))
    p('s_lshl_b32 s4, s%d, 11' % sC0)
    p('s_add_u32 s%d, s%d, s4' % (sTA, sTA))
    p('s_lshl_b32 s5, s%d, 11' % sODD)
    p('s_add_u32 s%d, s%d, s5' % (sTA + 1, sTA))
    p('s_cmp_eq_u32 s%d, 0' % sODD)
    p('s_cselect_b32 s6, 4096, 8')
    p('s_cselect_b32 s7, 4096, 0')
    p('s_add_u32 s%d, s%d, s6' % (sTA + 2, sTA))
    p('s_lshl_b32 s3, s%d, 1' % sR)
    p('s_lshr_b32 s6, s%d, 1' % sW)
    p('s_add_u32 s3, s3, s6')
    p('s_mul_i32 s3, s3, %d' % QKV_RB)
    p('s_and_b32 s6, s%d, 1' % sW)
    p('s_lshl_b32 s6, s6, 10')
    p('s_add_u32 s3, s3, s6')
    p('s_add_u32 s3, s3, s4')
    p('s_add_u32 s%d, s3, s5' % (sTA + 3))
    p('s_add_u32 s%d, s3, s7' % (sTA + 4))
    p('s_lshl_b32 s%d, s%d, 11' % (sTA + 5, sW))
    p('s_lshl_b32 s%d, s%d, 10' % (sTA + 6, sW))
    p('s_lshl_b32 s3, s%d, 3' % sW)
    p('s_add_u32 s3, s3, s%d' % sN)
    p('s_lshl_b32 s3, s3, 8')
    p('s_add_u32 s84, s3, %d' % FW_OFF)


def tail_vectors(p):
    p('v_and_b32 v20, 3, v0')
    p('s_lshl_b32 s3, s%d, 2' % sRBQ)
    p('v_add_u32 v21, s3, v20')
    p('v_and_b32 v23, 1, v0')
    p('s_lshl_b32 s3, s%d, 3' % sR)
    p('s_lshl_b32 s4, s%d, 1' % sW)
    p('s_add_u32 s3, s3, s4')
    p('v_add_u32 v20, s3, v23')
    p('v_cmp_gt_u32 vcc, 16, v0')
    p('v_lshrrev_b32 v22, 1, v0')
    p('v_and_b32 v22, 2, v22')
    p('v_cndmask_b32 v21, v20, v21, vcc')
    p('v_bfe_u32 v20, v0, 3, 1')
    p('v_mul_u32_u24 v20, 5, v20')
    p('v_add_u32 v20, 5, v20')
    p('v_cndmask_b32 v20, 0, v20, vcc')
    p('v_add_u32 v22, s%d, v22' % sC0)
    p('v_lshrrev_b32 v22, 4, v22')
    p('v_add_u32 v20, v20, v22')
    p('v_lshl_add_u32 v20, v21, 4, v20')
    p('v_lshlrev_b32 v20, 7, v20')
    p('v_add_u32 v20, %d, v20' % F1A_OFF)
    p('v_cmp_gt_u32 vcc, 24, v0')
    p('v_and_b32 v22, 2, v0')
    p('v_lshlrev_b32 v22, 12, v22')
    p('v_lshl_add_u32 v22, v23, 7, v22')
    p('v_add_u32 v22, s84, v22')
    p('v_cndmask_b32 v%d, v22, v20, vcc' % VPOLL)
    p('v_lshrrev_b32 v7, 1, v0')
    p('v_lshlrev_b32 v7, 4, v7')
    p('v_lshl_add_u32 v27, v23, 2, v7')


def ones_fill(p):
    for r in range(4):
        p('v_mov_b32 v%d, 0x3f803f80' % (28 + r))
    p('v_add_u32 v7, s%d, v1' % (sTA + 6))
    p('v_add_u32 v7, %d, v7' % ONES_OFF)
    p('ds_write_b128 v7, v[28:31]')
    p('v_lshlrev_b32 v7, 3, v0')
    p('v_add_u32 v7, %d, v7' % (ONES_OFF + 4096))
    p('ds_write_b64 v7, v[28:29]')


def p1_grp0(p):
    BB = CFG['BB']
    gemm_addr(p, sW)
    rot_scalar(p)
    p('s_waitcnt lgkmcnt(0)')
    srd(p, S_WB, KA_ + 8, WQ_BYTES)

    def warm():
        k = p.newlabel('nowarm')
        p('s_cmp_gt_u32 s%d, 1' % sW)
        p('s_cbranch_scc1 %s' % k)
        p('s_lshl_b32 s3, s2, 1')
        p('s_add_u32 s3, s3, s%d' % sW)
        p('s_mul_i32 s3, s3, 5120')
        p('v_lshlrev_b32 v7, 7, v0')
        p('s_mov_b32 exec_hi, 0xff')
        p('buffer_load_dword v%d, v7, %s, s3 offen' % (X + 156, sr(S_WB)))
        p('s_mov_b32 exec_hi, -1')
        p.label(k)
    if CFG['wbwarm'] == 2:
        warm()
    late_scalars(p)
    nn = p.newlabel('nononce')
    p('s_or_b32 s3, s2, s%d' % sW)
    p('s_cbranch_scc1 %s' % nn)
    p('s_memrealtime s[4:5]')
    p('s_waitcnt lgkmcnt(0)')
    p('s_or_b32 s4, s4, 1')
    p('v_mov_b32 v8, s4')
    p('v_mov_b32 v9, s5')
    p('v_mov_b32 v10, 0')
    p('v_mov_b32 v11, 0')
    p('s_mov_b64 exec, 1')
    p('buffer_atomic_cmpswap_x2 v[8:11], off, %s, 0 sc1' % sr(S_DBG))
    p('s_mov_b64 exec, -1')
    p.label(nn)
    gemm_scalars(p, sW, 0, sFA)
    preflag(p, True)
    tail_scalars(p)
    sWBs, sKW, sLW = T0 + 4, T0 + 5, 68
    p('s_lshl_b32 s%d, s%d, 8' % (sWBs, sCB))
    p('s_mul_i32 s%d, s%d, 2080' % (sLW, sW))
    wp_base(p)
    stamp(p, 1)
    side = {130: ['s_waitcnt vmcnt(0)']}
    if CFG['wbwarm'] > 2:
        side[CFG['wbwarm']] = [warm]
    gemm_stream(p, 0, 160, range(11), lambda c: None, side, (4, 5), True)
    stamp(p, 12)
    prio(p, 2, 'h')
    VWB = 10
    d = Dma(p, None, sWBs, None, sLW, None, sKW, None, None, VWB)
    todo = [(c, t) for c in range(CFG['g1last'] + 1, 20) for t in range(4)]
    wq = list(range(CFG['nwa']))
    bq = list(BB[1:])
    ep = epilogue(0, range(8))
    passed = 10
    seen = set()
    nt_ = [0]
    for ch in CFG['sched']:
        if ch == 'S':
            while True:
                x = ep.pop(0)
                p(x)
                if 'buffer_store' in x:
                    d.other('s')
                    break
            if not ep:
                stamp(p, 13)
        elif ch == 'I':
            nonce_issue(p)
            d.other('n')
            wb_voffset(p, VWB, sW)
        elif ch == 'J':
            if CFG['nwa']:
                p('v_and_b32 v7, 1, v0')
                p('v_lshlrev_b32 v7, 7, v7')
                p('buffer_load_dwordx2 %s, v7, %s, s84 offen sc1' % (v(VPD, 2), WS))
                d.other('j')
                p('v_lshlrev_b32 v11, 4, v0')
        elif ch == 't':
            stamp(p, 44 + nt_[0])
            nt_[0] += 1
        elif ch == 'W':
            c, t = todo.pop(0)
            assert FREE_B[c] <= passed and 'I' in seen, (c, passed)
            d.emit('w', c, t)
        elif ch == 'P':
            assert 'K' in seen
            if wq:
                w_load(p, wq.pop(0), 11)
                d.other()
        elif ch == 'B':
            c = bq.pop(0)
            lim = cert_limit(c)
            assert not (todo and todo[0][0] <= lim), (c, todo[0])
            d.wait_chunks(lim)
            stamp(p, 36 + 2 * BB.index(c))
            p('s_barrier')
            stamp(p, 37 + 2 * BB.index(c))
            passed = c
        elif ch == 'N':
            d.wait(lambda x: x == 'n')
            nonce_check(p)
            p('s_mov_b32 s%d, 0' % sNW)
            tail_vectors(p)
        elif ch == 'K':
            assert 'N' in seen and 'J' in seen
            if CFG['nwa']:
                d.wait(lambda x: x == 'j')
                p('v_cmp_ne_u64 vcc, %s, %s' % (v(VPD, 2), v(VNON, 2)))
                p('s_or_b32 s%d, vcc_lo, vcc_hi' % sNW)
            if CFG['force_late']:
                p('s_mov_b32 s%d, 1' % sNW)
        elif ch == 'F':
            assert not ep and 'N' in seen
            d.wait(lambda x: x == 's')
            flag_store(p, sFA)
            d.other()
            stamp(p, 16)
        seen.add(ch)
    assert not todo and not wq and not bq and not ep and 'F' in seen and BB[-1] >= 15
    p('v_lshlrev_b32 v1, 4, v0')
    poll_new(p, 0x0f33ffff)


def kv_tail(p):
    ones_fill(p)
    p('s_waitcnt vmcnt(0)')
    stamp(p, 14)
    poll_check(p, VPD, lambda: poll_again(p, 'a'))
    stamp(p, 15)

    def dma(ldsb, ldsoff, gb, goff, vo=1, w='x4', n=1):
        p('s_add_u32 m0, s%d, %d' % (sTA + ldsb, ldsoff))
        p('s_add_u32 s3, s%d, %d' % (sTA + gb, goff))
        for i in range(n):
            p('buffer_load_dword%s v%d, %s, s3 offen offset:%d sc1 lds' % (w, vo, WS, i * 1024))
    for j in range(2):
        dma(6, QA_OFF + j * 4096, 3, j * 2048)
    dma(6, QA_OFF + 8192, 4, 0)
    for j in range(2):
        dma(5, KA_OFF + j * 8192, 1, (80 + j) * 2048, n=2)
    for i in range(4):
        dma(6, KA_OFF + 16384 + i * 256, 2, 80 * 2048 + i * 512, vo=27, w='')
    for j in range(3):
        dma(5, VA_OFF + j * VA_STR, 0, (160 + j) * 2048, n=2)
    stamp(p, 17)
    redo, back = p.newlabel('redo'), p.newlabel('redone')
    p('s_cmp_lg_u32 s%d, 0' % sNW)
    p('s_cbranch_scc1 %s' % redo)
    p.label(back)

    def rare():
        p.label(redo)
        wp_base(p)
        for f in range(CFG['nwa']):
            w_load(p, f)
        p('s_branch %s' % back)
    cold.append(rare)
    vb_masks(p)
    emit_all(p, p2_setup() + p2_setup2(0))
    p('s_waitcnt vmcnt(0) lgkmcnt(0)')
    stamp(p, 20)


def p1_grp1(p):
    VX, VWA, VWB = 8, 9, 10
    GG, GF, GA, GN = 18, 36, 44, 52
    sXB, sWBs, sLX, sLW, sKX, sKW, sGT, sL = 84, 85, 86, 87, 88, 89, 90, 91
    prio(p, 2, 'l')
    p('s_sub_u32 s%d, s%d, 4' % (sL, sW))
    rot_scalar(p)
    p('v_lshrrev_b32 v12, 3, v0')
    p('s_lshl_b32 s6, s%d, 3' % sL)
    p('v_add_u32 v12, s6, v12')
    p('v_mul_u32_u24 v12, 1280, v12')
    p('v_lshrrev_b32 v13, 4, v0')
    p('s_and_b32 s6, s%d, 1' % sL)
    p('s_lshl_b32 s6, s6, 2')
    p('v_add_u32 v7, s6, v13')
    p('v_and_b32 v11, 7, v0')
    p('v_xor_b32 v7, v7, v11')
    p('v_lshl_add_u32 v%d, v7, 4, v12' % VX)
    p('v_and_b32 v12, 32, v0')
    p('v_bfe_u32 v7, v0, 4, 1')
    p('v_lshl_add_u32 v12, v7, 2, v12')
    p('v_add_u32 v12, s%d, v12' % sL)
    p('v_mul_u32_u24 v12, 3840, v12')
    p('v_and_b32 v7, 15, v0')
    p('v_lshl_add_u32 v%d, v7, 4, v12' % VWA)
    p('s_mul_i32 s%d, s%d, %d' % (sXB, sRB, 128 * 1280))
    p('s_lshl_b32 s%d, s%d, 8' % (sWBs, sCB))
    p('s_lshl_b32 s%d, s%d, 10' % (sLX, sL))
    p('s_mul_i32 s%d, s%d, 2080' % (sLW, sL))
    d = Dma(p, sXB, sWBs, sLX, sLW, sKX, sKW, VX, VWA, VWB)
    d.kbase(0)
    p('s_waitcnt lgkmcnt(0)')
    srd(p, S_WA, KA_ + 2, WQ_BYTES)
    srd(p, S_X, KA_, X_BYTES)
    stamp(p, 1)
    d.chunk(0)
    srd(p, S_GW, KA_ + 12, 1280)
    srd(p, S_WB, KA_ + 8, WQ_BYTES)
    p('s_mul_i32 s3, s%d, 320' % sL)
    p('s_add_u32 m0, s3, %d' % GW_OFF)
    p('v_lshlrev_b32 v16, 4, v0')
    p('s_mov_b64 exec, 0xfffff')
    p('buffer_load_dwordx4 v16, %s, s3 offen lds' % sr(S_GW))
    p('s_mov_b64 exec, -1')
    d.other(0)
    d.chunk(1)
    late_scalars(p)
    p('s_mov_b32 s92, s%d' % sFL)
    wb_voffset(p, VWB, sL)
    gemm_addr(p, sL)
    gemm_scalars(p, sL, 1, sFL)
    p('s_xor_b32 s%d, s%d, s%d' % (sGT, sCB, sL))
    p('v_lshlrev_b32 v7, 4, v13')
    p('v_add_u32 v%d, %d, v7' % (GG, GW_OFF))
    todo = list(range(2, CFG['g1last'] + 1))
    for c in range(10):
        d.wait_chunks(c)
        if c:
            p('s_waitcnt lgkmcnt(0)')
        if c % 2 == 0 and c < 8:
            stamp(p, 2 + c // 2)
        p('s_barrier')
        if c in CFG['lp']:
            prio(p, CFG['lp'][c])
        for t, _ in x_reads(c):
            p(t)
        n = 1 if c < 8 else (CFG['n8'] if c == 8 else 9)
        while todo and n > 0:
            assert todo[0] < 10 or FREE_B[todo[0]] <= c
            d.chunk(todo.pop(0))
            n -= 1
        k = p.newlabel('nogate')
        p('s_cmp_lg_u32 s%d, 0' % sGT)
        p('s_cbranch_scc1 %s' % k)
        d.kchunk(c)
        p('s_lshl_b32 s3, s3, 7')
        p('v_add_u32 v%d, s3, v%d' % (GG + 1, GG))
        for st in range(2):
            p('ds_read_b128 %s, v%d offset:%d' % (v(GF + st * 4, 4), GG + 1, st * 64))
        p('s_waitcnt lgkmcnt(0)')
        for st in range(2):
            for t in range(2):
                p('v_mfma_f32_16x16x32_bf16 %s, %s, %s, %s' % (v(GA + t * 4, 4), v(GF + st * 4, 4), v(X + ((2 * c + st) * 2 + t) * 4, 4), '0' if (c == 0 and st == 0) else v(GA + t * 4, 4)))
        p.label(k)
        if c == 5:
            nonce_issue(p, GN)
            d.other('n')
        if c == 8:
            d.wait(lambda x: x == 'n')
            nonce_check(p, GN)
            p('v_readfirstlane_b32 s30, v%d' % GN)
            p('v_readfirstlane_b32 s31, v%d' % (GN + 1))
    p('v_cmp_gt_u32 vcc, 16, v0')
    p('s_lshl_b32 s3, s%d, 2' % sRB)
    p('s_add_u32 s3, s3, s%d' % sL)
    p('s_lshl_b32 s3, s3, 9')
    p('s_add_u32 s3, s3, %d' % G_OFF)
    p('s_mov_b32 s7, %s' % f32(-1.4426950408889634))
    p('v_cndmask_b32 v7, v%d, v%d, vcc' % (GA + 4, GA))
    p('v_mul_f32 v7, s7, v7')
    p('v_exp_f32 v7, v7')
    p('v_mov_b32 v%d, 0' % (GN - 1))
    p('v_add_f32 v7, 1.0, v7')
    p('v_rcp_f32 v%d, v7' % (GN - 2))
    p('s_cmp_eq_u32 s%d, 0' % sGT)
    p('s_cselect_b32 s3, s3, s92')
    p('s_cselect_b32 exec_lo, -1, 0xff')
    p('s_mov_b32 exec_hi, 0')
    p('buffer_store_dwordx4 %s, v16, %s, s3 offen sc1' % (v(GN - 2, 4), WS))
    p('s_mov_b64 exec, -1')
    d.other()
    vb_masks(p)
    p('s_waitcnt lgkmcnt(0)')
    p('v_add_u32 v2, %d, v4' % (8 * WSLOT))
    prio(p, 0)
    side = {}
    L = epilogue(1, range(4))
    f = 242
    while L:
        side[f] = L[:CFG['b1rate']]
        del L[:CFG['b1rate']]
        f += 1
    gemm_stream(p, 160, 320, CFG['BB'], lambda c: d.wait_chunks(cert_limit(c)), side, (4, 5, 2), False)
    stamp(p, 18)
    prio(p, 2, 'e')
    fill = p2_setup() + ['v_mov_b32 v%d, s30' % VNON, 'v_mov_b32 v%d, s31' % (VNON + 1)]
    per = (len(fill) - 3) // 3
    for x in epilogue(1, range(4, 8), True):
        p(x)
        if 'buffer_store' in x:
            emit_all(p, fill[:per])
            del fill[:per]
    emit_all(p, fill + p2_setup2(1))
    stamp(p, 19)


def p1_spare(p):
    S_WO = S_X
    p('s_and_b32 s3, s2, 7')
    p('s_lshl_b32 s5, s3, 1')
    p('s_add_u32 s5, s5, s4')
    p('s_sub_u32 s%d, s5, 30' % T0)
    p('s_waitcnt lgkmcnt(0)')
    p('s_cmp_lt_u32 s%d, 8' % T0)
    p('s_cselect_b32 s6, s%d, s%d' % (KA_ + 4, KA_ + 10))
    p('s_cselect_b32 s7, s%d, s%d' % (KA_ + 5, KA_ + 11))
    srd(p, S_WO, 6, WO_BYTES)
    srd(p, S_WB, KA_ + 8, WQ_BYTES)
    late_scalars(p)
    if CFG['cpf'] == 1:
        k = p.newlabel('pc')
        p('s_getpc_b64 s[4:5]')
        p.label(k)
        p('s_sub_u32 s4, s4, %s-%s_kernel' % (k, NAME))
        p('s_subb_u32 s5, s5, 0')
        p('s_and_b32 s3, s%d, 1' % T0)
        p('s_lshl_b32 s3, s3, 3')
        p('s_add_u32 s3, s3, s%d' % sW)
        p('v_lshl_add_u32 v4, v0, 4, s3')
        p('v_lshlrev_b32 v4, 7, v4')
        p('v_min_u32 v4, .Lhot_end-%s_kernel, v4' % NAME)
        p('s_mov_b32 exec_hi, 0')
        p('global_load_dword v35, v4, s[4:5]')
        p('s_mov_b32 exec_hi, -1')
    if CFG['wbwarm'] == 1:
        p('v_lshlrev_b32 v4, 7, v0')
        p('s_lshl_b32 s3, s%d, 3' % T0)
        p('s_add_u32 s3, s3, s%d' % sW)
        p('s_mul_i32 s6, s3, 19200')
        p('s_mov_b32 exec_hi, 0x3ffff')
        for i in range(3):
            p('s_add_u32 s7, s6, %d' % (i * 6400))
            p('buffer_load_dword v%d, v4, %s, s7 offen' % (32 + i, sr(S_WB)))
        p('s_mov_b32 exec_hi, -1')
    for i in range(5):
        p('v_add_u32 v7, %d, v0' % (64 * i))
        p('v_mul_u32_u24 v8, 1639, v7')
        p('v_lshrrev_b32 v8, 16, v8')
        p('v_mul_u32_u24 v8, 640, v8')
        p('v_lshl_add_u32 v%d, v7, 4, v8' % (16 + i))
    p('s_bfe_u32 s3, s%d, 0x20001' % T0)
    p('s_mul_i32 s3, s3, 160')
    p('s_mul_i32 s4, s%d, 20' % sW)
    p('s_add_u32 s3, s3, s4')
    p('s_mul_i32 s3, s3, 1280')
    p('s_and_b32 s4, s%d, 1' % T0)
    p('s_mul_i32 s4, s4, 640')
    p('s_add_u32 s5, s3, s4')
    p('s_mul_i32 s6, s%d, 12800' % sW)
    for i in range(13):
        p('s_add_u32 m0, s6, %d' % (i * 1024))
        p('s_add_u32 s3, s5, %d' % ((i // 5) * 8 * 1280))
        if i == 12:
            p('s_mov_b32 exec_hi, 0')
        p('buffer_load_dwordx4 v%d, %s, s3 offen %s lds' % (16 + i % 5, sr(S_WO), CFG['nto']))
        if i == 12:
            p('s_mov_b32 exec_hi, -1')
    nonce_issue(p)
    p('s_lshr_b32 s4, s%d, 1' % sW)
    p('s_mul_i32 s4, s4, 160')
    p('v_bfe_u32 v7, v0, 2, 3')
    p('v_lshrrev_b32 v8, 5, v0')
    p('v_mul_u32_u24 v8, 20, v8')
    p('v_add_u32 v8, v8, v7')
    p('v_mul_u32_u24 v8, 640, v8')
    p('v_and_b32 v9, 3, v0')
    p('v_lshl_add_u32 v9, v9, 3, s4')
    p('v_add_u32 v22, v8, v9')
    p('v_add_u32 v23, %d, v22' % (80 * 640))
    p('v_lshrrev_b32 v8, 4, v0')
    p('v_mul_u32_u24 v8, 20, v8')
    p('v_and_b32 v7, 3, v7')
    p('v_add3_u32 v8, v8, v7, 16')
    p('v_mul_u32_u24 v8, 640, v8')
    p('v_add_u32 v24, v8, v9')
    p('v_and_b32 v9, 3, v0')
    for r in range(3):
        p('v_lshl_add_u32 v%d, v9, 3, v%d' % (25 + r, 22 + r))
    p('v_lshlrev_b32 v1, 4, v0')
    p('s_lshl_b32 s3, s%d, 2' % T0)
    p('s_lshr_b32 s4, s%d, 1' % sW)
    p('s_add_u32 s3, s3, s4')
    p('s_mul_i32 s5, s3, 25600')
    p('s_add_u32 s5, s5, %d' % WP_OFF)
    p('s_lshl_b32 s3, s%d, 3' % T0)
    p('s_add_u32 s3, s3, s%d' % sW)
    p('s_lshl_b32 s3, s3, 7')
    p('s_add_u32 s%d, s3, %d' % (T0 + 1, FW_OFF))
    p('s_waitcnt vmcnt(0)')
    stamp(p, 2)
    nonce_check(p)
    p('s_barrier')
    odd, done = p.newlabel('odd'), p.newlabel('packed')
    p('s_bitcmp1_b32 s%d, 0' % sW)
    p('s_cbranch_scc1 %s' % odd)
    for half, fr in ((0, range(0, 13)), (1, range(13, 25))):
        if half:
            p.label(odd)
        for n, f in enumerate(fr):
            st, u = f // 5, f % 5
            for j in range(2):
                d = v(32 + n * 4 + j * 2, 2)
                ab, uo = (25, (u >> 1) * 64 + (u & 1) * 8) if u < 4 else (22, 128)
                if st < 4:
                    p('ds_read_b64_tr_b16 %s, v%d offset:%d' % (d, ab + st // 2, (st % 2) * 40 * 640 + j * 8 * 640 + uo))
                else:
                    p('ds_read_b64_tr_b16 %s, v%d offset:%d' % (d, ab + 2, j * 80 * 640 + uo))
            if n >= 2:
                p('s_waitcnt lgkmcnt(4)')
                p('s_add_u32 s3, s5, %d' % ((f - 2) * 1024))
                p('buffer_store_dwordx4 %s, v1, %s, s3 offen sc1' % (v(32 + (n - 2) * 4, 4), WS))
        p('s_waitcnt lgkmcnt(0)')
        for n, f in list(enumerate(fr))[-2:]:
            p('s_add_u32 s3, s5, %d' % (f * 1024))
            p('buffer_store_dwordx4 %s, v1, %s, s3 offen sc1' % (v(32 + n * 4, 4), WS))
        if not half:
            p('s_branch %s' % done)
    p.label(done)
    p('s_waitcnt vmcnt(0)')
    flag_store(p, T0 + 1)
    p('s_barrier')
    stamp(p, 3)


VL16, VM, VHH = 1, 4, 5
AK1, AK2, AV, BV, VGO = 8, 9, 10, 11, 13
QB2, VG, Q1, Q2 = 18, 20, 24, 28
AQ1, AQ2 = 16, 17
MSK, KF, VF, PP, O, S, QB1 = 32, 40, 56, 72, 88, 104, 152
WF3 = 156


def p2_setup():
    return [
        'v_and_b32 v%d, 31, v0' % VM,
        'v_lshrrev_b32 v%d, 5, v0' % VHH,
        's_lshl_b32 s4, s%d, 5' % sW,
        'v_add_u32 v7, s4, v%d' % VM,
        'v_lshlrev_b32 v15, 13, v%d' % VHH,
        'v_lshl_add_u32 v15, v7, 4, v15',
        'v_add_u32 v%d, %d, v15' % (AK1, KA_OFF),
        'v_lshlrev_b32 v15, 3, v7',
        'v_add_u32 v%d, %d, v15' % (AK2, KA_OFF + 16384),
        'v_lshlrev_b32 v15, 12, v%d' % VHH,
        'v_lshl_add_u32 v15, v7, 4, v15',
        'v_add_u32 v%d, %d, v15' % (AQ1, QA_OFF),
        's_lshl_b32 s4, s%d, 3' % sODD,
        's_add_u32 s4, s4, %d' % (QA_OFF + 8192),
        'v_lshl_add_u32 v%d, v7, 4, s4' % AQ2,
        'v_mov_b32 v%d, 0' % Q2,
        'v_mov_b32 v%d, 0' % (Q2 + 1),
        'v_bfe_u32 v20, v0, 4, 1',
        'v_and_b32 v21, 3, v0',
        'v_lshl_add_u32 v20, v20, 2, v21',
        'v_add_u32 v21, s%d, v20' % sODD,
        'v_bfe_u32 v22, v0, 2, 2',
        'v_lshl_add_u32 v22, v%d, 2, v22' % VHH,
        'v_lshlrev_b32 v22, 4, v22',
        'v_and_b32 v23, 1, v21',
        'v_lshl_add_u32 v23, v23, 3, v22',
        'v_lshrrev_b32 v21, 1, v21',
        'v_cmp_lt_u32 vcc, 4, v20',
        's_lshl_b32 s4, s%d, 9' % sW,
        's_add_u32 s4, s4, %d' % VA_OFF,
        'v_mul_u32_u24 v7, %d, v21' % VA_STR,
        'v_add3_u32 v7, v7, v23, s4',
        'v_add_u32 v15, %d, v22' % ONES_OFF,
        'v_cndmask_b32 v%d, v7, v15, vcc' % AV,
        's_mul_i32 s4, s%d, %d' % (sW, VB_WAVE),
        'v_mul_u32_u24 v7, %d, v21' % VB_STR,
        'v_add3_u32 v7, v7, v23, s4',
        'v_cndmask_b32 v%d, v7, v15, vcc' % BV,
        'v_lshlrev_b32 v%d, 4, v0' % VL16,
    ]


def kread(t, st, kf=KF):
    return ['ds_read_b128 %s, v%d offset:%d' % (v(kf + st * 8, 4), AK1, t * 512),
            'ds_read_b64 %s, v%d offset:%d' % (v(kf + st * 8 + 4, 2), AK2, t * 256)]


def smf(dst, st, kf=KF, q1=Q1, q2=Q2):
    d = v(dst, 16)
    return ['v_mfma_f32_32x32x16_bf16 %s, %s, %s, 0' % (d, v(kf + st * 8, 4), v(q1, 4)),
            'v_mfma_f32_32x32x8_bf16 %s, %s, %s, %s' % (d, v(kf + st * 8 + 4, 2), v(q2, 2), d)]


def vread(av, t, st):
    return ['ds_read_b64_tr_b16 %s, v%d offset:%d' % (v(VF + st * 8 + m2 * 4 + j * 2, 2), av, t * 512 + m2 * 256 + j * 128) for m2 in range(2) for j in range(2)]


def pvm(st, pp, first=False):
    return ['v_mfma_f32_32x32x16_bf16 %s, %s, %s, %s' % (v(O, 16), v(VF + st * 8 + m2 * 4, 4), v(pp + m2 * 4, 4), '0' if (first and m2 == 0) else v(O, 16)) for m2 in range(2)]


def exps(t):
    return ['v_exp_f32 v%d, v%d' % (t + r, t + r) for r in range(16)]


def cvts(t, dst):
    return ['v_cvt_pk_bf16_f32 v%d, v%d, v%d' % (dst + i, t + 2 * i, t + 2 * i + 1) for i in range(8)]


def finish(p, br):
    p('v_rcp_f32 v7, v%d' % (O + 12))
    if br == 1:
        p('v_sub_f32 v%d, 1.0, v%d' % (VG, VG))
        p('s_add_u32 s30, s30, %d' % O_BR)
        p('s_add_u32 s31, s31, %d' % F2_BR)
    p('v_mul_f32 v16, v7, v%d' % VG)
    for r in range(0, 8):
        p('v_mul_f32 v%d, v16, v%d' % (O + r, O + r))
    for i in range(4):
        p('v_cvt_pk_bf16_f32 v%d, v%d, v%d' % (PP + i, O + 2 * i, O + 2 * i + 1))
    p('buffer_store_dwordx4 %s, v%d, %s, s30 offen sc1' % (v(PP, 4), VL16, WS))
    for r in range(8, 12):
        p('v_mul_f32 v%d, v16, v%d' % (O + r, O + r))
    p('v_lshlrev_b32 v7, 3, v0')
    for i in range(4, 6):
        p('v_cvt_pk_bf16_f32 v%d, v%d, v%d' % (PP + i, O + 2 * i, O + 2 * i + 1))
    p('s_mov_b32 exec_hi, 0')
    p('buffer_store_dwordx2 %s, v7, %s, s30 offen offset:1024 sc1' % (v(PP + 4, 2), WS))
    p('s_mov_b32 exec_hi, -1')


def half_max(p, M):
    p('v_mov_b32 v%d, v%d' % (M + 1, M))
    p('v_permlane32_swap_b32 v%d, v%d' % (M, M + 1))
    p('v_max_f32 v%d, v%d, v%d' % (M, M, M + 1))


def subm(t, M):
    return ['v_sub_f32 v%d, v%d, v%d' % (t + i, t + i, M) for i in range(16)]


sFV = 26


def safe_path(p, back):
    S0, S1, K2 = S, S + 16, KF
    M = 16
    p('v_mov_b32 v7, %s' % NEG_INF)
    emit_all(p, kread(0, 0, K2) + kread(8, 1, K2) + ['s_waitcnt lgkmcnt(0)'] + smf(S0, 0, K2) + smf(S1, 1, K2))
    k = p.newlabel('hasold')
    p('s_cmp_lg_u32 s%d, 0' % sR)
    p('s_cbranch_scc1 %s' % k)
    for r in range(16):
        p('v_mov_b32 v%d, v7' % (S0 + r))
    p.label(k)
    for r in range(16):
        p('v_cndmask_b32 v%d, v%d, v%d, %s' % (S1 + r, S0 + r, S1 + r, mask(r)))
    p('v_max_f32 v%d, v%d, v%d' % (M, S1, S1 + 1))
    for r in range(2, 16, 2):
        p('v_max3_f32 v%d, v%d, v%d, v%d' % (M, M, S1 + r, S1 + r + 1))
    for t in range(1, 8):
        k = p.newlabel('skip')
        p('s_cmp_gt_u32 s%d, %d' % (sFV, t))
        p('s_cbranch_scc1 %s' % k)
        emit_all(p, kread(t, 0, K2) + ['s_waitcnt lgkmcnt(0)'] + smf(S0, 0, K2))
        for r in range(0, 16, 2):
            p('v_max3_f32 v%d, v%d, v%d, v%d' % (M, M, S0 + r, S0 + r + 1))
        p.label(k)
    half_max(p, M)
    emit_all(p, vread(AV, 8, 0) + vread(AV, 0, 1) + subm(S1, M) + exps(S1) + cvts(S1, PP + 8))
    for i in range(8):
        p('v_and_b32 v%d, v%d, v%d' % (PP + i, PP + 8 + i, MSK + i))
    for i in range(8):
        p('v_xor_b32 v%d, v%d, v%d' % (PP + 8 + i, PP + 8 + i, PP + i))
    emit_all(p, ['s_waitcnt lgkmcnt(0)'] + pvm(0, PP, True) + pvm(1, PP + 8))
    for t in range(1, 8):
        k = p.newlabel('skip')
        p('s_cmp_gt_u32 s%d, %d' % (sFV, t))
        p('s_cbranch_scc1 %s' % k)
        emit_all(p, kread(t, 0, K2) + vread(AV, t, 0) + ['s_waitcnt lgkmcnt(0)'] + smf(S0, 0, K2) + subm(S0, M) + exps(S0) + cvts(S0, PP) + pvm(0, PP))
        p.label(k)
    p('s_branch %s' % back)


def zero_if(p, cmp_text, regs):
    k, L = p.newlabel('valid'), p.newlabel('zero')
    p(cmp_text)
    p('s_cbranch_scc1 %s' % L)
    p.label(k)

    def rare():
        p.label(L)
        for r in regs:
            p('v_mov_b32 v%d, 0' % r)
        p('s_branch %s' % k)
    cold.append(rare)


sWP = sCB


def wp_base(p):
    p('s_lshl_b32 s3, s%d, 3' % sW)
    p('s_add_u32 s3, s3, s%d' % sN)
    p('s_mul_i32 s3, s3, 25600')
    p('s_add_u32 s%d, s3, %d' % (sWP, WP_OFF))


def w_load(p, f, va=None):
    if f % 4 == 0 and f:
        p('s_add_u32 s%d, s%d, 4096' % (sWP, sWP))
    p('buffer_load_dwordx4 %s, v%d, %s, s%d offen offset:%d sc1' % (v(WF3 + f * 4, 4), va or VL16, WS, sWP, (f % 4) * 1024))


sQB, sKP, sLATE = 28, 29, sROT
VBF, VBH, VBV = 30, 31, 46
KB = S + 32
warm = []


def p2_setup2(grp):
    L = ['v_mov_b32 v7, 0xffff']
    L += ['v_cndmask_b32 v%d, 0, v7, %s' % (MSK + i, mask(2 * i)) for i in range(8)]
    L += ['v_cndmask_b32 v%d, v%d, -1, %s' % (MSK + i, MSK + i, mask(2 * i + 1)) for i in range(8)]
    L += [
        's_sub_u32 s%d, 8, s%d' % (sFV, sW),
        's_cmp_eq_u32 s%d, 0' % sR,
        's_cselect_b32 s%d, s%d, 0' % (sFV, sFV),
        's_lshr_b32 s3, s%d, 2' % sRB32,
        's_mul_i32 s3, s3, %d' % QKV_RB,
        's_and_b32 s4, s%d, 3' % sRB32,
        's_lshl_b32 s4, s4, 9',
        's_add_u32 s3, s3, s4',
        's_lshl_b32 s5, s%d, 11' % sC0,
        's_add_u32 s5, s5, %d' % QKV_BR,
        's_add_u32 s%d, s3, s5' % sQB,
        's_sub_u32 s3, s%d, 1' % sRB32,
        'v_and_b32 v20, 1, v0',
        'v_add_u32 v21, s3, v20',
        'v_max_i32 v21, 0, v21',
        's_max_i32 s4, s3, 0',
        's_lshr_b32 s3, s4, 2',
        's_mul_i32 s3, s3, %d' % QKV_RB,
        's_and_b32 s4, s4, 3',
        's_lshl_b32 s4, s4, 9',
        's_add_u32 s3, s3, s4',
        's_add_u32 s%d, s3, s5' % sKP,
        's_lshl_b32 s3, s%d, 5' % sRB32,
        's_add_u32 s3, s3, s%d' % sH,
        's_mul_i32 s4, s3, 1280',
        's_add_u32 s30, s4, %d' % O_OFF,
        's_lshl_b32 s4, s3, 7',
        's_add_u32 s31, s4, %d' % F2_OFF,
        's_lshl_b32 s3, s%d, 9' % sRB32,
        's_add_u32 s%d, s3, %d' % (sRB, G_OFF),
        's_mov_b32 s%d, 1' % sLATE,
        'v_lshrrev_b32 v23, 2, v0',
        'v_min_u32 v23, 2, v23',
        'v_cmp_eq_u32 vcc, 0, v23',
        'v_mul_u32_u24 v22, 5, v23',
        'v_mov_b32 v23, s%d' % sRB32,
        'v_and_b32 v20, 2, v0',
        'v_cndmask_b32 v21, v21, v23, vcc',
        'v_add_u32 v20, s%d, v20' % sC0,
        'v_lshrrev_b32 v20, 4, v20',
        'v_add_u32 v20, v20, v22',
        'v_lshl_add_u32 v20, v21, 4, v20',
        'v_lshlrev_b32 v20, 7, v20',
        'v_add_u32 v%d, %d, v20' % (VPOLL, F1B_OFF),
        'v_lshlrev_b32 v%d, 4, v%d' % (VGO, VM),
        'v_mov_b32 v%d, 0' % QB2,
        'v_mov_b32 v%d, 0' % (QB2 + 1),
        'v_add_u32 v7, s%d, v%d' % (sODD, VHH),
        'v_lshl_add_u32 v%d, v7, 11, v%d' % (VBF, VGO),
        's_cmp_eq_u32 s%d, 0' % sODD,
        's_cselect_b32 s4, 4096, 8',
        'v_add_u32 v%d, s4, v%d' % (VBH, VGO),
        's_sub_u32 s4, s%d, s%d' % (sQB, sKP),
        'v_mul_lo_u32 v7, s4, v%d' % VHH,
        'v_add_u32 v%d, v7, v%d' % (VBV, VGO),
    ]
    return L


def weave(valu, mf, after):
    cost = [8 if x.startswith('v_exp') else 4 for x in valu]
    tot = sum(cost)
    out, acc, k = [], 0, 0
    for x, c in zip(valu, cost):
        while k < len(mf) and acc >= k * mf[k][1]:
            out.append(mf[k][0])
            out += after.get(k, [])
            k += 1
        out.append(x)
        acc += c
    assert k == len(mf)
    return out


def phase2(p, grp):
    SA, SB, SC = S, S + 16, S + 32
    safe, back = p.newlabel('safe'), p.newlabel('back')
    cold.append(lambda: (p.label(safe), safe_path(p, back)))
    if grp == 1:
        wp_base(p)
        if CFG['flagblk'] < 0:
            p('s_waitcnt vmcnt(0)')
            flag_store(p, sFL)
            stamp(p, 23)
    p('s_barrier')
    stamp(p, 21)
    prio(p, 0 if 'a' in CFG['noprio'] else 3)
    p('ds_read_b128 %s, v%d' % (v(Q1, 4), AQ1))
    p(kread(1, 0)[0])
    p('s_mov_b32 exec_hi, 0')
    p('ds_read_b64 %s, v%d' % (v(Q2, 2), AQ2))
    p('s_mov_b32 exec_hi, -1')
    emit_all(p, kread(1, 0)[1:] + kread(0, 1) + kread(8, 0, O))
    nvm = [0]
    sincepoll = [0]
    wq = list(range(0 if grp else CFG['nwa'], 25))
    wplan = list(CFG['wb'] if grp else CFG['wa'])

    def wl():
        if wq:
            w_load(p, wq.pop(0))
            nvm[0] += 1
            sincepoll[0] += 1

    def b_loads():
        p('s_add_u32 s5, s%d, %d' % (sQB, 80 * 2048))
        p('s_add_u32 s6, s%d, %d' % (sKP, 80 * 2048))
        p('buffer_load_dwordx4 %s, v%d, %s, s%d offen sc1' % (v(QB1, 4), VBF, WS, sQB))
        p('s_mov_b32 exec_hi, 0')
        p('buffer_load_dwordx2 %s, v%d, %s, s%d offen sc1' % (v(QB2, 2), VBH, WS, sQB))
        p('s_mov_b32 exec_hi, -1')
        for st, so in ((0, 6), (1, 5)):
            p('buffer_load_dwordx4 %s, v%d, %s, s%d offen sc1' % (v(KB + st * 8, 4), VBF, WS, so))
            p('buffer_load_dwordx2 %s, v%d, %s, s%d offen sc1' % (v(KB + st * 8 + 4, 2), VBH, WS, so))
        p('s_mul_i32 s4, s%d, %d' % (sW, VB_WAVE))
        for j in range(3):
            p('s_add_u32 m0, s4, %d' % (j * VB_STR))
            p('s_add_u32 s3, s%d, %d' % (sKP, (160 + j) * 2048))
            p('buffer_load_dwordx4 v%d, %s, s3 offen sc1 lds' % (VBV, WS))

    def chance(last, first=False):
        L, j = p.newlabel('chance'), p.newlabel('chback')
        n = sincepoll[0]
        sincepoll[0] = 0
        if first:
            p('s_waitcnt vmcnt(%d)' % n)
            p('v_cmp_ne_u64 vcc, %s, %s' % (v(VPD, 2), v(VNON, 2)))
            p(('s_branch %s' if CFG['force_late'] else 's_cbranch_vccnz %s') % L)
            p('s_mov_b32 s%d, 0' % sLATE)
            b_loads()
            stamp(p, 24)
            p.label(j)
            warm.append(lambda: (p.label(L), None if last else (poll_new(p, 0xff5) if CFG['force_late'] else poll_again(p, 'b')), p('s_branch %s' % j)))
            return
        p('s_cmp_lg_u32 s%d, 0' % sLATE)
        p('s_cbranch_scc1 %s' % L)
        p.label(j)

        def f():
            no = p.newlabel('notyet')
            p.label(L)
            p('s_waitcnt vmcnt(%d)' % n)
            p('v_cmp_ne_u64 vcc, %s, %s' % (v(VPD, 2), v(VNON, 2)))
            if CFG['force_late']:
                p('s_branch %s' % no)
            else:
                p('s_cbranch_vccnz %s' % no)
            p('s_mov_b32 s%d, 0' % sLATE)
            b_loads()
            stamp(p, 24)
            p('s_branch %s' % j)
            p.label(no)
            if not last:
                poll_new(p, 0xff5) if CFG['force_late'] else poll_again(p, 'b')
            p('s_branch %s' % j)
        warm.append(f)

    gload = lambda: p('buffer_load_dwordx4 %s, v%d, %s, s%d offen sc1' % (v(VG, 4), VGO, WS, sRB))
    a = smf(SA, 0)
    p('s_waitcnt lgkmcnt(6)')
    p(a[0])
    p('s_waitcnt lgkmcnt(4)')
    p(a[1])
    sb = lambda t: SA if t % 2 == 0 else SB
    CH = CFG['CH']
    for bi, t in enumerate([1, 0, 2, 3, 4, 5, 6, 7]):
        pr = CFG['pr1'] if grp else CFG['pr']
        if bi in pr:
            prio(p, pr[bi], 'a')
        nw = wplan.pop(0) if wplan else 0
        if t == 1:
            e, c = exps(SA), cvts(SA, PP + 8)
            so, sd = smf(SB, 1), smf(SC, 0, O)
            emit_all(p, kread(2, 0) + vread(AV, 1, 1) + ['s_waitcnt lgkmcnt(6)', so[0], so[1]] + vread(AV, 8, 0))
            valu = e[0:8] + c[0:2] + e[8:12] + c[2:4] + e[12:16] + c[4:8]
            mf, after = [(sd[0], 0), (sd[1], 32)], {}
        elif t == 0:
            e, c = exps(SC), cvts(SC, PP + 8)
            mg = ['v_cndmask_b32 v%d, v%d, v%d, %s' % (SC + r, SB + r, SC + r, mask(r)) for r in range(16)]
            an = ['v_and_b32 v%d, v%d, v%d' % (PP + i, PP + 8 + i, MSK + i) for i in range(8)]
            xo = ['v_xor_b32 v%d, v%d, v%d' % (PP + 8 + i, PP + 8 + i, PP + i) for i in range(8)]
            valu = mg + e + c + an + xo
            pv, sn = pvm(1, PP + 8, True), smf(SA, 0)
            mf = [(pv[0], 0), (pv[1], 40), (sn[0], 48), (sn[1], 52)]
            after = {0: kread(3, 1), 1: vread(AV, 0, 1)}
            p('s_waitcnt lgkmcnt(0)')
        else:
            cur = sb(t)
            e, c = exps(cur), cvts(cur, PP + 8 * (t & 1))
            sn = smf(sb(t + 1), (t + 1) & 1) if t < 7 else []
            kr = kread(t + 2, t & 1) if t < 6 else []
            vr = vread(AV, t, t & 1)
            if t == 2:
                pd, po = pvm(0, PP), pvm(1, PP + 8)
                valu = e + c
                mf = [(pd[0], 0), (pd[1], 24), (sn[0], 24), (sn[1], 24), (po[0], 24), (po[1], 25)]
                after = {0: kr, 1: vr}
            else:
                pv = pvm((t - 1) & 1, PP + 8 * ((t - 1) & 1))
                valu = e[0:8] + c[0:2] + e[8:12] + c[2:4] + e[12:16] + c[4:8]
                if t < 7:
                    mf = [(sn[0], 0), (pv[0], 32), (sn[1], 36), (pv[1], 37)]
                    after = {0: kr + vr}
                else:
                    mf = [(pv[0], 0), (pv[1], 32)]
                    after = {0: vr}
            p('s_waitcnt lgkmcnt(0)')
        L = weave(valu, mf, after)
        if nw:
            step = len(L) // nw
            L2 = []
            for i, x in enumerate(L):
                L2.append(x)
                if i % step == step - 1 and nw > 0:
                    L2.append(wl)
                    nw -= 1
            L = L2
        emit_all(p, L)
        if t == 0:
            zero_if(p, 's_cmp_eq_u32 s%d, 0' % sR, range(PP + 8, PP + 16))
            stamp(p, 22)
        else:
            zero_if(p, 's_cmp_gt_u32 s%d, %d' % (sFV, t), range(PP + 8 * (t & 1), PP + 8 * (t & 1) + 8))
        if bi == CFG['flagblk'] and grp == 1:
            assert bi < CH[0]
            p('s_waitcnt vmcnt(%d)' % nvm[0])
            flag_store(p, sFL)
            stamp(p, 23)
        if bi == CH[0] - 1:
            gload()
            poll_new(p, 0xff5)
            sincepoll[0] = 0
        if bi in CH and bi < 7:
            assert bi >= 1
            chance(bi == CH[-1], bi == CH[0])
    p('s_waitcnt lgkmcnt(0)')
    emit_all(p, pvm(1, PP + 8))
    if 7 in CH:
        chance(True, CH[0] == 7)
    poll_check(p, VG + 2, gload)
    p('v_fma_f32 v7, v%d, v%d, v%d' % (O + 12, O + 12, O))
    p('v_fma_f32 v16, v%d, v%d, v%d' % (O + 1, O + 2, O + 3))
    p('v_cmp_lt_f32 vcc, %s, v%d' % (f32(2.0 ** -60), O + 12))
    p('v_fma_f32 v7, v%d, v%d, v7' % (O + 4, O + 5))
    p('v_fma_f32 v16, v%d, v%d, v16' % (O + 6, O + 7))
    p('v_fma_f32 v7, v%d, v%d, v7' % (O + 8, O + 9))
    p('v_fma_f32 v16, v%d, v%d, v16' % (O + 10, O + 11))
    p('s_mov_b32 s3, 0x7f800000')
    p('v_add_f32 v7, v7, v16')
    p('v_cmp_gt_f32 s[4:5], s3, abs(v7)')
    p('s_and_b64 s[4:5], s[4:5], vcc')
    p('s_cmp_eq_u64 s[4:5], -1')
    if CFG['force_safe']:
        p('s_branch %s' % safe)
    else:
        p('s_cbranch_scc0 %s' % safe)
    p.label(back)
    finish(p, 0)
    stamp(p, 25)
    late, lateb = p.newlabel('late'), p.newlabel('lateb')
    p('s_cmp_lg_u32 s%d, 0' % sLATE)
    p('s_cbranch_scc1 %s' % late)
    p.label(lateb)

    def late_path():
        p.label(late)
        p('s_waitcnt vmcnt(2)')
        poll_new(p, 0xff5, False)
        p('s_waitcnt vmcnt(0)')
        flag_store(p, 31)
        poll_check(p, VPD, lambda: poll_again(p, 'b'))
        b_loads()
        p('s_waitcnt vmcnt(0)')
        p('s_branch %s' % lateb)
    warm.append(late_path)
    prio(p, 0)
    p('s_waitcnt vmcnt(2)')
    stamp(p, 26)
    M = 16
    S0, S1 = SA, SB
    a, b = smf(S0, 0, KB, QB1, QB2), smf(S1, 1, KB, QB1, QB2)
    po = p3_poll()
    emit_all(p, [a[0]] + vread(BV, 0, 1) + [a[1]] + vread(BV, 1, 0) + [b[0]] + po[:8] + [b[1]] + po[8:] + ['v_mov_b32 v7, %s' % NEG_INF])
    for r in range(16):
        p('v_cndmask_b32 v%d, v%d, v%d, %s' % (S1 + r, S0 + r, S1 + r, mask(r)))
    for r in range(16):
        p('v_cndmask_b32 v%d, v7, v%d, %s' % (S1 + r, S1 + r, vbm(r)))
    p('v_max_f32 v%d, v%d, v%d' % (M, S1, S1 + 1))
    p('v_max_f32 v%d, v%d, v%d' % (M + 1, S1 + 2, S1 + 3))
    for r in range(4, 16, 2):
        p('v_max3_f32 v%d, v%d, v%d, v%d' % (M + (r // 2) % 2, M + (r // 2) % 2, S1 + r, S1 + r + 1))
    p('v_max_f32 v%d, v%d, v%d' % (M, M, M + 1))
    half_max(p, M)

    def flagA():
        p('s_waitcnt vmcnt(0)')
        flag_store(p, 31)
        stamp(p, 27)
    emit_all(p, subm(S1, M))
    if CFG['f2a'] == 0:
        flagA()
    emit_all(p, exps(S1) + cvts(S1, PP + 8))
    for i in range(8):
        p('v_and_b32 v%d, v%d, v%d' % (PP + i, PP + 8 + i, MSK + i))
    p('s_waitcnt lgkmcnt(0)')
    pd = pvm(0, PP, True)
    p(pd[0])
    for i in range(8):
        p('v_xor_b32 v%d, v%d, v%d' % (PP + 8 + i, PP + 8 + i, PP + i))
    emit_all(p, [pd[1]] + pvm(1, PP + 8))
    if CFG['f2a'] == 1:
        flagA()
    if CFG['f2a'] == 2:
        p('s_mov_b32 s%d, s31' % sLATE)
    finish(p, 1)
    stamp(p, 28)
    if CFG['f2a'] == 2:
        p('s_waitcnt vmcnt(2)')
        flag_store(p, sLATE)
        stamp(p, 27)
    x = 1 if CFG['f2a'] == 2 else 0
    n = min(len(wq), CFG['nwb2'])
    for _ in range(n):
        w_load(p, wq.pop(0))
    if not wq:
        poll_new(p, 0xffff)
        n += 1
    if grp == 0:
        p3_setup(p, grp)
    p('s_barrier')
    prio(p, 3)
    if grp == 1:
        p3_setup(p, grp)
    p('s_waitcnt vmcnt(%d)' % (n + x))
    flag_store(p, 31)
    stamp(p, 29)
    pend3[0] = 1
    if wq:
        while wq:
            w_load(p, wq.pop(0))
        poll_new(p, 0xffff)
        pend3[0] = 0


pend3 = [0]
VO1, VO2, VPW = 8, 9, 10
OF, ACC3 = 32, 112
PH_OFF = 131072


def p3_poll():
    return [
        's_lshr_b32 s4, s%d, 2' % sW,
        's_and_b32 s5, s%d, 3' % sW,
        's_lshl_b32 s3, s%d, 3' % sM,
        's_add_u32 s3, s3, s5',
        's_mul_i32 s6, s3, %d' % (8 * 1280),
        's_mul_i32 s7, s4, %d' % O_BR,
        's_add_u32 s6, s6, s7',
        's_add_u32 s27, s6, %d' % O_OFF,
        's_lshl_b32 s3, s3, 10',
        's_mul_i32 s7, s4, %d' % F2_BR,
        's_add_u32 s3, s3, s7',
        's_add_u32 s3, s3, %d' % F2_OFF,
        'v_and_b32 v16, 7, v0',
        'v_lshl_add_u32 v16, v16, 7, s3',
        'v_bfe_u32 v17, v0, 3, 1',
        'v_lshl_add_u32 v%d, v17, 12, v16' % VPOLL,
    ]


def p3_setup(p, grp):
    emit_all(p, [
        'v_and_b32 v18, 15, v0',
        'v_mul_u32_u24 v16, 1280, v%d' % VHH,
        'v_bfe_u32 v17, v0, 4, 1',
        'v_lshl_add_u32 v16, v17, 9, v16',
        'v_lshl_add_u32 v%d, v18, 4, v16' % VO1,
        'v_lshrrev_b32 v19, 4, v0',
        'v_mul_u32_u24 v16, 1280, v19',
        'v_lshl_add_u32 v%d, v18, 3, v16' % VO2,
        's_lshl_b32 s3, s%d, 12' % sW,
        's_add_u32 s3, s3, %d' % PH_OFF,
        'v_lshl_add_u32 v%d, v0, 2, s3' % VPW,
        's_and_b32 s3, s%d, 3' % sW,
        's_lshl_b32 s3, s3, 14',
        's_add_u32 m0, s3, %d' % (16380 if grp else 0),
    ])
    for j in range(4):
        if CFG['orot']:
            p('s_add_u32 s3, s%d, %d' % (sN, j))
        else:
            p('s_mov_b32 s3, %d' % j)
        p('s_bfe_u32 s4, s3, 0x10001')
        p('s_mul_i32 s4, s4, 40960')
        p('s_add_u32 s4, s4, s27')
        p('s_and_b32 s3, s3, 1')
        p('s_lshl_b32 s3, s3, 7')
        b = 72 + j * 4
        p('s_add_u32 s%d, s4, s3' % (b + 2))
        p('s_add_u32 s%d, s%d, 5120' % (b + 3, b + 2))
        p('s_add_u32 s%d, s%d, s3' % (b, b + 2))
        p('s_add_u32 s%d, s%d, 5120' % (b + 1, b))
    if grp == 0:
        emit_all(p, [
            's_lshl_b32 s3, s%d, 12' % sW,
            'v_add_u32 v20, s3, v%d' % VL16,
            'v_add_u32 v21, 65536, v20',
            's_lshl_b32 s3, s%d, 10' % sW,
            's_add_u32 s3, s3, %d' % PH_OFF,
            'v_add_u32 v22, s3, v%d' % VL16,
            'v_bfe_u32 v16, v0, 2, 2',
            'v_lshl_add_u32 v16, v16, 2, v19',
            'v_mul_u32_u24 v16, 1280, v16',
            'v_and_b32 v17, 3, v0',
            'v_lshl_add_u32 v23, v17, 4, v16',
            'v_lshl_add_u32 v24, v17, 3, v16',
            ('s_add_u32 s3, s%d, s%d' % (sN, sW)) if CFG['orot'] else ('s_mov_b32 s3, s%d' % sW),
            's_and_b32 s3, s3, 3',
            's_lshl_b32 s4, s%d, 2' % sM,
            's_add_u32 s3, s3, s4',
            's_mul_i32 s3, s3, %d' % (16 * 1280),
            's_mul_i32 s4, s%d, 160' % sN,
            's_add_u32 s68, s3, s4',
        ])


def phase3(p, grp):
    def loads(tt):
        b = 72 + tt * 4
        L = ['buffer_load_dwordx4 %s, v%d, %s, s%d offen offset:%d sc1' % (v(OF + (tt * 5 + st) * 4, 4), VO1, WS, b + st // 2, (st % 2) * 2560) for st in range(4)]
        L += ['buffer_load_dwordx2 %s, v%d, %s, s%d offen offset:1024 sc1' % (v(OF + (tt * 5 + 4) * 4 + j * 2, 2), VO2, WS, b + 2 + j) for j in range(2)]
        return L
    p('s_waitcnt vmcnt(%d)' % pend3[0])
    poll_check(p, VPD, lambda: poll_again(p, '2'))
    stamp(p, 30)
    lq = sum([loads(tt) for tt in range(4)], [])
    nis = [0]

    def ld(n):
        for _ in range(n):
            if lq:
                p(lq.pop(0))
                nis[0] += 1
    ld(CFG['oup'])
    stamp(p, 31)
    prio(p, CFG['g2p'][grp])

    def wr(tt, u):
        a = ACC3 + (tt & 1) * 20 + u * 4
        if u < 4:
            return ['ds_write_addtid_b32 v%d offset:%d' % (a + j, (49156 if grp else 0) + (tt * 4 + u) * 1024 + j * 256) for j in range(4)]
        return ['ds_write_b32 v%d, v%d offset:%d' % (VPW, a + j, tt * 1024 + j * 256) for j in range(4)]

    def mm(y1):
        for tt in range(4):
            if tt == y1:
                p('s_barrier')
            for st in range(5):
                done = tt * 6 + (st + 1 if st < 4 else 6)
                assert nis[0] >= done
                w = wr(tt - 1, st) if tt > 0 else []
                p('s_waitcnt vmcnt(%d)%s' % (nis[0] - done, ' lgkmcnt(8)' if w else ''))
                for u in range(5):
                    acc = v(ACC3 + (tt & 1) * 20 + u * 4, 4)
                    p('v_mfma_f32_16x16x32_bf16 %s, %s, %s, %s' % (acc, v(OF + (tt * 5 + st) * 4, 4), v(WF3 + (st * 5 + u) * 4, 4), '0' if st == 0 else acc))
                    if w and u >= 1:
                        p(w[u - 1])
                    if u in CFG['oin']:
                        ld(1)
        for u in range(5):
            if u in (1, 3):
                p('s_waitcnt lgkmcnt(4)')
            emit_all(p, wr(3, u))

    if grp == 1:
        mm(CFG['y1'])
        stamp(p, 32)
        p('s_waitcnt lgkmcnt(0)')
        p('s_barrier')
        stamp_out(p)
        p('s_endpgm')
        return
    mm(-1)
    stamp(p, 32)
    p('s_waitcnt lgkmcnt(0)')
    p('s_barrier')
    SUM, TMP = 32, 52

    def rd(g, u):
        for k in range(4):
            d = v(TMP + u * 16 + k * 4, 4)
            if u < 4:
                p('ds_read_b128 %s, v%d offset:%d' % (d, 20 + g, k * 16384 + u * 1024))
            else:
                p('ds_read_b128 %s, v22 offset:%d' % (d, (g * 4 + k) * 4096))

    def add(g, u):
        T = TMP + u * 16
        if g == 0:
            for i in range(4):
                p('v_add_f32 v%d, v%d, v%d' % (T + i, T + i, T + 4 + i))
            for i in range(4):
                p('v_add_f32 v%d, v%d, v%d' % (T + 8 + i, T + 8 + i, T + 12 + i))
            for i in range(4):
                p('v_add_f32 v%d, v%d, v%d' % (SUM + u * 4 + i, T + i, T + 8 + i))
            return
        for i in range(2):
            p('v_pk_add_f32 %s, %s, %s' % (v(T + 2 * i, 2), v(T + 2 * i, 2), v(T + 4 + 2 * i, 2)))
        for i in range(2):
            p('v_pk_add_f32 %s, %s, %s' % (v(T + 8 + 2 * i, 2), v(T + 8 + 2 * i, 2), v(T + 12 + 2 * i, 2)))
        for i in range(2):
            p('v_pk_add_f32 %s, %s, %s' % (v(T + 2 * i, 2), v(T + 2 * i, 2), v(SUM + u * 4 + 2 * i, 2)))
        for i in range(2):
            p('v_pk_add_f32 %s, %s, %s' % (v(T + 2 * i, 2), v(T + 2 * i, 2), v(T + 8 + 2 * i, 2)))
        for i in range(2):
            p('v_cvt_pk_bf16_f32 v%d, v%d, v%d' % (136 + u * 2 + i, T + 2 * i, T + 2 * i + 1))
        if u in (1, 3):
            p('buffer_store_dwordx4 %s, v23, %s, s68 offen offset:%d' % (v(136 + (u - 1) * 2, 4), sr(S_OUT), (u // 2) * 64))
        if u == 4:
            p('buffer_store_dwordx2 %s, v24, %s, s68 offen offset:128' % (v(144, 2), sr(S_OUT)))
    for g in range(2):
        if g == 1:
            stamp(p, 33)
            p('s_barrier')
            stamp(p, 34)
        rd(g, 0)
        rd(g, 1)
        rd(g, 2)
        for u in range(5):
            p('s_waitcnt lgkmcnt(%d)' % (8 if u < 3 else 4 * (4 - u)))
            if u < 2:
                rd(g, u + 3)
            add(g, u)
    stamp(p, 35)
    stamp_out(p)
    p('s_endpgm')


def kernel(p):
    del cold[:]
    del warm[:]
    end, spare, ktail, p2b, g0 = [p.newlabel(x) for x in ('end', 'spare', 'ktail', 'p2b', 'g0')]
    prologue(p, end)
    p('s_cmp_ge_u32 s4, 30')
    p('s_cbranch_scc1 %s' % spare)
    p('s_cmp_lt_u32 s%d, 4' % sW)
    p('s_cbranch_scc1 %s' % g0)
    p1_grp1(p)
    p.label(p2b)
    phase2(p, 1)
    phase3(p, 1)
    p.label(spare)
    p1_spare(p)
    k = p.newlabel('sp03')
    p('s_cmp_lt_u32 s%d, 4' % sW)
    p('s_cbranch_scc1 %s' % k)
    vb_masks(p)
    emit_all(p, p2_setup() + p2_setup2(1))
    p('s_branch %s' % p2b)
    p.label(k)
    preflag(p, False)
    tail_scalars(p)
    tail_vectors(p)
    p('s_mov_b32 s%d, 1' % sNW)
    poll_new(p, 0x0f33ffff)
    p('s_branch %s' % ktail)
    p.label(end)
    p('s_endpgm')
    p.label(g0)
    p1_grp0(p)
    p.label(ktail)
    kv_tail(p)
    phase2(p, 0)
    phase3(p, 0)
    for f in warm:
        f()
    p.label('.Lhot_end')
    i = 0
    while i < len(cold):
        cold[i]()
        i += 1


HEADER = open('cdna_kernels/%s.s.ref' % NAME).read().split('; Override launch')[0]


def ablate(p):
    ab = CFG['abl']
    out = []
    for x in p.ins:
        t = x.text
        one = False
        if 'w' in ab and t.startswith('buffer_load_dwordx4') and ', s%d offen' % sWP in t and 'lds' not in t:
            one = True
        if 'o' in ab and t.startswith('buffer_load') and re.search(r', s(7[2-9]|8[0-7]) offen', t) and 'sc1' in t and 'lds' not in t and ('v%d,' % VO1 in t or 'v%d,' % VO2 in t):
            one = True
        if 's' in ab and t.startswith('buffer_store_dwordx4') and ', v%d, %s, s3 offen sc1' % (VST, WS) in t:
            one = True
        if 'k' in ab and t.startswith('buffer_load') and 'sc1 lds' in t and 'offset' in t:
            one = True
        if 'b' in ab and t.startswith('buffer_load') and re.search(r'v(%d|%d|%d), s\[8:11\]' % (VBF, VBH, VBV), t):
            one = True
        if 't' in ab and t.startswith('buffer_store') and 's30 offen' in t:
            one = True
        if 'p' in ab and t.startswith('v_cmp_ne_u64'):
            out.append(Ins('v_cmp_ne_u64 vcc, v[2:3], v[2:3]'))
            continue
        if 'p' in ab and t.startswith('s_cbranch_scc0 .Lsafe'):
            continue
        if one:
            out += [Ins('s_mov_b64 s[0:1], exec'), Ins('s_mov_b64 exec, 1'), x, Ins('s_mov_b64 exec, s[0:1]')]
        else:
            out.append(x)
    p.ins = [x for x in out if not (ab and x.text.startswith('s_cbranch_scc0 .Lsafe'))]


def build(extra=None, **cfg):
    CFG.update(cfg)
    n = NAME + '_kernel'
    out = HEADER
    if extra:
        out += '; @launch kernel=%s grid=(256,1,1) block=(512,1,1) lds=%d\n' % (n, LDS_BYTES)
        out += '; @launch kernel=diag_kernel grid=(1,1,1) block=(64,1,1) lds=0\n'
    else:
        out += '; @launch grid=(256,1,1) block=(512,1,1) lds=%d\n' % LDS_BYTES
    out += '.amdgcn_target "amdgcn-amd-amdhsa--gfx950"\n.text\n'
    ks = [(n, kernel)] + ([('diag_kernel', extra)] if extra else [])
    desc = ''
    uid = 0
    for kn, f in ks:
        p = Prog()
        p.uid = uid
        p.label(kn)
        f(p)
        uid = p.uid
        if CFG['abl']:
            ablate(p)
        nn = p.fix_hazards()
        ne = p.check_waits([kn])
        mx = p.max_regs()
        print(kn[-12:], 'instrs', len(p.ins), 'nops', nn, 'wait errors', ne, 'max regs', mx, file=sys.stderr)
        assert ne == 0
        out += '.globl %s\n.p2align 8\n.type %s,@function\n' % (kn, kn) + p.text()
        desc += '.p2align 6\n' + kernel_desc(kn, max(mx['v'] + 1, 8), 102)
    out += '.section .rodata,"a"\n' + desc
    return out


if __name__ == '__main__':
    cfg = {}
    args = []
    for a_ in sys.argv[1:]:
        if '=' in a_:
            k, val = a_.split('=')
            cfg[k] = eval(val)
        else:
            args.append(a_)
    path = args[0] if args else 'cdna_kernels/%s.s' % NAME
    open(path, 'w').write(build(**cfg))
```
